```python
import torch

def _softmax(x, axis=-1):
    return torch.softmax(x, dim=axis)
def _gelu(x):
    return torch.nn.functional.gelu(x, approximate="tanh")
def _silu(x):
    return torch.nn.functional.silu(x)
def _sigmoid(x):
    return torch.sigmoid(x)
def _layernorm(x, axis=-1, eps=1e-5):
    m = x.mean(dim=axis, keepdim=True)
    v = x.var(dim=axis, keepdim=True, unbiased=False)
    return (x - m) / torch.sqrt(v + eps)
def _scatter_add(tgt, idx, src, axis=0):
    return tgt.clone().index_add_(axis, idx, src)
def _segment_sum(src, seg, n):
    out = torch.zeros((n,) + src.shape[1:], dtype=src.dtype)
    return out.index_add_(0, seg, src)
def _pad(x, pw):
    flat = tuple(v for pair in reversed(pw) for v in pair)
    return torch.nn.functional.pad(x, flat)

kernel_name = 'recurrent_scan__gqa_block_cached__swiglu_ffn__decode'

def setup_inputs():

    _w = (lambda a: (lambda t: t.to(torch.bfloat16) if t.is_floating_point() else t)(torch.as_tensor(a)))
    def _A_setup():
        B, Sq, D = 1, 1, 1024
        Hq, Hkv, Sk, Dh = 32, 4, 32768, 128
        assert Hq % Hkv == 0, (Hq, Hkv)
        return {
            "x": _w((lambda *s: torch.randn(*s, dtype=torch.bfloat16) * 0.05)(B, Sq, D)),
            "k_cache": _w((lambda *s: torch.randn(*s, dtype=torch.bfloat16) * 1.6)(B, Hkv, Sk, Dh)),
            "v_cache": _w((lambda *s: torch.randn(*s, dtype=torch.bfloat16) * 0.2)(B, Hkv, Sk, Dh)),
            "wq": _w((lambda *s: torch.randn(*s, dtype=torch.bfloat16) * 1.6)(D, Hq * Dh) * (D ** -0.5)),
            "wo": _w((lambda *s: torch.randn(*s, dtype=torch.bfloat16) * 0.2)(Hq * Dh, D) * ((Hq * Dh) ** -0.5)),
        }
    _A_in = _A_setup()

    def _B_setup():
        B, S, D, F = 1, 1, 1024, 3584
        return {
            "x": _w((lambda *s: torch.randn(*s, dtype=torch.bfloat16) * 0.05)(B, S, D)),
            "w_gate": _w((lambda *s: torch.randn(*s, dtype=torch.bfloat16) * 0.1)(D, F)),
            "w_up": _w((lambda *s: torch.randn(*s, dtype=torch.bfloat16) * 0.1)(D, F)),
            "w_down": _w((lambda *s: torch.randn(*s, dtype=torch.bfloat16) * 0.1)(F, D)),
        }
    _B_in = _B_setup()

    return {
        "A_x": _A_in["x"],
        "A_k_cache": _A_in["k_cache"],
        "A_v_cache": _A_in["v_cache"],
        "A_wq": _A_in["wq"],
        "A_wo": _A_in["wo"],
        "B_x": _B_in["x"],
        "B_w_gate": _B_in["w_gate"],
        "B_w_up": _B_in["w_up"],
        "B_w_down": _B_in["w_down"],
    }

def reference(A_x, A_k_cache, A_v_cache, A_wq, A_wo, B_x, B_w_gate, B_w_up, B_w_down):
    def _A_ref(x, k_cache, v_cache, wq, wo):
        B, Sq, D = x.shape
        Hq, Dh = 32, 128
        Hkv = k_cache.shape[1]
        rep = Hq // Hkv
        q = (lambda x, *d: x.permute(*d))((x @ wq).reshape(B, Sq, Hq, Dh), 0, 2, 1, 3)
        k = (lambda x, n, axis: torch.repeat_interleave(x, n, dim=axis))(k_cache, rep, axis=1)
        v = (lambda x, n, axis: torch.repeat_interleave(x, n, dim=axis))(v_cache, rep, axis=1)
        scores = torch.einsum("bhqd,bhkd->bhqk", q, k) * (Dh ** -0.5)
        p = _softmax(scores, axis=-1)
        o = torch.einsum("bhqk,bhkd->bhqd", p, v)
        return (lambda x, *d: x.permute(*d))(o, 0, 2, 1, 3).reshape(B, Sq, Hq * Dh) @ wo

    def _B_ref(x, w_gate, w_up, w_down):
        g = _silu(x @ w_gate)
        u = x @ w_up
        return (g * u) @ w_down

    x = A_x
    xn = _layernorm(x, axis=-1)
    s = _A_ref(xn, A_k_cache, A_v_cache, A_wq, A_wo)
    g = _silu(_B_ref(xn, B_w_gate, B_w_up, B_w_down))
    return x + s * g
```

```python
import re

TRANS = ('v_exp_f32', 'v_log_f32', 'v_rcp_f32', 'v_rsq_f32', 'v_sqrt_f32', 'v_sin_f32', 'v_cos_f32')

def regs_of(tok):
    tok = tok.strip()
    tok = tok.lstrip('-')
    m = re.fullmatch(r'abs\((.*)\)', tok)
    if m: tok = m.group(1)
    tok = tok.strip('|')
    m = re.fullmatch(r'([vsa])(\d+)', tok)
    if m: return {(m.group(1), int(m.group(2)))}
    m = re.fullmatch(r'([vsa])\[(\d+):(\d+)\]', tok)
    if m: return {(m.group(1), i) for i in range(int(m.group(2)), int(m.group(3)) + 1)}
    if tok == 'vcc': return {('s', 'vcc')}
    if tok in ('vcc_lo', 'vcc_hi'): return {('s', 'vcc')}
    if tok in ('exec', 'exec_lo', 'exec_hi'): return {('s', 'exec')}
    if tok == 'm0': return {('s', 'm0')}
    return set()

def split_ops(s):
    out, depth, cur = [], 0, ''
    for ch in s:
        if ch in '[(': depth += 1
        if ch in '])': depth -= 1
        if ch == ',' and depth == 0:
            out.append(cur); cur = ''
        else: cur += ch
    if cur.strip(): out.append(cur)
    return [o.strip() for o in out]

class Ins:
    def __init__(self, text):
        self.text = text
        t = text.split(';')[0].strip()
        parts = t.split(None, 1)
        self.op = parts[0]
        rest = parts[1] if len(parts) > 1 else ''
        ops = split_ops(rest)
        self.mods = ''
        if ops:
            l = ops[-1].split(None, 1)
            ops[-1] = l[0]
            self.mods = l[1] if len(l) > 1 else ''
        self.ops = ops
        op = self.op
        self.valu = op.startswith('v_') and not op.startswith('v_mfma')
        self.mfma = op.startswith('v_mfma')
        self.vmem = op.startswith(('buffer_', 'global_', 'flat_')) and op not in ('buffer_inv', 'buffer_wbl2')
        self.ds = op.startswith('ds_')
        self.salu = op.startswith('s_')
        self.dpp = '_dpp' in op
        self.trans = op.replace('_e32', '').replace('_e64', '') in TRANS
        self.perml = op.startswith('v_permlane')
        self.w = set(); self.r = set(); self.srcC = set(); self.srcAB = set(); self.storedata = set()
        R = [regs_of(o) for o in ops]
        if self.mfma:
            self.w = R[0]; self.srcAB = R[1] | R[2]; self.srcC = R[3]; self.r = self.srcAB | self.srcC
        elif self.valu:
            if self.perml:
                self.w = R[0] | R[1]; self.r = R[0] | R[1]
            elif op.startswith('v_cmp'):
                self.w = R[0]; self.r = set().union(*R[1:])
            elif op.startswith(('v_add_co', 'v_addc_co', 'v_sub_co', 'v_subb_co')):
                self.w = R[0] | R[1]; self.r = set().union(*R[2:])
            else:
                self.w = R[0]; self.r = set().union(*R[1:]) if len(R) > 1 else set()
                if op.startswith(('v_fmac', 'v_dot2c', 'v_writelane')) or self.dpp: self.r |= R[0]
        elif self.vmem:
            lds = ' lds' in (' ' + self.mods)
            if 'load' in op:
                if op.startswith('buffer') and lds: self.r = set().union(*R) | {('s', 'm0')}
                elif 'load_lds' in op: self.r = set().union(*R) | {('s', 'm0')}
                else: self.w = R[0]; self.r = set().union(*R[1:])
            else:
                self.r = set().union(*R)
                if op.startswith('buffer'): d = R[0]
                else: d = R[1] if not ('atomic' in op and 'sc0' in self.mods) else R[2]
                if 'atomic' in op and 'sc0' in self.mods: self.w = R[0]
                if op.endswith(('x3', 'x4')): self.storedata = d
        elif self.ds:
            if op.startswith(('ds_read', 'ds_bpermute', 'ds_permute', 'ds_swizzle')) or '_rtn' in op:
                self.w = R[0]; self.r = set().union(*R[1:])
            else: self.r = set().union(*R)
        elif self.salu:
            if op.startswith(('s_cmp', 's_cbranch', 's_branch', 's_waitcnt', 's_nop', 's_barrier', 's_endpgm', 's_sleep', 's_setprio', 's_bitcmp')):
                self.r = set().union(*R) if R else set()
            else:
                self.w = R[0] if R else set(); self.r = set().union(*R[1:]) if len(R) > 1 else set()
                if 'saveexec' in op: self.w = self.w | {('s', 'exec')}
    def states(self):
        if self.op == 's_nop': return int(self.ops[0], 0) + 1
        return 1

def need(p, c):
    n = 0
    isv = lambda S: {x for x in S if x[0] in 'va'}
    iss = lambda S: {x for x in S if x[0] == 's'}
    if p.valu:
        wv = isv(p.w); ws = iss(p.w)
        if c.dpp and wv & c.r: n = max(n, 2)
        if c.perml and wv & c.r: n = max(n, 2)
        if c.mfma and wv & c.r: n = max(n, 2)
        if c.op.startswith(('v_readlane', 'v_readfirstlane')) and wv & c.r: n = max(n, 1)
        if p.trans and (c.valu or c.mfma) and wv & c.r: n = max(n, 1)
        if p.trans and (c.vmem or c.ds) and wv & c.r: n = max(n, 1)
        if ws:
            if c.vmem and ws & c.r: n = max(n, 5)
            if c.valu and ws & c.r: n = max(n, 4 if c.op.startswith(('v_readlane', 'v_writelane')) else 2)
            if c.salu and ws & c.r: n = max(n, 1)
            if c.op.startswith('s_cbranch_vcc') and ('s', 'vcc') in ws: n = max(n, 1)
    if p.mfma:
        passes = 8 if '32x32' in p.op else 4
        big = {4: 8, 8: 12}[passes]
        if c.mfma:
            if p.w & c.srcAB: n = max(n, big)
            if p.w & c.srcC and p.w != c.srcC: n = max(n, big - 2)
            if p.w & c.w and not (p.w & c.srcC): n = max(n, big)
        elif (c.valu or c.vmem or c.ds) and p.w & (c.r | c.w): n = max(n, big)
        if c.valu and p.srcC & c.w: n = max(n, {4: 3, 8: 7}[passes])
    if p.storedata and (c.w & p.storedata): n = max(n, 2)
    if p.salu and ('s', 'm0') in p.w and c.vmem and ('s', 'm0') in c.r: n = max(n, 1)
    if p.salu and ('s', 'exec') in p.w and c.dpp: n = max(n, 1)
    return n

class Asm:
    def __init__(self):
        self.lines = []
        self.hist = []
        self.vm = []
        self.nops = 0
    def raw(self, s): self.lines.append(s)
    def label(self, name):
        self.lines.append(name + ':')
    def __call__(self, text, tag=None):
        for t in text.split('\n'):
            t = t.strip()
            if not t: continue
            if t.endswith(':') or t.startswith(('.', ';')):
                self.lines.append(t); continue
            ins = Ins(t)
            dist = 0; req = 0
            for p in reversed(self.hist):
                nd = need(p, ins)
                if nd - dist > req: req = nd - dist
                dist += p.states()
                if dist > 24: break
            if req > 0:
                nop = Ins(f's_nop {req-1}')
                self.lines.append('  ' + nop.text); self.hist.append(nop); self.nops += req
            self.lines.append('  ' + t); self.hist.append(ins)
            if len(self.hist) > 40: self.hist = self.hist[-40:]
            if ins.vmem: self.vm.append(tag)
    def vm_reset(self): self.vm = []
    def vm_wait(self, tag):
        idx = max(i for i, t in enumerate(self.vm) if t == tag)
        n = len(self.vm) - 1 - idx
        if n <= 62: self(f's_waitcnt vmcnt({n})')
    def vm_window(self, w):
        st = [t for t in self.vm if isinstance(t, tuple)]
        if len(st) >= w: self.vm_wait(st[-w])
    def text(self): return '\n'.join(self.lines) + '\n'
```

```python
import sys
sys.path.insert(0, 'work')
from asmlib import Asm

KNAME = 'recurrent_scan__gqa_block_cached__swiglu_ffn__decode_kernel'
MB = 1 << 20
QP, GP, UP, ML, SP, FP, OP, WSEND = 0, 81920, 139264, 196608, 262144, 524288, 786432, 1835008
STAMPS = 8 * MB
L_K, L_OR, L_Q, L_MLW, L_H, L_O16, L_END = 0, 131072, 147968, 150144, 150400, 150528, 150656
OOB = 0x40000000
LOG2E = 0x3fb8aa3b
SCALE = 0x3db504f3
SPIN = 400000

HEADER = open('recurrent_scan__gqa_block_cached__swiglu_ffn__decode.s.ref').read().split('; Override')[0]

def gen(pol='nt', wA=5, w3=6, w4=8, wT=5, nB1=8, early2=0, stamps=False, sleep=4):
    a = Asm()
    P = {'nt': ' nt', 'plain': ''}[pol]
    nst = [0]
    def stamp(k):
        if stamps: a(f's_memrealtime s[{64+2*k}:{65+2*k}]')
    def srd(d, p, size):
        a(f's_mov_b32 s{d}, s{p}\ns_mov_b32 s{d+1}, s{p+1}\ns_mov_b32 s{d+2}, {size}\ns_mov_b32 s{d+3}, 0x20000')
    def allred_row(op, v):
        for r in (8, 4, 2, 1):
            a(f'{op}_dpp v{v}, v{v}, v{v} row_ror:{r} row_mask:0xf bank_mask:0xf')
    def allred_xrow(op, v, t):
        a(f'v_mov_b32 v{t}, v{v}\nv_permlane16_swap_b32 v{t}, v{v}\n{op} v{v}, v{v}, v{t}')
        a(f'v_mov_b32 v{t}, v{v}\nv_permlane32_swap_b32 v{t}, v{v}\n{op} v{v}, v{v}, v{t}')
    def rbf(v):
        a(f'v_cvt_pk_bf16_f32 v{v}, v{v}, v{v}\nv_lshlrev_b32 v{v}, 16, v{v}')
    def perms_pair(La, Lb, TB, u):
        for d in range(4):
            a(f'v_perm_b32 v{TB+4*(2*d)+u}, v{Lb+d}, v{La+d}, s60')
            a(f'v_perm_b32 v{TB+4*(2*d+1)+u}, v{Lb+d}, v{La+d}, s61')
    def sentinel_max(regs, t):
        regs = list(regs)
        if len(regs) == 2:
            a(f'v_max_u32 v{t}, v{regs[0]}, v{regs[1]}'); return
        a(f'v_max3_u32 v{t}, v{regs[0]}, v{regs[1]}, v{regs[2]}')
        regs = regs[3:]
        while len(regs) >= 2:
            a(f'v_max3_u32 v{t}, v{t}, v{regs[0]}, v{regs[1]}'); regs = regs[2:]
        if regs: a(f'v_max_u32 v{t}, v{t}, v{regs[0]}')
    def retry(lbl_loop, lbl_done, slp):
        a(f's_cbranch_vccz {lbl_done}')
        if slp: a(f's_sleep {slp}')
        a(f's_sub_u32 s62, s62, 1\ns_cmp_gt_i32 s62, 0\ns_cbranch_scc1 {lbl_loop}')
        a(f'{lbl_done}:')
    def silu(v, t):
        a(f'v_mul_f32 v{t}, 0xbfb8aa3b, v{v}\nv_exp_f32 v{t}, v{t}\nv_add_f32 v{t}, 1.0, v{t}\nv_rcp_f32 v{t}, v{t}\nv_mul_f32 v{v}, v{v}, v{t}')
    def fold_cols(D, o):
        for k in range(4):
            a(f'v_add_f32_dpp v{o+k}, v{D+4*k+1}, v{D+4*k} row_ror:8 row_mask:0xf bank_mask:0x3')
        for k in range(4):
            a(f'v_add_f32_dpp v{o+k}, v{D+4*(k+4)}, v{D+4*(k+4)+1} row_ror:8 row_mask:0xf bank_mask:0xc')
    def finish(lbl):
        if stamps:
            stamp(7)
            a('s_getreg_b32 s84, hwreg(HW_REG_XCC_ID)\ns_waitcnt lgkmcnt(0)')
            a('s_lshl_b32 s52, s2, 3\ns_add_u32 s52, s52, s3\ns_lshl_b32 s52, s52, 7')
            a(f's_add_u32 s54, s26, {STAMPS}\ns_addc_u32 s55, s27, 0')
            a('v_mov_b32 v2, s52\ns_mov_b64 exec, 1')
            for k in range(6):
                a(f'v_mov_b32 v4, s{64+4*k}\nv_mov_b32 v5, s{65+4*k}\nv_mov_b32 v6, s{66+4*k}\nv_mov_b32 v7, s{67+4*k}')
                a(f'global_store_dwordx4 v2, v[4:7], s[54:55] offset:{16*k}\ns_nop 1')
        a('s_endpgm')

    a.raw(HEADER.rstrip())
    a.raw(f'; @launch grid=(256,1,1) block=(512,1,1) lds={L_END}')
    a.raw('.amdgcn_target "amdgcn-amd-amdhsa--gfx950"\n.text')
    a.raw(f'.globl {KNAME}\n.p2align 8\n.type {KNAME},@function\n{KNAME}:')
    if stamps:
        for k in range(64, 88, 2): a(f's_mov_b64 s[{k}:{k+1}], 0')
    stamp(0)
    a('s_cmp_ge_u32 s2, 256\ns_cbranch_scc1 L_exit')
    a('s_load_dwordx16 s[4:19], s[0:1], 0\ns_load_dwordx8 s[20:27], s[0:1], 64')
    a('v_lshrrev_b32 v2, 6, v0\nv_and_b32 v1, 63, v0\nv_readfirstlane_b32 s3, v2')
    a(f's_mov_b32 s60, 0x05040100\ns_mov_b32 s61, 0x07060302\ns_mov_b32 s62, {SPIN}')
    a('s_cmp_ge_u32 s3, 4\ns_cbranch_scc1 L_A')
    a('s_setprio 2')
    a('v_lshrrev_b32 v2, 3, v1')
    a('v_and_b32 v3, 7, v1\nv_lshlrev_b32 v3, 4, v3')
    a('v_lshrrev_b32 v4, 4, v1\nv_lshlrev_b32 v4, 1, v4\nv_and_b32 v5, 1, v1\nv_add_u32 v4, v4, v5\nv_lshlrev_b32 v4, 4, v4')
    a('s_cmp_eq_u32 s3, 3\ns_cbranch_scc1 L_W3')
    a('s_and_b32 s52, s2, 7\ns_lshr_b32 s53, s2, 6\ns_lshl_b32 s53, s53, 3\ns_add_u32 s52, s52, s53')
    a('s_lshr_b32 s53, s2, 3\ns_and_b32 s53, s53, 7')
    a('s_cmp_eq_u32 s53, 7\ns_cbranch_scc1 L_light')
    a('s_cmp_eq_u32 s3, 0\ns_cbranch_scc1 L_hq')
    a('s_mul_i32 s54, s52, 7\ns_add_u32 s54, s54, s53')
    a('s_and_b32 s55, s54, 3\ns_lshr_b32 s54, s54, 2')
    a('s_lshl_b32 s56, s55, 8')
    a('s_movk_i32 s57, 7168')
    a(f's_mul_i32 s58, s55, 14336\ns_lshl_b32 s59, s54, 8\ns_add_u32 s58, s58, s59')
    a(f's_sub_u32 s59, s3, 1\ns_mul_i32 s59, s59, {UP-GP}\ns_add_u32 s58, s58, s59\ns_add_u32 s58, s58, {GP}')
    a('s_mov_b32 s63, 4')
    a('s_waitcnt lgkmcnt(0)')
    a('s_cmp_eq_u32 s3, 1\ns_cselect_b32 s32, s16, s18\ns_cselect_b32 s33, s17, s19')
    a(f's_mov_b32 s34, {1024*7168}')
    a('s_branch L_job')
    a('L_light:')
    a('s_sub_u32 s55, 10, s3\ns_cmp_eq_u32 s3, 0\ns_cselect_b32 s55, 4, s55')
    a('s_branch L_q')
    a('L_hq:')
    a('s_lshr_b32 s55, s53, 2\ns_add_u32 s55, s55, s53')
    a('L_q:')
    a('s_lshl_b32 s54, s52, 1')
    a('s_cmp_ge_u32 s55, 5\ns_cselect_b32 s59, 5, 0\ns_addc_u32 s54, s54, 0\ns_sub_u32 s55, s55, s59')
    a('s_mul_i32 s56, s55, 192\ns_movk_i32 s57, 0x2000')
    a('s_lshl_b32 s58, s55, 14\ns_lshl_b32 s59, s54, 8\ns_add_u32 s58, s58, s59')
    a('s_cmp_eq_u32 s55, 4\ns_cselect_b32 s63, 4, 3')
    a('s_waitcnt lgkmcnt(0)')
    a(f's_mov_b32 s32, s10\ns_mov_b32 s33, s11\ns_mov_b32 s34, {1024*8192}')
    a('L_job:')
    a('s_mov_b32 s35, 0x20000')
    srd(44, 4, 2048)
    a('s_lshl_b32 s59, s57, 3\nv_mul_lo_u32 v6, v2, s59\nv_add_u32 v6, v6, v3')
    a('s_mul_i32 s52, s56, s57\ns_lshl_b32 s54, s54, 7\ns_add_u32 s52, s52, s54')
    a('s_mul_i32 s53, s57, 57\ns_lshl_b32 s56, s56, 1')
    a('v_lshlrev_b32 v7, 5, v1')
    X, XS, D, TB, L = 48, 40, 64, 96, 128
    def xloads():
        a(f'buffer_load_dwordx4 v[{XS}:{XS+3}], v7, s[44:47], 0 offen')
        a(f'buffer_load_dwordx4 v[{XS+4}:{XS+7}], v7, s[44:47], 0 offen offset:16')
        for T in range(4):
            a(f'buffer_load_dwordx4 v[{X+4*T}:{X+4*T+3}], v4, s[44:47], s56 offen offset:{128*T}')
    def jobloads(nt, win):
        a.vm_reset()
        for i in range(8*nt):
            a.vm_window(win)
            a(f'buffer_load_dwordx4 v[{L+4*i}:{L+4*i+3}], v6, s[32:35], s52 offen{P}', tag=('j', i))
            if i < 8*nt-1: a(f's_add_u32 s52, s52, s{53 if i % 8 == 7 else 57}')
            if i == win - 1: xloads()
    a('s_cmp_eq_u32 s63, 3\ns_cbranch_scc1 L_ld3')
    jobloads(4, w4)
    a('s_branch L_lddone')
    a('L_ld3:')
    jobloads(3, w3)
    a('L_lddone:')
    a('s_barrier')
    stamp(1)
    srd(28, 26, WSEND); srd(48, 24, 256)
    t = 20
    for d in range(8):
        a(f'v_lshlrev_b32 v{t+2*d}, 16, v{XS+d}\nv_and_b32 v{t+2*d+1}, 0xffff0000, v{XS+d}')
    a(f'v_add_f32 v8, v{t}, v{t+1}')
    for k in range(2, 16): a(f'v_add_f32 v8, v8, v{t+k}')
    allred_row('v_add_f32', 8); allred_xrow('v_add_f32', 8, 9)
    a('v_mul_f32 v8, 0x3a800000, v8')
    for k in range(16): a(f'v_sub_f32 v{t+k}, v{t+k}, v8')
    a(f'v_mul_f32 v10, v{t}, v{t}')
    for k in range(1, 16): a(f'v_fmac_f32 v10, v{t+k}, v{t+k}')
    allred_row('v_add_f32', 10); allred_xrow('v_add_f32', 10, 9)
    a('v_mul_f32 v10, 0x3a800000, v10')
    rbf(8); rbf(10)
    a('v_add_f32 v10, 0x3727c5ac, v10'); rbf(10)
    a('v_sqrt_f32 v10, v10'); rbf(10)
    a('v_rcp_f32 v11, v10\nv_fma_f32 v12, -v10, v11, 1.0\nv_fma_f32 v11, v12, v11, v11')
    for d in range(16):
        a(f'v_lshlrev_b32 v12, 16, v{X+d}\nv_and_b32 v13, 0xffff0000, v{X+d}\nv_sub_f32 v12, v12, v8\nv_sub_f32 v13, v13, v8')
        a(f'v_cvt_pk_bf16_f32 v12, v12, v13\nv_and_b32 v13, 0xffff0000, v12\nv_lshlrev_b32 v12, 16, v12')
        a(f'v_mul_f32 v12, v12, v11\nv_mul_f32 v13, v13, v11\nv_cvt_pk_bf16_f32 v{X+d}, v12, v13')
    def tile(Lb, Xr, first):
        for u in range(4): perms_pair(Lb+8*u, Lb+8*u+4, TB, u)
        for j in range(8):
            c = '0' if first else f'v[{D+4*j}:{D+4*j+3}]'
            a(f'v_mfma_f32_16x16x32_bf16 v[{D+4*j}:{D+4*j+3}], v[{Xr}:{Xr+3}], v[{TB+4*j}:{TB+4*j+3}], {c}')
    a('s_waitcnt vmcnt(0)')
    for T in range(3): tile(L+32*T, X+4*T, T == 0)
    a('s_cmp_eq_u32 s63, 3\ns_cbranch_scc1 L_t3done')
    tile(L+96, X+12, False)
    a('L_t3done:\ns_nop 7')
    fold_cols(D, 16)
    a('v_lshlrev_b32 v8, 1, v3\nv_and_b32 v9, 8, v1\nv_lshl_add_u32 v8, v9, 1, v8')
    a(f'v_mov_b32 v9, {OOB}\nv_cmp_gt_u32 vcc, 16, v1\nv_cndmask_b32 v8, v9, v8, vcc')
    stamp(2)
    a('v_lshlrev_b32 v10, 2, v1')
    a('L_clr_poll:')
    a('buffer_load_dword v11, v10, s[48:51], 0 offen sc1\ns_waitcnt vmcnt(0)\nv_cmp_ne_u32 vcc, 4, v11')
    retry('L_clr_poll', 'L_clr_ok', sleep)
    a('buffer_store_dwordx4 v[16:19], v8, s[28:31], s58 offen sc1')
    stamp(3)
    a('s_cmp_eq_u32 s3, 1\ns_cbranch_scc1 L_hg')
    a('s_cmp_eq_u32 s3, 2\ns_cbranch_scc1 L_WB1')
    a('s_lshr_b32 s52, s2, 6\ns_lshl_b32 s52, s52, 12\nv_lshlrev_b32 v10, 4, v1')
    for p in range(1, 5): a(f's_add_u32 s{52+p}, s52, {p*16384}')
    a('L_q_poll:')
    for p in range(5):
        for n in range(4):
            r = L + 16*p + 4*n
            a(f'buffer_load_dwordx4 v[{r}:{r+3}], v10, s[28:31], s{52+p} offen offset:{1024*n} sc1')
    a('s_waitcnt vmcnt(0)')
    sentinel_max(range(L, L+80), 11)
    a('v_cmp_eq_u32 vcc, -1, v11')
    retry('L_q_poll', 'L_q_ok', sleep)
    for k in range(16):
        a(f'v_add_f32 v{L+k}, v{L+k}, v{L+16+k}\nv_add_f32 v{L+32+k}, v{L+32+k}, v{L+48+k}')
        a(f'v_add_f32 v{L+k}, v{L+k}, v{L+64+k}\nv_add_f32 v{L+k}, v{L+k}, v{L+32+k}')
    a(f'v_lshrrev_b32 v11, 5, v1\nv_mul_u32_u24 v11, 272, v11\nv_and_b32 v12, 31, v1\nv_lshl_add_u32 v11, v12, 3, v11\nv_add_u32 v11, {L_Q}, v11')
    for n in range(4):
        a(f'v_cvt_pk_bf16_f32 v{20+2*n}, v{L+4*n}, v{L+4*n+1}\nv_cvt_pk_bf16_f32 v{21+2*n}, v{L+4*n+2}, v{L+4*n+3}')
        a(f'ds_write_b64 v11, v[{20+2*n}:{21+2*n}] offset:{544*n}')
    a('s_branch L_WB1')
    a('L_hg:')
    a('s_lshr_b32 s52, s2, 2\ns_mul_i32 s52, s52, 224')
    a('v_and_b32 v11, 7, v1\nv_min_u32 v12, 6, v11\nv_mul_u32_u24 v10, 7, v2\nv_add_lshl_u32 v10, v10, v12, 2')
    a(f's_add_u32 s52, s52, {GP}')
    for p in range(1, 8): a(f's_add_u32 s{52+p}, s52, {p*14336}')
    a('L_h_poll:')
    for p in range(8): a(f'buffer_load_dword v{20+p}, v10, s[28:31], s{52+p} offen sc1')
    a('s_waitcnt vmcnt(0)')
    sentinel_max(range(20, 28), 12)
    a('v_cmp_eq_u32 vcc, -1, v12')
    retry('L_h_poll', 'L_h_ok', sleep)
    a('v_add_f32 v20, v20, v21\nv_add_f32 v22, v22, v23\nv_add_f32 v24, v24, v25\nv_add_f32 v26, v26, v27\nv_add_f32 v20, v20, v22\nv_add_f32 v24, v24, v26')
    rbf(20); rbf(24); silu(20, 21); rbf(20)
    a('v_mul_f32 v20, v20, v24\nv_cvt_pk_bf16_f32 v20, v20, v20')
    a('v_cmp_ne_u32 vcc, 7, v11\nv_cndmask_b32 v20, 0, v20, vcc')
    a(f'v_lshlrev_b32 v10, 1, v1\nv_add_u32 v10, {L_H}, v10\nds_write_b16 v10, v20')
    a('s_branch L_WB1')
    a('L_W3:')
    a('v_lshlrev_b32 v10, 4, v1\nv_mov_b32 v16, -1\nv_mov_b32 v17, -1\nv_mov_b32 v18, -1\nv_mov_b32 v19, -1')
    a('s_mul_i32 s52, s2, 7168\ns_add_u32 s53, s52, 4096')
    a('s_and_b32 s54, s2, 63\ns_lshl_b32 s54, s54, 2')
    a(f'v_mov_b32 v11, {OOB}\nv_mov_b32 v12, 0\nv_cmp_eq_u32 vcc, 0, v1\nv_cndmask_b32 v11, v11, v12, vcc\nv_mov_b32 v12, 1')
    a('s_waitcnt lgkmcnt(0)')
    srd(28, 26, WSEND); srd(48, 24, 256)
    for k in range(7):
        a(f'buffer_store_dwordx4 v[16:19], v10, s[28:31], s{52 + (k >> 2)} offen offset:{1024*(k & 3)} sc1')
    a('s_waitcnt vmcnt(0)')
    stamp(1)
    a('buffer_atomic_add v12, v11, s[48:51], s54 offen sc1')
    if stamps: a('s_waitcnt vmcnt(0)'); stamp(2)
    a('s_barrier')
    a('L_WB1:')
    srd(36, 12, 4096*2048); srd(40, 20, 3584*2048)
    a('s_lshr_b32 s52, s2, 2\ns_and_b32 s53, s2, 3\ns_lshl_b32 s53, s53, 2\ns_add_u32 s53, s53, s3')
    a(f's_lshl_b32 s54, s53, 7\ns_mul_i32 s55, s52, {56*2048}\ns_add_u32 s55, s55, s54')
    a('s_lshl_b32 s56, s52, 17\ns_add_u32 s56, s56, s54')
    a(f's_lshl_b32 s57, s53, 14\ns_lshl_b32 s58, s52, 7\ns_add_u32 s57, s57, s58\ns_add_u32 s58, s57, {FP}\ns_add_u32 s57, s57, {SP}')
    a(f'v_mul_u32_u24 v6, {7*2048}, v2\nv_add_u32 v6, v6, v3\nv_lshl_add_u32 v7, v2, 14, v3')
    a('v_and_b32 v8, 3, v1\nv_lshlrev_b32 v8, 5, v8\nv_and_b32 v9, 8, v1\nv_lshl_add_u32 v8, v9, 1, v8\nv_and_b32 v9, 4, v1\nv_lshl_add_u32 v8, v9, 11, v8')
    a(f'v_mov_b32 v9, {OOB}\nv_cmp_gt_u32 vcc, 16, v1\nv_cndmask_b32 v8, v9, v8, vcc')
    a(f'v_add_u32 v4, {L_H}, v4')
    for k in range(4): a(f'v_mov_b32 v{L+28+k}, 0')
    a('s_waitcnt vmcnt(0) lgkmcnt(0)')
    stamp(4)
    a('s_barrier')
    a(f'ds_read_b128 v[{X}:{X+3}], v4')
    a('s_barrier')
    a.vm_reset()
    for i in range(7):
        a.vm_window(wT)
        a(f'buffer_load_dwordx4 v[{L+4*i}:{L+4*i+3}], v6, s[40:43], s55 offen offset:{2048*(i & 1)}{P}', tag=('d', i))
        if i & 1: a('s_add_u32 s55, s55, 4096')
        if i == min(wT, 7) - 1: a('s_barrier')
    for i in range(8):
        a.vm_window(wT)
        a(f'buffer_load_dwordx4 v[{L+32+4*i}:{L+32+4*i+3}], v7, s[36:39], s56 offen offset:{2048*(i & 1)}{P}', tag=('o', i))
        if i & 1: a('s_add_u32 s56, s56, 4096')
    a.vm_wait(('d', 6))
    a('s_waitcnt lgkmcnt(0)')
    tile(L, X, True)
    fold_cols(D, 16)
    a('buffer_store_dwordx4 v[16:19], v8, s[28:31], s58 offen sc1', tag='fp')
    for u in range(4):
        a.vm_wait(('o', 2*u+1))
        perms_pair(L+32+8*u, L+32+8*u+4, TB, u)
    stamp(5)
    a('s_barrier')
    a(f'ds_read_b128 v[{X}:{X+3}], v4 offset:{L_O16-L_H}\ns_waitcnt lgkmcnt(0)')
    for j in (0, 4, 1, 5, 2, 6, 3, 7):
        a(f'v_mfma_f32_16x16x32_bf16 v[{D+4*j}:{D+4*j+3}], v[{X}:{X+3}], v[{TB+4*j}:{TB+4*j+3}], 0')
    fold_cols(D, 20)
    a('buffer_store_dwordx4 v[20:23], v8, s[28:31], s57 offen sc1')
    stamp(6)
    finish('W')

    a('L_A:')
    V, TB, PO, O, S, PP, QL, QH = 128, 96, 64, 48, 32, 24, 224, 240
    a('s_sub_u32 s63, s3, 4')
    a('s_lshr_b32 s52, s2, 6\ns_and_b32 s53, s2, 63')
    a('s_lshl_b32 s54, s52, 23\ns_lshl_b32 s55, s53, 2\ns_add_u32 s55, s55, s63\ns_lshl_b32 s55, s55, 13\ns_add_u32 s54, s54, s55')
    a('s_lshl_b32 s55, s63, 15')
    a('v_lshrrev_b32 v2, 4, v1\nv_and_b32 v3, 15, v1')
    a('v_lshlrev_b32 v4, 2, v2\nv_xor_b32 v4, v4, v3')
    for k in range(4):
        a(f'v_xor_b32 v{5+k}, {k}, v4\nv_lshlrev_b32 v{5+k}, 4, v{5+k}\nv_lshl_add_u32 v{5+k}, v2, 8, v{5+k}')
    a('v_lshlrev_b32 v9, 4, v1')
    a('v_and_b32 v14, 3, v3\nv_lshlrev_b32 v14, 2, v14\nv_lshrrev_b32 v15, 2, v3\nv_add_u32 v14, v14, v15\nv_lshlrev_b32 v14, 8, v14\nv_add_u32 v14, s55, v14')
    a('v_xor_b32 v15, v2, v3')
    for s in range(4):
        a(f'v_xor_b32 v{10+s}, {4*s}, v15\nv_lshl_add_u32 v{10+s}, v{10+s}, 4, v14')
    a(f'v_and_b32 v18, 7, v1\nv_mul_u32_u24 v14, 272, v18\nv_lshl_add_u32 v14, v2, 4, v14\nv_add_u32 v14, {L_Q}, v14')
    a('v_cmp_gt_u32 vcc, 8, v3\nv_cndmask_b32 v15, 0, -1, vcc\nv_not_b32 v16, v15')
    a(f'v_lshlrev_b32 v17, 3, v18\nv_add_u32 v17, {L_MLW}, v17')
    a('s_waitcnt lgkmcnt(0)')
    srd(32, 6, 32*MB); srd(36, 8, 32*MB); srd(28, 26, WSEND); srd(40, 22, 2048); srd(44, 4, 2048)
    a('s_barrier')
    stamp(1)
    a.vm_reset()
    for i in range(32):
        if i % 4 == 0:
            a(f's_add_u32 s56, s54, {(i >> 3)*2*MB + (i & 4)*1024}\ns_add_u32 m0, s55, {i*1024}')
        a.vm_window(wA)
        a(f'buffer_load_dwordx4 v{5+(i & 3)}, s[32:35], s56 offen offset:{1024*(i & 3)}{P} lds', tag=('k', i))
    vn = [0]
    def vload():
        i = vn[0]; vn[0] += 1
        if i % 4 == 0: a(f's_add_u32 s56, s54, {(i >> 3)*2*MB + (i & 4)*1024}')
        a.vm_window(wA)
        a(f'buffer_load_dwordx4 v[{V+4*i}:{V+4*i+3}], v9, s[36:39], s56 offen offset:{1024*(i & 3)}{P}', tag=('v', i))
    for i in range(nB1): vload()
    a.vm_wait(('k', 31))
    stamp(2)
    a('s_barrier')
    stamp(3)
    for s in range(4): a(f'ds_read_b128 v[{QL+4*s}:{QL+4*s+3}], v14 offset:{64*s}')
    units = [(p, hh, ts) for p in range(2) for hh in range(2) for ts in range(2)]
    def kreads(k):
        p, hh, ts = units[k]
        for s in range(4):
            r = TB + 16*(k & 1) + 4*s
            a(f'ds_read_b128 v[{r}:{r+3}], v{10+s} offset:{(2*p+ts)*8192 + hh*4096}')
    kreads(0); kreads(1)
    a('s_waitcnt lgkmcnt(8)')
    for k in range(16): a(f'v_and_b32 v{QH+k}, v16, v{QL+k}\nv_and_b32 v{QL+k}, v15, v{QL+k}')
    for k in range(8):
        p, hh, ts = units[k]
        a(f's_waitcnt lgkmcnt({4 if k < 7 else 0})')
        d = S + 8*p + 4*hh
        for s in range(4):
            r = TB + 16*(k & 1) + 4*s; q = (QH if ts else QL) + 4*s
            c = '0' if (ts == 0 and s == 0) else f'v[{d}:{d+3}]'
            a(f'v_mfma_f32_16x16x32_bf16 v[{d}:{d+3}], v[{r}:{r+3}], v[{q}:{q+3}], {c}')
        if k + 2 < 8: kreads(k+2)
        if k in (1, 5): vload()
    a(f's_mov_b32 s57, {SCALE}\ns_mov_b32 s58, {LOG2E}')
    for k in range(0, 16, 2):
        r = S + k
        a(f'v_cvt_pk_bf16_f32 v{r}, v{r}, v{r+1}\nv_and_b32 v{r+1}, 0xffff0000, v{r}\nv_lshlrev_b32 v{r}, 16, v{r}')
        a(f'v_mul_f32 v{r}, s57, v{r}\nv_mul_f32 v{r+1}, s57, v{r+1}')
        a(f'v_cvt_pk_bf16_f32 v{r}, v{r}, v{r+1}\nv_and_b32 v{r+1}, 0xffff0000, v{r}\nv_lshlrev_b32 v{r}, 16, v{r}')
    vload()
    a(f'v_max3_f32 v18, v{S}, v{S+1}, v{S+2}')
    for k in range(3, 15, 2): a(f'v_max3_f32 v18, v18, v{S+k}, v{S+k+1}')
    a(f'v_max_f32 v18, v18, v{S+15}')
    a('v_max_f32_dpp v18, v18, v18 row_ror:8 row_mask:0xf bank_mask:0xf')
    allred_xrow('v_max_f32', 18, 20)
    for k in range(16): a(f'v_sub_f32 v{S+k}, v{S+k}, v18\nv_mul_f32 v{S+k}, s58, v{S+k}')
    for k in range(16): a(f'v_exp_f32 v{S+k}, v{S+k}')
    vload()
    a(f'v_add_f32 v19, v{S}, v{S+1}')
    for k in range(2, 16): a(f'v_add_f32 v19, v19, v{S+k}')
    a('v_add_f32_dpp v19, v19, v19 row_ror:8 row_mask:0xf bank_mask:0xf')
    allred_xrow('v_add_f32', 19, 20)
    a('s_lshl_b32 s59, s63, 6\nv_add_u32 v20, s59, v17\nds_write_b64 v20, v[18:19]')
    for k in range(8): a(f'v_cvt_pk_bf16_f32 v{PP+k}, v{S+2*k}, v{S+2*k+1}')
    for p in range(2):
        for k in range(4):
            src = PP + 4*p + k
            a(f'v_and_b32 v{PO+16*p+k}, v15, v{src}')
            a(f'v_mov_b32_dpp v{PO+16*p+4+k}, v{src} row_shr:8 row_mask:0xf bank_mask:0xf bound_ctrl:1')
            a(f'v_mov_b32_dpp v{PO+16*p+8+k}, v{src} row_shl:8 row_mask:0xf bank_mask:0xf bound_ctrl:1')
            a(f'v_and_b32 v{PO+16*p+12+k}, v16, v{src}')
    assert vn[0] <= 24
    done = [0]
    def pv_pair():
        pr = done[0]; done[0] += 1
        T, u = pr >> 2, pr & 3
        perms_pair(V+8*pr, V+8*pr+4, TB, u)
        if u == 3:
            for half in range(2):
                for q in range(4):
                    c = '0' if (T == 0 and half == 0) else f'v[{O+4*q}:{O+4*q+3}]'
                    j = q + 4*half; b = PO + 8*T + 4*half
                    a(f'v_mfma_f32_16x16x32_bf16 v[{O+4*q}:{O+4*q+3}], v[{TB+4*j}:{TB+4*j+3}], v[{b}:{b+3}], {c}')
    def after_b2():
        a('s_waitcnt lgkmcnt(0)')
        a('s_barrier')
        stamp(4)
        for w in range(4): a(f'ds_read_b64 v[{S+2*w}:{S+2*w+1}], v17 offset:{64*w}')
        a(f's_lshl_b32 s59, s53, 3\ns_lshl_b32 s57, s52, 12\ns_add_u32 s59, s59, s57\ns_add_u32 s59, s59, {ML}')
        a(f'v_lshrrev_b32 v21, 1, v1\nv_lshlrev_b32 v22, 9, v1\nv_mov_b32 v23, {OOB}\nv_cmp_eq_u32 vcc, s63, v21\nv_cndmask_b32 v22, v23, v22, vcc')
        a('s_waitcnt lgkmcnt(0)')
        a(f'v_max3_f32 v20, v{S}, v{S+2}, v{S+4}\nv_max_f32 v20, v20, v{S+6}')
        for w in range(4): a(f'v_sub_f32 v{S+2*w}, v{S+2*w}, v20\nv_mul_f32 v{S+2*w}, s58, v{S+2*w}\nv_exp_f32 v{S+2*w}, v{S+2*w}')
        a('v_sub_f32 v18, v18, v20\nv_mul_f32 v18, s58, v18\nv_exp_f32 v18, v18')
        a(f'v_mul_f32 v21, v{S}, v{S+1}')
        for w in range(1, 4): a(f'v_fmac_f32 v21, v{S+2*w}, v{S+2*w+1}')
        a('buffer_store_dwordx2 v[20:21], v22, s[28:31], s59 offen sc1', tag='ml')
    while vn[0] < 32:
        if vn[0] == 32 - early2: after_b2()
        vload()
        landed = vn[0] - wA
        k = 0
        while 2*done[0] + 2 <= landed and k < 2:
            pv_pair(); k += 1
    if early2 == 0: after_b2()
    a(f'v_and_b32 v5, 7, v1\nv_mul_u32_u24 v5, 528, v5\nv_lshl_add_u32 v5, v2, 7, v5\nv_and_b32 v6, 8, v1\nv_lshl_add_u32 v5, v6, 3, v5')
    a(f's_mul_i32 s57, s63, 4224\ns_add_u32 s57, s57, {L_OR}\nv_add_u32 v5, s57, v5')
    a(f'v_lshrrev_b32 v6, 5, v1\nv_mul_u32_u24 v6, 528, v6\nv_and_b32 v7, 31, v1\nv_lshl_add_u32 v6, v7, 4, v6')
    a(f's_mul_i32 s57, s63, 1056\ns_add_u32 s57, s57, {L_OR}\nv_add_u32 v6, s57, v6')
    a('v_lshlrev_b32 v7, 14, v2\nv_lshl_add_u32 v7, v3, 4, v7')
    a(f's_lshl_b32 s56, s52, 18\ns_lshl_b32 s57, s63, 16\ns_add_u32 s56, s56, s57\ns_lshl_b32 s57, s53, 8\ns_add_u32 s56, s56, s57\ns_add_u32 s56, s56, {OP}')
    a('v_lshrrev_b32 v10, 2, v1\nv_and_b32 v11, 3, v1\nv_lshlrev_b32 v8, 8, v10\nv_lshl_add_u32 v8, v11, 4, v8')
    a('v_lshlrev_b32 v9, 7, v11\nv_lshl_add_u32 v9, v10, 3, v9')
    a(f's_lshr_b32 s48, s2, 2\ns_lshl_b32 s48, s48, 14\ns_lshl_b32 s57, s63, 6\ns_add_u32 s48, s48, s57\ns_add_u32 s48, s48, {OP}')
    a('s_add_u32 s49, s48, 4096\ns_add_u32 s50, s48, 8192\ns_add_u32 s51, s48, 12288')
    a(f's_lshr_b32 s55, s2, 3\ns_lshl_b32 s55, s55, 9\ns_add_u32 s55, s55, {ML}')
    a(f's_lshr_b32 s57, s63, 1\ns_lshl_b32 s57, s57, 6\ns_and_b32 s59, s63, 1\ns_lshl_b32 s59, s59, 3\ns_add_u32 s57, s57, s59\ns_add_u32 s57, s57, {L_O16}')
    a('v_lshlrev_b32 v10, 4, v2\nv_lshl_add_u32 v10, v11, 1, v10\nv_add_u32 v10, s57, v10')
    while done[0] < 16:
        a.vm_wait(('v', 2*done[0]+1))
        pv_pair()
    stamp(5)
    for q in range(4):
        for k in range(4): a(f'v_mul_f32 v{O+4*q+k}, v18, v{O+4*q+k}')
        a(f'ds_write_b128 v5, v[{O+4*q}:{O+4*q+3}] offset:{16*q}')
    a('s_waitcnt lgkmcnt(0)')
    a('s_barrier')
    for w in range(4): a(f'ds_read_b128 v[{S+4*w}:{S+4*w+3}], v6 offset:{4224*w}')
    a('s_waitcnt lgkmcnt(2)')
    for k in range(4): a(f'v_add_f32 v{S+k}, v{S+k}, v{S+4+k}')
    a('s_waitcnt lgkmcnt(0)')
    for k in range(4): a(f'v_add_f32 v{S+8+k}, v{S+8+k}, v{S+12+k}')
    for k in range(4): a(f'v_add_f32 v{S+k}, v{S+k}, v{S+8+k}')
    a(f'buffer_store_dwordx4 v[{S}:{S+3}], v7, s[28:31], s56 offen sc1')
    stamp(6)
    G = 64
    def oloads():
        for n in range(4): a(f'buffer_load_dwordx4 v[{G+4*n}:{G+4*n+3}], v8, s[28:31], s{48+n} offen sc1')
    a('L_ml_poll:')
    a('buffer_load_dwordx2 v[20:21], v9, s[28:31], s55 offen sc1')
    oloads()
    a('s_waitcnt vmcnt(4)')
    a('v_max_u32 v22, v20, v21\nv_cmp_eq_u32 vcc, -1, v22')
    a('s_cbranch_vccz L_ml_ok\ns_waitcnt vmcnt(0)')
    a('s_sub_u32 s62, s62, 1\ns_cmp_gt_i32 s62, 0\ns_cbranch_scc1 L_ml_poll')
    a('L_ml_ok:')
    a('v_mov_b32 v22, v20')
    allred_row('v_max_f32', 22); allred_xrow('v_max_f32', 22, 23)
    a('v_sub_f32 v20, v20, v22\nv_mul_f32 v20, s58, v20\nv_exp_f32 v20, v20\nv_mul_f32 v21, v20, v21')
    allred_row('v_add_f32', 21); allred_xrow('v_add_f32', 21, 23)
    a('v_rcp_f32 v21, v21\nv_mul_f32 v20, v20, v21')
    a('L_o_poll:')
    a('s_waitcnt vmcnt(0)')
    sentinel_max(range(G, G+16), 22)
    a('v_cmp_eq_u32 vcc, -1, v22')
    a('s_cbranch_vccz L_o_ok')
    oloads()
    a('s_sub_u32 s62, s62, 1\ns_cmp_gt_i32 s62, 0\ns_cbranch_scc1 L_o_poll\ns_waitcnt vmcnt(0)')
    a('L_o_ok:')
    stamp(8)
    for k in range(4): a(f'v_mul_f32_dpp v{24+k}, v20, v{G+k} quad_perm:[0,0,0,0] row_mask:0xf bank_mask:0xf')
    for n in range(1, 4):
        for k in range(4): a(f'v_fmac_f32_dpp v{24+k}, v20, v{G+4*n+k} quad_perm:[{n},{n},{n},{n}] row_mask:0xf bank_mask:0xf')
    def red4(r):
        a(f'v_permlane32_swap_b32 v{r}, v{r+2}\nv_permlane32_swap_b32 v{r+1}, v{r+3}')
        a(f'v_add_f32 v{r}, v{r}, v{r+2}\nv_add_f32 v{r+1}, v{r+1}, v{r+3}')
        a(f'v_permlane16_swap_b32 v{r}, v{r+1}\nv_add_f32 v{r}, v{r}, v{r+1}')
    red4(24)
    a('v_add_f32_dpp v24, v24, v24 row_ror:8 row_mask:0xf bank_mask:0xf\nv_add_f32_dpp v24, v24, v24 row_ror:4 row_mask:0xf bank_mask:0xf')
    a('v_cvt_pk_bf16_f32 v24, v24, v24\nds_write_b16 v10, v24\ns_waitcnt lgkmcnt(0)')
    a('s_barrier')
    a('s_cmp_lg_u32 s63, 0\ns_cbranch_scc1 L_Aend')
    a('s_and_b32 s52, s2, 7\ns_lshr_b32 s53, s2, 3')
    a('s_lshl_b32 s54, s52, 5\ns_add_u32 s54, s54, s53\ns_lshl_b32 s55, s54, 3')
    a(f's_lshr_b32 s56, s54, 3\ns_lshl_b32 s56, s56, 13\ns_and_b32 s57, s54, 7\ns_lshl_b32 s57, s57, 4\ns_add_u32 s56, s56, s57\ns_add_u32 s57, s56, {FP}\ns_add_u32 s56, s56, {SP}')
    a('v_lshlrev_b32 v5, 7, v1\nv_lshlrev_b32 v6, 1, v2')
    a('buffer_load_ushort v8, v6, s[44:47], s55 offen')
    a(f'v_mov_b32 v7, {OOB}\nv_cmp_eq_u32 vcc, 0, v3\nv_cndmask_b32 v7, v7, v6, vcc')
    a('L_f_poll:')
    a('buffer_load_dwordx4 v[24:27], v5, s[28:31], s57 offen sc1\nbuffer_load_dwordx4 v[28:31], v5, s[28:31], s56 offen sc1')
    a('s_waitcnt vmcnt(1)')
    sentinel_max(range(24, 28), 22)
    a('v_cmp_eq_u32 vcc, -1, v22')
    a('s_cbranch_vccz L_f_ok\ns_waitcnt vmcnt(0)')
    a('s_sub_u32 s62, s62, 1\ns_cmp_gt_i32 s62, 0\ns_cbranch_scc1 L_f_poll')
    a('L_f_ok:')
    red4(24); allred_row('v_add_f32', 24)
    rbf(24); silu(24, 25); rbf(24)
    a('v_lshlrev_b32 v8, 16, v8')
    a('L_s_poll:')
    a('s_waitcnt vmcnt(0)')
    sentinel_max(range(28, 32), 22)
    a('v_cmp_eq_u32 vcc, -1, v22')
    a('s_cbranch_vccz L_s_ok')
    a('buffer_load_dwordx4 v[28:31], v5, s[28:31], s56 offen sc1')
    a('s_sub_u32 s62, s62, 1\ns_cmp_gt_i32 s62, 0\ns_cbranch_scc1 L_s_poll\ns_waitcnt vmcnt(0)')
    a('L_s_ok:')
    stamp(9)
    red4(28); allred_row('v_add_f32', 28)
    rbf(28)
    a('v_mul_f32 v28, v28, v24'); rbf(28)
    a('v_add_f32 v28, v28, v8\nv_cvt_pk_bf16_f32 v28, v28, v28')
    a('buffer_store_short v28, v7, s[40:43], s55 offen')
    a('L_Aend:')
    finish('A')
    a('L_exit:\ns_endpgm')
    a.raw(f'''.section .rodata,"a"
.p2align 6
.amdhsa_kernel {KNAME}
  .amdhsa_next_free_vgpr 256
  .amdhsa_next_free_sgpr 96
  .amdhsa_accum_offset 256
  .amdhsa_group_segment_fixed_size 0
  .amdhsa_kernarg_size 96
  .amdhsa_user_sgpr_count 2
  .amdhsa_user_sgpr_kernarg_segment_ptr 1
  .amdhsa_system_sgpr_workgroup_id_x 1
  .amdhsa_float_denorm_mode_32 3
.end_amdhsa_kernel''')
    return a.text()

if __name__ == '__main__':
    out = sys.argv[1]
    kw = eval('dict(' + (sys.argv[2] if len(sys.argv) > 2 else '') + ')')
    open(out, 'w').write(gen(**kw))
```

```python
import sys
sys.path.insert(0, 'work')
from asmlib import Asm

KNAME = 'recurrent_scan__gqa_block_cached__swiglu_ffn__decode_kernel'
MB = 1 << 20
QP, GP, UP = 1310720, 0, 57344
ML, QF = 196608, 196608 + 16384
SP, FP, OP, WSEND = 262144, 524288, 786432, 1441792
STAMPS = 8 * MB
L_K, L_OR, L_X, L_Q = 0, 131072, 147968, 150016
L_MLW, L_MG, L_H, L_O16, L_F, L_END = 152192, 152448, 152512, 152640, 152768, 153088
OOB = 0x40000000
LOG2E = 0x3fb8aa3b
SCALE = 0x3db504f3
SPIN = 400000

HEADER = open('recurrent_scan__gqa_block_cached__swiglu_ffn__decode.s.ref').read().split('; Override')[0]

def gen(pol='nt', sA=((0,1),(2,3),(18,6)), sQ=((0,16),), sG=((0,2),(4,6)), wT=6, nB1=18, early2=0, nF1=10, nF1b=28, shu=3, f3at=14, pref=True,
        stamps=False, sleep=16):
    a = Asm()
    P = {'nt': ' nt', 'plain': ''}[pol]
    def sched(sc, i): return [w for (st, w) in sc if st <= i][-1]
    def stamp(k):
        if stamps: a(f's_memrealtime s[{64+2*k}:{65+2*k}]')
    def srd(d, p, size):
        a(f's_mov_b32 s{d}, s{p}\ns_mov_b32 s{d+1}, s{p+1}\ns_mov_b32 s{d+2}, {size}\ns_mov_b32 s{d+3}, 0x20000')
    def allred_row(op, v, steps=(8, 4, 2, 1)):
        for r in steps: a(f'{op}_dpp v{v}, v{v}, v{v} row_ror:{r} row_mask:0xf bank_mask:0xf')
    def allred_xrow(op, v, t):
        a(f'v_mov_b32 v{t}, v{v}\nv_permlane16_swap_b32 v{t}, v{v}\n{op} v{v}, v{v}, v{t}')
        a(f'v_mov_b32 v{t}, v{v}\nv_permlane32_swap_b32 v{t}, v{v}\n{op} v{v}, v{v}, v{t}')
    def rbf(v):
        a(f'v_cvt_pk_bf16_f32 v{v}, v{v}, v{v}\nv_lshlrev_b32 v{v}, 16, v{v}')
    def perms_pair(La, Lb, TB, u):
        for d in range(4):
            a(f'v_perm_b32 v{TB+4*(2*d)+u}, v{Lb+d}, v{La+d}, s60')
            a(f'v_perm_b32 v{TB+4*(2*d+1)+u}, v{Lb+d}, v{La+d}, s61')
    def umax(regs, t):
        regs = list(regs)
        if len(regs) == 2:
            a(f'v_max_u32 v{t}, v{regs[0]}, v{regs[1]}'); return
        a(f'v_max3_u32 v{t}, v{regs[0]}, v{regs[1]}, v{regs[2]}')
        regs = regs[3:]
        while len(regs) >= 2:
            a(f'v_max3_u32 v{t}, v{t}, v{regs[0]}, v{regs[1]}'); regs = regs[2:]
        if regs: a(f'v_max_u32 v{t}, v{t}, v{regs[0]}')
    def again(lbl): a(f's_sub_u32 s62, s62, 1\ns_cmp_gt_i32 s62, 0\ns_cbranch_scc1 {lbl}')
    def retry(lbl_loop, lbl_done, slp):
        a(f's_cbranch_vccz {lbl_done}')
        if slp: a(f's_sleep {slp}')
        again(lbl_loop)
        a(f'{lbl_done}:')
    def gather(name, loads, tmp, slp, first=True, spec=None):
        if first:
            for t, _, _ in loads: a(t)
        a(f'L_{name}:\ns_waitcnt vmcnt(0)')
        if spec: spec()
        n = len(loads)
        for k, (_, r, c) in enumerate(loads):
            if c > 1: umax(range(r, r+c), tmp+k)
        tk = [tmp+k if c > 1 else r for k, (_, r, c) in enumerate(loads)]
        if n > 1:
            umax(tk, tmp+n); a(f'v_cmp_eq_u32 vcc, -1, v{tmp+n}')
        else: a(f'v_cmp_eq_u32 vcc, -1, v{tk[0]}')
        a(f's_cbranch_vccz L_{name}_ok')
        if slp: a(f's_sleep {slp}')
        for k, (t, _, _) in enumerate(loads):
            if n > 1:
                a(f'v_cmp_eq_u32 vcc, -1, v{tk[k]}\ns_cbranch_vccz L_{name}_s{k}')
            a(f's_mov_b64 exec, vcc\n{t}\ns_mov_b64 exec, -1')
            if n > 1: a(f'L_{name}_s{k}:')
        again(f'L_{name}')
        a(f's_waitcnt vmcnt(0)\nL_{name}_ok:')
    def ldswait(name, off, slp):
        base = L_F if off < 4096 else L_F - 65536
        a(f'v_mov_b32 v12, {base}\nL_{name}:')
        a(f'ds_read_b32 v11, v12 offset:{off}\ns_waitcnt lgkmcnt(0)\nv_cmp_eq_u32 vcc, -1, v11')
        retry(f'L_{name}', f'L_{name}_ok', slp)
    def ldsdata(name, reads, regs, t, slp):
        a(f'L_{name}:')
        for r in reads: a(r)
        a('s_waitcnt lgkmcnt(0)')
        umax(regs, t)
        a(f'v_cmp_eq_u32 vcc, -1, v{t}')
        retry(f'L_{name}', f'L_{name}_ok', slp)
    def silu(v, t):
        a(f'v_mul_f32 v{t}, 0xbfb8aa3b, v{v}\nv_exp_f32 v{t}, v{t}\nv_add_f32 v{t}, 1.0, v{t}\nv_rcp_f32 v{t}, v{t}\nv_mul_f32 v{v}, v{v}, v{t}')
    def fold_cols(D, o):
        for k in range(4):
            a(f'v_add_f32_dpp v{o+k}, v{D+4*k+1}, v{D+4*k} row_ror:8 row_mask:0xf bank_mask:0x3')
            a(f'v_add_f32_dpp v{o+((k+2)&3)}, v{D+4*(((k+2)&3)+4)}, v{D+4*(((k+2)&3)+4)+1} row_ror:8 row_mask:0xf bank_mask:0xc')
    def red4(r):
        a(f'v_permlane32_swap_b32 v{r}, v{r+2}\nv_permlane32_swap_b32 v{r+1}, v{r+3}')
        a(f'v_add_f32 v{r}, v{r}, v{r+2}\nv_add_f32 v{r+1}, v{r+1}, v{r+3}')
        a(f'v_permlane16_swap_b32 v{r}, v{r+1}\nv_add_f32 v{r}, v{r}, v{r+1}')
    def rb_of(d, t):
        a(f's_lshr_b32 {d}, s2, 5\ns_lshl_b32 {d}, {d}, 3\ns_and_b32 {t}, s2, 7\ns_add_u32 {d}, {d}, {t}')
    def finish():
        if stamps:
            stamp(7)
            a('s_waitcnt lgkmcnt(0)')
            a('s_lshl_b32 s52, s2, 3\ns_add_u32 s52, s52, s3\ns_lshl_b32 s52, s52, 7')
            a(f's_add_u32 s54, s26, {STAMPS}\ns_addc_u32 s55, s27, 0')
            a('v_mov_b32 v2, s52\ns_mov_b64 exec, 1')
            for k in range(6):
                a(f'v_mov_b32 v4, s{64+4*k}\nv_mov_b32 v5, s{65+4*k}\nv_mov_b32 v6, s{66+4*k}\nv_mov_b32 v7, s{67+4*k}')
                a(f'global_store_dwordx4 v2, v[4:7], s[54:55] offset:{16*k}\ns_nop 1')
        a('s_endpgm')

    a.raw(HEADER.rstrip())
    a.raw(f'; @launch grid=(256,1,1) block=(512,1,1) lds={L_END}')
    a.raw('.amdgcn_target "amdgcn-amd-amdhsa--gfx950"\n.text')
    a.raw(f'.globl {KNAME}\n.p2align 8\n.type {KNAME},@function\n{KNAME}:')
    if stamps:
        for k in range(64, 88, 2): a(f's_mov_b64 s[{k}:{k+1}], 0')
    stamp(0)
    a('s_cmp_ge_u32 s2, 256\ns_cbranch_scc1 L_exit')
    a('s_load_dwordx16 s[4:19], s[0:1], 0\ns_load_dwordx8 s[20:27], s[0:1], 64')
    a('v_lshrrev_b32 v2, 6, v0\nv_and_b32 v1, 63, v0\nv_readfirstlane_b32 s3, v2')
    if pref:
        a('s_cmp_lg_u32 s3, 7\ns_cbranch_scc1 L_nopf')
        a(f's_getpc_b64 s[56:57]\nL_pc:\ns_lshr_b32 s58, s2, 3\ns_mul_i32 s58, s58, 640\nv_and_b32 v2, 7, v1\nv_lshl_add_u32 v2, v2, 7, s58')
        a(f'v_min_u32 v2, L_exit-L_pc, v2\nglobal_load_dword v255, v2, s[56:57]')
        a('L_nopf:')
    a(f's_mov_b32 s60, 0x05040100\ns_mov_b32 s61, 0x07060302\ns_mov_b32 s62, {SPIN}')
    a('s_cmp_ge_u32 s3, 4\ns_cbranch_scc1 L_A')
    a('s_setprio 2')
    a('v_lshrrev_b32 v2, 3, v1')
    a('v_and_b32 v3, 7, v1\nv_lshlrev_b32 v3, 4, v3')
    a('s_and_b32 s55, s2, 3\ns_lshr_b32 s54, s2, 2')
    a('s_cmp_eq_u32 s3, 3\ns_cbranch_scc1 L_W3')
    X, D, TB, L = 48, 64, 96, 128
    def tile(Lb, Xr, first, waits=None):
        for u in range(4):
            if waits: a.vm_wait(waits(2*u+1))
            perms_pair(Lb+8*u, Lb+8*u+4, TB, u)
        if first: a('s_waitcnt lgkmcnt(0)')
        for j in range(8):
            c = '0' if first else f'v[{D+4*j}:{D+4*j+3}]'
            a(f'v_mfma_f32_16x16x32_bf16 v[{D+4*j}:{D+4*j+3}], v[{Xr}:{Xr+3}], v[{TB+4*j}:{TB+4*j+3}], {c}')
    def job(name, sc, pitch, tilerows, setup):
        a.vm_reset()
        for i in range(32):
            a.vm_window(sched(sc, i))
            a(f'buffer_load_dwordx4 v[{L+4*i}:{L+4*i+3}], v6, s[32:35], s52 offen{P}', tag=('j', i))
            if i < 31: a(f's_add_u32 s52, s52, {pitch*(tilerows-7) if i % 8 == 7 else pitch}')
            if i == 0: stamp(10)
            if i == sched(sc, 0) - 1:
                a('s_barrier')
                srd(28, 26, WSEND)
                setup()
        stamp(1)
        ldswait(name, 0, 2)
        for T in range(4): a(f'ds_read_b128 v[{X+4*T}:{X+4*T+3}], v7 offset:{2*tilerows*T}')
        for T in range(4):
            tile(L+32*T, X+4*T, T == 0, (lambda i, T=T: ('j', 8*T+i)) if 8*T+7 > 31 - sched(sc, 31) else None)
    a('s_cmp_eq_u32 s3, 0\ns_cbranch_scc1 L_q')
    a('s_cmp_ge_u32 s2, 224\ns_cbranch_scc1 L_nojob')
    a(f's_sub_u32 s59, s3, 1\ns_mul_i32 s58, s59, {shu}\ns_add_u32 s54, s54, s58')
    a('s_cmp_ge_u32 s54, 56\ns_cselect_b32 s58, 56, 0\ns_sub_u32 s54, s54, s58\ns_lshl_b32 s54, s54, 7')
    a(f's_mul_i32 s52, s55, {256*7168}\ns_add_u32 s52, s52, s54')
    a(f'v_mul_u32_u24 v6, {8*7168}, v2\nv_add_u32 v6, v6, v3')
    a(f's_mov_b32 s34, {1024*7168}\ns_mov_b32 s35, 0x20000')
    a('s_cmp_eq_u32 s3, 1\ns_waitcnt lgkmcnt(0)\ns_cselect_b32 s32, s16, s18\ns_cselect_b32 s33, s17, s19')
    def gu_setup():
        a(f's_mul_i32 s58, s55, 14336\ns_lshl_b32 s54, s54, 1\ns_add_u32 s58, s58, s54\ns_mul_i32 s59, s59, {UP-GP}\ns_add_u32 s58, s58, s59')
        assert GP == 0
        a('v_lshrrev_b32 v4, 4, v1\nv_lshlrev_b32 v4, 1, v4\nv_and_b32 v5, 1, v1\nv_add_u32 v4, v4, v5\nv_lshlrev_b32 v4, 4, v4')
        a(f's_lshl_b32 s55, s55, 9\ns_add_u32 s55, s55, {L_X}\nv_add_u32 v7, s55, v4')
        a('v_lshlrev_b32 v8, 1, v3\nv_and_b32 v9, 8, v1\nv_lshl_add_u32 v8, v9, 1, v8')
        a(f'v_mov_b32 v9, {OOB}\nv_cmp_gt_u32 vcc, 16, v1\nv_cndmask_b32 v8, v9, v8, vcc')
    job('f0g', sG, 7168, 64, gu_setup)
    fold_cols(D, 16)
    a('buffer_store_dwordx4 v[16:19], v8, s[28:31], s58 offen sc1')
    stamp(2)
    a('s_branch L_WB1')
    a('L_q:')
    a('s_and_b32 s55, s2, 7\ns_lshr_b32 s54, s2, 3\ns_lshl_b32 s52, s55, 20\ns_lshl_b32 s53, s54, 8\ns_add_u32 s52, s52, s53')
    a('v_lshrrev_b32 v4, 4, v1\nv_and_b32 v5, 15, v1\nv_lshlrev_b32 v6, 16, v4\nv_lshl_add_u32 v6, v5, 4, v6')
    a(f's_mov_b32 s34, {1024*8192}\ns_mov_b32 s35, 0x20000\ns_waitcnt lgkmcnt(0)\ns_mov_b32 s32, s10\ns_mov_b32 s33, s11')
    def q_setup():
        srd(48, 24, 256)
        a(f's_lshl_b32 s58, s55, 14\ns_lshl_b32 s53, s54, 9\ns_add_u32 s58, s58, s53\ns_add_u32 s58, s58, {QP}')
        a(f's_lshl_b32 s55, s55, 8\ns_add_u32 s55, s55, {L_X}\nv_lshlrev_b32 v7, 4, v4\nv_add_u32 v7, s55, v7')
        a('v_lshlrev_b32 v8, 5, v5\nv_lshl_add_u32 v8, v4, 4, v8')
        a(f'v_mov_b32 v9, {OOB}\nv_cmp_gt_u32 vcc, 32, v1\nv_cndmask_b32 v8, v9, v8, vcc')
    job('f0q', sQ, 8192, 32, q_setup)
    for k in range(4): a(f'v_mov_b32 v{16+k}, v{D+4*k}')
    for k in range(4): a(f'v_mov_b32_dpp v{16+k}, v{D+16+4*k} quad_perm:[0,1,2,3] row_mask:0x2 bank_mask:0xf')
    a('buffer_store_dwordx4 v[16:19], v8, s[28:31], s58 offen sc1')
    stamp(2)
    a('s_lshr_b32 s52, s2, 3\ns_xor_b32 s53, s52, s2\ns_and_b32 s63, s53, 7')
    ldswait('f1', 4, 2)
    a('v_lshlrev_b32 v10, 2, v1')
    a('L_clr_poll:')
    a('buffer_load_dword v11, v10, s[48:51], 0 offen sc1\ns_waitcnt vmcnt(0)\nv_cmp_gt_u32 vcc, 4, v11')
    retry('L_clr_poll', 'L_clr_ok', 2*sleep)
    stamp(3)
    a('s_cmp_lg_u32 s63, 0\ns_cbranch_scc1 L_qf0')
    a('v_lshrrev_b32 v10, 5, v1\nv_and_b32 v11, 31, v1\nv_lshlrev_b32 v10, 14, v10\nv_lshl_add_u32 v10, v11, 4, v10')
    a(f's_lshl_b32 s53, s52, 9\ns_add_u32 s53, s53, {QP}\ns_lshl_b32 s57, s52, 8\ns_add_u32 s57, s57, {QF}')
    for n in range(1, 4): a(f's_add_u32 s{53+n}, s53, {32768*n}')
    gather('qp', [(f'buffer_load_dwordx4 v[{L+4*n}:{L+4*n+3}], v10, s[28:31], s{53+n} offen sc1', L+4*n, 4) for n in range(4)], 20, 4)
    for k in range(4): a(f'v_add_f32 v{L+k}, v{L+k}, v{L+4+k}\nv_add_f32 v{L+8+k}, v{L+8+k}, v{L+12+k}')
    for k in range(4): a(f'v_add_f32 v{L+k}, v{L+k}, v{L+8+k}')
    for k in range(4): a(f'v_mov_b32 v{L+4+k}, v{L+k}')
    for k in range(4): a(f'v_permlane32_swap_b32 v{L+4+k}, v{L+k}')
    for k in range(4): a(f'v_add_f32 v{L+k}, v{L+k}, v{L+4+k}')
    a(f'v_cvt_pk_bf16_f32 v20, v{L}, v{L+1}\nv_cvt_pk_bf16_f32 v21, v{L+2}, v{L+3}')
    a(f'v_lshlrev_b32 v10, 3, v1\nv_mov_b32 v11, {OOB}\nv_cmp_gt_u32 vcc, 32, v1\nv_cndmask_b32 v10, v11, v10, vcc')
    a('buffer_store_dwordx2 v[20:21], v10, s[28:31], s57 offen sc1')
    stamp(8)
    a('L_qf0:')
    ldswait('f1b', 12, 2)
    a(f's_lshr_b32 s52, s2, 6\ns_lshl_b32 s52, s52, 11\ns_add_u32 s52, s52, {QF}\nv_lshlrev_b32 v10, 4, v1')
    gather('qf', [(f'buffer_load_dwordx4 v[{L+4*n}:{L+4*n+3}], v10, s[28:31], s52 offen offset:{1024*n} sc1', L+4*n, 4) for n in range(2)], 20, sleep//2)
    a(f'v_lshrrev_b32 v11, 4, v1\nv_add_lshl_u32 v11, v11, v1, 4\nv_add_u32 v11, {L_Q}, v11')
    for n in range(2): a(f'ds_write_b128 v11, v[{L+4*n}:{L+4*n+3}] offset:{1088*n}')
    a('s_branch L_WB1')
    a('L_nojob:')
    a('s_barrier')
    a('s_waitcnt lgkmcnt(0)')
    srd(28, 26, WSEND)
    a('s_branch L_WB1')
    a('L_W3:')
    XS, t = 40, 20
    a('v_lshlrev_b32 v7, 5, v1\nv_lshlrev_b32 v10, 4, v1')
    a(f'v_mov_b32 v13, {L_F}')
    a('v_mov_b32 v16, -1\nv_mov_b32 v17, -1\nv_mov_b32 v18, -1\nv_mov_b32 v19, -1')
    a(f'v_add_u32 v12, {L_Q}, v10')
    for k in range(3): a(f'ds_write_b128 v12, v[16:19] offset:{1024*k}')
    assert L_Q + 3072 == L_END
    a(f's_and_b32 s56, s2, 7\ns_lshl_b32 s56, s56, 14\ns_lshr_b32 s59, s2, 3\ns_lshl_b32 s59, s59, 9\ns_add_u32 s56, s56, s59\ns_add_u32 s56, s56, {QP}')
    a(f's_mul_i32 s55, s55, 14336\ns_cmp_ge_u32 s2, 224\ns_cselect_b32 s55, {OOB}, s55')
    a(f's_lshl_b32 s57, s54, 8\ns_add_u32 s57, s57, s55\ns_add_u32 s57, s57, {GP}')
    a(f's_add_u32 s54, s54, {shu}\ns_cmp_ge_u32 s54, 56\ns_cselect_b32 s59, 56, 0\ns_sub_u32 s54, s54, s59')
    a(f's_lshl_b32 s58, s54, 8\ns_add_u32 s58, s58, s55\ns_add_u32 s58, s58, {UP-256}')
    a(f's_lshl_b32 s59, s2, 10\ns_add_u32 s59, s59, {ML}\ns_cmp_ge_u32 s2, 24\ns_cselect_b32 s59, {OOB}, s59')
    a(f's_lshl_b32 s52, s2, 12\ns_add_u32 s52, s52, {SP}')
    a('v_mov_b32 v11, s58')
    for lim, sr in ((48, 57), (32, 56)):
        a(f'v_mov_b32 v12, s{sr}\nv_cmp_gt_u32 vcc, {lim}, v1\nv_cndmask_b32 v11, v11, v12, vcc')
    a('v_and_b32 v12, 31, v1\nv_lshl_add_u32 v11, v12, 4, v11\nv_add_u32 v14, s59, v10')
    a('s_waitcnt lgkmcnt(0)')
    srd(44, 4, 2048); srd(28, 26, WSEND)
    a(f'buffer_load_dwordx4 v[{XS}:{XS+3}], v7, s[44:47], 0 offen')
    a(f'buffer_load_dwordx4 v[{XS+4}:{XS+7}], v7, s[44:47], 0 offen offset:16')
    a('buffer_store_dwordx4 v[16:19], v11, s[28:31], 0 offen sc1')
    a('buffer_store_dwordx4 v[16:19], v14, s[28:31], 0 offen sc1')
    for k in range(4):
        a(f'buffer_store_dwordx4 v[16:19], v10, s[28:31], s52 offen offset:{1024*k} sc1')
    stamp(10)
    a('s_barrier')
    srd(48, 24, 256)
    a('s_waitcnt vmcnt(6)')
    for d in range(8):
        a(f'v_lshlrev_b32 v{t+2*d}, 16, v{XS+d}\nv_and_b32 v{t+2*d+1}, 0xffff0000, v{XS+d}')
    a(f'v_add_f32 v8, v{t}, v{t+1}')
    for k in range(2, 16): a(f'v_add_f32 v8, v8, v{t+k}')
    allred_row('v_add_f32', 8); allred_xrow('v_add_f32', 8, 9)
    a('v_mul_f32 v8, 0x3a800000, v8')
    a(f'v_sub_f32 v9, v{t}, v8\nv_mul_f32 v10, v9, v9')
    for k in range(1, 16): a(f'v_sub_f32 v9, v{t+k}, v8\nv_fmac_f32 v10, v9, v9')
    allred_row('v_add_f32', 10); allred_xrow('v_add_f32', 10, 9)
    a('v_mul_f32 v10, 0x3a800000, v10')
    rbf(8); rbf(10)
    a('v_add_f32 v10, 0x3727c5ac, v10'); rbf(10)
    a('v_sqrt_f32 v10, v10'); rbf(10)
    a('v_rcp_f32 v11, v10\nv_fma_f32 v12, -v10, v11, 1.0\nv_fma_f32 v11, v12, v11, v11')
    for d in range(8):
        r = t + 2*d
        a(f'v_sub_f32 v{r}, v{r}, v8\nv_sub_f32 v{r+1}, v{r+1}, v8')
        a(f'v_cvt_pk_bf16_f32 v{r}, v{r}, v{r+1}\nv_and_b32 v{r+1}, 0xffff0000, v{r}\nv_lshlrev_b32 v{r}, 16, v{r}')
        a(f'v_mul_f32 v{r}, v{r}, v11\nv_mul_f32 v{r+1}, v{r+1}, v11\nv_cvt_pk_bf16_f32 v{XS+d}, v{r}, v{r+1}')
    a(f'v_add_u32 v7, {L_X}, v7\nds_write_b128 v7, v[{XS}:{XS+3}]\nds_write_b128 v7, v[{XS+4}:{XS+7}] offset:16')
    a('s_and_b32 s54, s2, 63\ns_lshl_b32 s54, s54, 2')
    a(f'v_mov_b32 v11, {OOB}\nv_cmp_ne_u32 vcc, 0, v1\nv_cndmask_b32 v11, 0, v11, vcc\nv_mov_b32 v12, 1')
    a('s_waitcnt vmcnt(0) lgkmcnt(0)')
    stamp(1)
    a('buffer_atomic_add v12, v11, s[48:51], s54 offen sc1')
    a('ds_write_b32 v13, v12')
    if stamps: a('s_waitcnt vmcnt(0)'); stamp(2)
    a('L_WB1:')
    srd(36, 12, 4096*2048); srd(40, 20, 3584*2048)
    rb_of('s52', 's53')
    a('s_lshr_b32 s53, s2, 1\ns_and_b32 s53, s53, 12\ns_add_u32 s53, s53, s3')
    a(f's_lshl_b32 s54, s53, 7\ns_mul_i32 s55, s52, {56*2048}\ns_add_u32 s55, s55, s54')
    a('s_lshl_b32 s56, s52, 17\ns_add_u32 s56, s56, s54')
    a(f's_lshl_b32 s57, s53, 14\ns_lshl_b32 s58, s52, 7\ns_add_u32 s57, s57, s58\ns_add_u32 s58, s57, {FP}\ns_add_u32 s57, s57, {SP}')
    a(f'v_mul_u32_u24 v6, {7*2048}, v2\nv_add_u32 v6, v6, v3')
    a('v_and_b32 v7, 3, v2\nv_lshl_add_u32 v7, v7, 12, v3\nv_and_b32 v9, 4, v2\nv_lshl_add_u32 v7, v9, 14, v7')
    a('v_and_b32 v8, 3, v1\nv_lshlrev_b32 v8, 5, v8\nv_and_b32 v9, 8, v1\nv_lshl_add_u32 v8, v9, 1, v8\nv_and_b32 v9, 4, v1\nv_lshl_add_u32 v8, v9, 11, v8')
    a(f'v_mov_b32 v9, {OOB}\nv_cmp_gt_u32 vcc, 16, v1\nv_cndmask_b32 v8, v9, v8, vcc')
    a(f'v_lshrrev_b32 v4, 4, v1\nv_lshlrev_b32 v4, 1, v4\nv_and_b32 v5, 1, v1\nv_add_u32 v4, v4, v5\nv_lshlrev_b32 v4, 4, v4\nv_add_u32 v4, {L_H}, v4')
    for k in range(4): a(f'v_mov_b32 v{L+28+k}, 0')
    stamp(4)
    a('s_cmp_lg_u32 s3, 1\ns_cbranch_scc1 L_WB2')
    ldswait('qseen', L_Q - L_F + 65536, 4)
    a(f's_mul_i32 s88, s52, 224\ns_add_u32 s88, s88, {GP}')
    a('v_and_b32 v11, 7, v1\nv_min_u32 v12, 6, v11\nv_mul_u32_u24 v10, 7, v2\nv_add_lshl_u32 v10, v10, v12, 2')
    for p in range(1, 8): a(f's_add_u32 s{88+p}, s88, {p*14336}')
    gather('hg', [(f'buffer_load_dword v{20+p}, v10, s[28:31], s{88+p} offen sc1', 20+p, 1) for p in range(8)], 30, sleep)
    a('v_add_f32 v20, v20, v21\nv_add_f32 v22, v22, v23\nv_add_f32 v24, v24, v25\nv_add_f32 v26, v26, v27\nv_add_f32 v20, v20, v22\nv_add_f32 v24, v24, v26')
    rbf(20); rbf(24); silu(20, 21); rbf(20)
    a('v_mul_f32 v20, v20, v24\nv_cvt_pk_bf16_f32 v20, v20, v20')
    a('v_cmp_ne_u32 vcc, 7, v11\nv_cndmask_b32 v20, 0, v20, vcc')
    a('v_mov_b32_dpp v21, v20 quad_perm:[0,0,2,2] row_mask:0xf bank_mask:0xf\nv_mov_b32_dpp v22, v20 quad_perm:[1,1,3,3] row_mask:0xf bank_mask:0xf')
    a(f'v_perm_b32 v20, v22, v21, s60\nv_and_b32 v10, 62, v1\nv_lshlrev_b32 v10, 1, v10\nv_add_u32 v10, {L_H}, v10\nds_write_b32 v10, v20')
    a('L_WB2:')
    a('s_waitcnt vmcnt(0)')
    stamp(9)
    a(f's_lshl_b32 s59, s3, 2\ns_add_u32 s59, s59, {L_F+16}\nv_mov_b32 v13, s59')
    ldswait('f2', 8, 1)
    a.vm_reset()
    for i in range(7):
        a.vm_window(wT)
        a(f'buffer_load_dwordx4 v[{L+4*i}:{L+4*i+3}], v6, s[40:43], s55 offen offset:{2048*(i & 1)}{P}', tag=('d', i))
        if i & 1: a('s_add_u32 s55, s55, 4096')
        if i == f3at: a('ds_write_b32 v13, v13')
    for i in range(8):
        a.vm_window(wT)
        if i & 3: a('s_add_u32 s56, s56, 16384')
        elif i: a('s_sub_u32 s56, s56, 49152')
        a(f'buffer_load_dwordx4 v[{L+32+4*i}:{L+32+4*i+3}], v7, s[36:39], s56 offen offset:{2048*(i >> 2)}{P}', tag=('o', i))
        if i + 7 == f3at: a('ds_write_b32 v13, v13')
    ldsdata('hw', [f'ds_read_b128 v[{X}:{X+3}], v4'], range(X, X+4), 20, 1)
    a.vm_wait(('d', 6))
    tile(L, X, True)
    fold_cols(D, 16)
    a('buffer_store_dwordx4 v[16:19], v8, s[28:31], s58 offen sc1', tag='fp')
    for u in range(4):
        a.vm_wait(('o', 2*u+1))
        perms_pair(L+32+8*u, L+32+8*u+4, TB, u)
    stamp(5)
    ldsdata('ow', [f'ds_read_b128 v[{X}:{X+3}], v4 offset:{L_O16-L_H}'], range(X, X+4), 20, 0)
    for j in (0, 6, 1, 7, 2, 4, 3, 5):
        a(f'v_mfma_f32_16x16x32_bf16 v[{D+4*j}:{D+4*j+3}], v[{X}:{X+3}], v[{TB+4*j}:{TB+4*j+3}], 0')
    fold_cols(D, 20)
    a('buffer_store_dwordx4 v[20:23], v8, s[28:31], s57 offen sc1')
    stamp(6)
    finish()

    a('L_A:')
    V, TB, PO, O, S, PP, QL, QH = 128, 96, 64, 48, 32, 24, 64, 80
    a('s_sub_u32 s63, s3, 4')
    a('s_lshr_b32 s52, s2, 6\ns_and_b32 s53, s2, 63')
    a('s_lshl_b32 s54, s52, 23\ns_lshl_b32 s55, s53, 2\ns_add_u32 s55, s55, s63\ns_lshl_b32 s55, s55, 13\ns_add_u32 s54, s54, s55')
    a('s_lshl_b32 s55, s63, 15')
    a('v_lshrrev_b32 v2, 4, v1\nv_and_b32 v3, 15, v1')
    a('v_lshlrev_b32 v4, 2, v2\nv_xor_b32 v4, v4, v3\nv_lshlrev_b32 v4, 4, v4\nv_lshl_add_u32 v5, v2, 8, v4')
    for k in range(1, 4): a(f'v_xor_b32 v{5+k}, {16*k}, v5')
    a(f's_mov_b32 s34, {32*MB}\ns_mov_b32 s35, 0x20000')
    a('s_waitcnt lgkmcnt(0)\ns_mov_b32 s32, s6\ns_mov_b32 s33, s7')
    def a_setup():
        srd(36, 8, 32*MB); srd(28, 26, WSEND); srd(40, 22, 2048); srd(44, 4, 2048)
        a('v_lshlrev_b32 v9, 4, v1')
        a(f's_mul_i32 s57, s63, 4224\ns_add_u32 s57, s57, {L_OR}\nv_add_u32 v10, s57, v9')
        for k in range(4): a(f'v_mov_b32 v{20+k}, -1')
        for k in range(4): a(f'ds_write_b128 v10, v[20:23] offset:{1024*k}')
        a('ds_write_b128 v10, v[20:23] offset:3200')
        a('s_waitcnt lgkmcnt(0)\ns_barrier')
        a('v_and_b32 v14, 3, v3\nv_lshlrev_b32 v14, 2, v14\nv_lshrrev_b32 v15, 2, v3\nv_add_u32 v14, v14, v15\nv_lshlrev_b32 v14, 8, v14\nv_add_u32 v14, s55, v14')
        a('v_xor_b32 v15, v2, v3')
        for s in range(4):
            a(f'v_xor_b32 v{10+s}, {4*s}, v15\nv_lshl_add_u32 v{10+s}, v{10+s}, 4, v14')
        a(f'v_and_b32 v18, 7, v1\nv_mul_u32_u24 v14, 272, v18\nv_lshl_add_u32 v14, v2, 4, v14\nv_add_u32 v14, {L_Q}, v14')
        a('v_cmp_gt_u32 vcc, 8, v3\nv_cndmask_b32 v15, 0, -1, vcc\nv_not_b32 v16, v15')
        a(f'v_lshlrev_b32 v17, 3, v18\nv_add_u32 v17, {L_MLW}, v17')
    a.vm_reset()
    for i in range(32):
        if i % 4 == 0:
            a(f's_add_u32 s56, s54, {(i >> 3)*2*MB + (i & 4)*1024}\ns_add_u32 m0, s55, {i*1024}')
        a.vm_window(sched(sA, i))
        a(f'buffer_load_dwordx4 v{5+(i & 3)}, s[32:35], s56 offen offset:{1024*(i & 3)}{P} lds', tag=('k', i))
        if i == 0: stamp(1)
        if i == sched(sA, 0) - 1: a_setup()
        if i == nF1: a(f'v_mov_b32 v18, {L_F}\nds_write_b32 v18, v18 offset:4')
        if i == nF1b: a(f'v_mov_b32 v18, {L_F}\nds_write_b32 v18, v18 offset:12')
    vn = [0]
    def after_b2():
        stamp(4)
        a(f'v_mov_b32 v23, {L_F}\nds_write_b32 v23, v23 offset:8')
    def vload():
        if vn[0] == 32: return
        if vn[0] == 32 - early2: after_b2()
        i = vn[0]; vn[0] += 1
        if i % 4 == 0: a(f's_add_u32 s56, s54, {(i >> 3)*2*MB + (i & 4)*1024}')
        a.vm_window(sched(sA, 32+i))
        a(f'buffer_load_dwordx4 v[{V+4*i}:{V+4*i+3}], v9, s[36:39], s56 offen offset:{1024*(i & 3)}{P}', tag=('v', i))
    for i in range(nB1): vload()
    a.vm_wait(('k', 31))
    stamp(2)
    ldsdata('qw', [f'ds_read_b128 v[{QL+4*s}:{QL+4*s+3}], v14 offset:{64*s}' for s in range(4)], range(QL, QL+16), 18, 1)
    stamp(3)
    units = [(p, hh, ts) for p in range(2) for hh in range(2) for ts in range(2)]
    def kreads(k):
        p, hh, ts = units[k]
        for s in range(4):
            r = TB + 16*(k & 1) + 4*s
            a(f'ds_read_b128 v[{r}:{r+3}], v{10+s} offset:{(2*p+ts)*8192 + hh*4096}')
    kreads(0); kreads(1)
    for k in range(16): a(f'v_and_b32 v{QH+k}, v16, v{QL+k}\nv_and_b32 v{QL+k}, v15, v{QL+k}')
    vload()
    for k in range(8):
        p, hh, ts = units[k]
        a(f's_waitcnt lgkmcnt({4 if k < 7 else 0})')
        d = S + 8*p + 4*hh
        for s in range(4):
            r = TB + 16*(k & 1) + 4*s; q = (QH if ts else QL) + 4*s
            c = '0' if (ts == 0 and s == 0) else f'v[{d}:{d+3}]'
            a(f'v_mfma_f32_16x16x32_bf16 v[{d}:{d+3}], v[{r}:{r+3}], v[{q}:{q+3}], {c}')
        if k + 2 < 8: kreads(k+2)
        if k in (3, 7): vload()
    a(f's_mov_b32 s57, {SCALE}\ns_mov_b32 s58, {LOG2E}')
    for k in range(0, 16, 2):
        r = S + k
        a(f'v_cvt_pk_bf16_f32 v{r}, v{r}, v{r+1}\nv_and_b32 v{r+1}, 0xffff0000, v{r}\nv_lshlrev_b32 v{r}, 16, v{r}')
        a(f'v_mul_f32 v{r}, s57, v{r}\nv_mul_f32 v{r+1}, s57, v{r+1}')
        a(f'v_cvt_pk_bf16_f32 v{r}, v{r}, v{r+1}\nv_and_b32 v{r+1}, 0xffff0000, v{r}\nv_lshlrev_b32 v{r}, 16, v{r}')
    vload()
    a(f'v_max3_f32 v18, v{S}, v{S+1}, v{S+2}')
    for k in range(3, 15, 2): a(f'v_max3_f32 v18, v18, v{S+k}, v{S+k+1}')
    a(f'v_max_f32 v18, v18, v{S+15}')
    allred_row('v_max_f32', 18, (8,)); allred_xrow('v_max_f32', 18, 20)
    for k in range(16): a(f'v_sub_f32 v{S+k}, v{S+k}, v18\nv_mul_f32 v{S+k}, s58, v{S+k}')
    for k in range(16): a(f'v_exp_f32 v{S+k}, v{S+k}')
    vload()
    a(f'v_add_f32 v19, v{S}, v{S+1}')
    for k in range(2, 16): a(f'v_add_f32 v19, v19, v{S+k}')
    allred_row('v_add_f32', 19, (8,)); allred_xrow('v_add_f32', 19, 20)
    a('s_lshl_b32 s59, s63, 6\nv_add_u32 v20, s59, v17\nds_write_b64 v20, v[18:19]')
    for k in range(8): a(f'v_cvt_pk_bf16_f32 v{PP+k}, v{S+2*k}, v{S+2*k+1}')
    stamp(11)
    for p in range(2):
        for k in range(4):
            src = PP + 4*p + k
            a(f'v_and_b32 v{PO+16*p+k}, v15, v{src}')
            a(f'v_mov_b32_dpp v{PO+16*p+4+k}, v{src} row_shr:8 row_mask:0xf bank_mask:0xf bound_ctrl:1')
            a(f'v_mov_b32_dpp v{PO+16*p+8+k}, v{src} row_shl:8 row_mask:0xf bank_mask:0xf bound_ctrl:1')
            a(f'v_and_b32 v{PO+16*p+12+k}, v16, v{src}')
    mlat = min(vn[0] + 2, 32)
    done = [0]
    def pv_pair():
        pr = done[0]; done[0] += 1
        T, u = pr >> 2, pr & 3
        perms_pair(V+8*pr, V+8*pr+4, TB, u)
        if u == 3:
            for half in range(2):
                for q in range(4):
                    c = '0' if (T == 0 and half == 0) else f'v[{O+4*q}:{O+4*q+3}]'
                    j = q + 4*half; b = PO + 8*T + 4*half
                    a(f'v_mfma_f32_16x16x32_bf16 v[{O+4*q}:{O+4*q+3}], v[{TB+4*j}:{TB+4*j+3}], v[{b}:{b+3}], {c}')
    def ml_pub():
        ldsdata('mlw', [f'ds_read_b64 v[{S+2*w}:{S+2*w+1}], v17 offset:{64*w}' for w in range(4)], range(S, S+8), 20, 0)
        a(f's_lshl_b32 s59, s2, 6\ns_add_u32 s59, s59, {ML}\ns_cmp_eq_u32 s63, 0\ns_cselect_b32 s57, 8, 0')
        a(f'v_lshlrev_b32 v22, 3, v1\nv_mov_b32 v23, {OOB}\nv_cmp_gt_u32 vcc, s57, v1\nv_cndmask_b32 v22, v23, v22, vcc')
        a(f'v_max3_f32 v20, v{S}, v{S+2}, v{S+4}\nv_max_f32 v20, v20, v{S+6}\nv_mul_f32 v20, s58, v20\nv_ceil_f32 v20, v20')
        for w in range(4): a(f'v_fma_f32 v{S+2*w}, v{S+2*w}, s58, -v20\nv_exp_f32 v{S+2*w}, v{S+2*w}')
        a('v_fma_f32 v18, v18, s58, -v20\nv_exp_f32 v18, v18')
        a(f'v_mul_f32 v21, v{S}, v{S+1}')
        for w in range(1, 4): a(f'v_fmac_f32 v21, v{S+2*w}, v{S+2*w+1}')
        a('buffer_store_dwordx2 v[20:21], v22, s[28:31], s59 offen sc1', tag='ml')
        stamp(10)
    if vn[0] == mlat: ml_pub()
    while vn[0] < 32:
        vload()
        if vn[0] == mlat: ml_pub()
        landed = vn[0] - sched(sA, 31+vn[0])
        k = 0
        while 2*done[0] + 2 <= landed and k < 2:
            pv_pair(); k += 1
    if early2 == 0: after_b2()
    a(f'v_and_b32 v5, 7, v1\nv_mul_u32_u24 v5, 528, v5\nv_lshl_add_u32 v5, v2, 7, v5\nv_and_b32 v6, 8, v1\nv_lshl_add_u32 v5, v6, 3, v5')
    a(f's_mul_i32 s57, s63, 4224\ns_add_u32 s57, s57, {L_OR}\nv_add_u32 v5, s57, v5')
    a(f'v_lshrrev_b32 v6, 5, v1\nv_add_lshl_u32 v6, v6, v1, 4')
    a(f's_mul_i32 s57, s63, 1056\ns_add_u32 s57, s57, {L_OR}\nv_add_u32 v6, s57, v6')
    a('v_lshlrev_b32 v7, 13, v2\nv_lshl_add_u32 v7, v3, 3, v7')
    a(f's_lshl_b32 s56, s52, 17\ns_lshl_b32 s57, s63, 15\ns_add_u32 s56, s56, s57\ns_lshl_b32 s57, s53, 7\ns_add_u32 s56, s56, s57\ns_add_u32 s56, s56, {OP}')
    rb_of('s48', 's57')
    a(f's_lshl_b32 s54, s48, 2\ns_and_b32 s54, s54, 56\ns_lshl_b32 s57, s52, 12\ns_add_u32 s54, s54, s57\ns_add_u32 s54, s54, {ML}')
    a(f's_lshl_b32 s48, s48, 13\ns_add_u32 s48, s48, {OP}\ns_add_u32 s49, s48, 4096')
    a('v_and_b32 v10, 1, v1\nv_lshlrev_b32 v10, 4, v10\nv_mov_b32 v11, 0xffff\nv_lshlrev_b32 v10, v10, v11\nv_bfe_u32 v11, v1, 1, 2')
    for d in range(4): a(f'v_cmp_eq_u32 vcc, {d}, v11\nv_cndmask_b32 v{24+d}, 0, v10, vcc')
    a('v_and_b32 v8, 7, v1\nv_lshlrev_b32 v8, 9, v8\nv_lshrrev_b32 v10, 3, v1\nv_lshl_add_u32 v8, v10, 6, v8')
    a(f'v_and_b32 v10, 7, v1\nv_lshlrev_b32 v10, 4, v10\nv_lshl_add_u32 v10, v2, 3, v10\nv_add_u32 v10, {L_O16}, v10')
    a('s_and_b32 s50, s2, 7\ns_lshr_b32 s51, s2, 3\ns_lshl_b32 s50, s50, 5\ns_add_u32 s50, s50, s51\ns_lshl_b32 s55, s50, 3')
    a(f's_lshr_b32 s51, s50, 3\ns_lshl_b32 s51, s51, 13\ns_and_b32 s50, s50, 7\ns_lshl_b32 s50, s50, 4\ns_add_u32 s50, s50, s51\ns_add_u32 s51, s50, {FP}\ns_add_u32 s50, s50, {SP}')
    a('v_lshlrev_b32 v11, 7, v1\nv_lshlrev_b32 v12, 1, v2')
    a(f'v_mov_b32 v13, {OOB}\nv_cmp_eq_u32 vcc, 0, v3\nv_cndmask_b32 v13, v13, v12, vcc')
    while done[0] < 16:
        a.vm_wait(('v', 2*done[0]+1))
        pv_pair()
    stamp(5)
    for q in range(4):
        for k in range(4): a(f'v_mul_f32 v{O+4*q+k}, v18, v{O+4*q+k}')
        a(f'ds_write_b128 v5, v[{O+4*q}:{O+4*q+3}] offset:{16*q}')
    ldsdata('orw', [f'ds_read_b128 v[{S+4*w}:{S+4*w+3}], v6 offset:{4224*w}' for w in range(4)], range(S, S+16), 20, 0)
    for k in range(0, 4, 2): a(f'v_pk_add_f32 v[{S+k}:{S+k+1}], v[{S+k}:{S+k+1}], v[{S+4+k}:{S+5+k}]\nv_pk_add_f32 v[{S+8+k}:{S+9+k}], v[{S+8+k}:{S+9+k}], v[{S+12+k}:{S+13+k}]')
    for k in range(0, 4, 2): a(f'v_pk_add_f32 v[{S+k}:{S+k+1}], v[{S+k}:{S+k+1}], v[{S+8+k}:{S+9+k}]')
    a(f'v_cvt_pk_bf16_f32 v20, v{S}, v{S+1}\nv_cvt_pk_bf16_f32 v21, v{S+2}, v{S+3}')
    a(f'buffer_store_dwordx2 v[20:21], v7, s[28:31], s56 offen sc1')
    stamp(6)
    a('s_cmp_ge_u32 s63, 2\ns_cbranch_scc1 L_Aend')
    a(f'v_mov_b32 v14, {L_F+16}')
    a('s_cmp_eq_u32 s63, 1\ns_cbranch_scc1 L_fin')
    G, SEL = 64, 128
    gather('mlg', [('buffer_load_dwordx2 v[16:17], v8, s[28:31], s54 offen sc1', 16, 2)], 22, 4)
    a('v_mov_b32 v22, v16')
    allred_row('v_max_f32', 22); allred_xrow('v_max_f32', 22, 23)
    a('v_sub_f32 v16, v16, v22\nv_cvt_i32_f32 v16, v16\nv_ldexp_f32 v16, 1.0, v16\nv_mul_f32 v17, v16, v17')
    allred_row('v_add_f32', 17); allred_xrow('v_add_f32', 17, 23)
    a('v_rcp_f32 v17, v17\nv_perm_b32 v16, v16, v16, s61')
    for n in range(8):
        a(f'v_mov_b32_dpp v{SEL+32+n}, v16 row_newbcast:{n} row_mask:0xf bank_mask:0x3')
    for n in range(8):
        a(f'v_mov_b32_dpp v{SEL+32+n}, v16 row_newbcast:{8+n} row_mask:0xf bank_mask:0xc')
    for n in range(8):
        for d in range(4): a(f'v_and_b32 v{SEL+4*n+d}, v{SEL+32+n}, v{24+d}')
    stamp(9)
    ldsdata('f3', ['ds_read_b128 v[28:31], v14'], range(28, 32), 22, 1)
    def spec():
        for n in range(8):
            c = '0' if n == 0 else f'v[{S}:{S+3}]'
            a(f'v_mfma_f32_16x16x32_bf16 v[{S}:{S+3}], v[{SEL+4*n}:{SEL+4*n+3}], v[{G+4*n}:{G+4*n+3}], {c}')
    gather('og', [(f'buffer_load_dwordx4 v[{G+4*n}:{G+4*n+3}], v9, s[28:31], s{48+(n >> 2)} offen offset:{1024*(n & 3)} sc1', G+4*n, 4) for n in range(8)], 112, 0, spec=spec)
    stamp(8)
    for k in range(4): a(f'v_mul_f32 v{S+4+k}, v17, v{S+k}\nv_mul_f32 v{S+k}, v17, v{S+k}')
    for k in range(4): a(f'v_permlane32_swap_b32 v{S+4+k}, v{S+k}')
    for k in range(4): a(f'v_add_f32_dpp v{S+k}, v{S+k}, v{S+4+k} row_ror:8 row_mask:0xf bank_mask:0xf')
    a(f'v_cvt_pk_bf16_f32 v20, v{S}, v{S+1}\nv_cvt_pk_bf16_f32 v21, v{S+2}, v{S+3}')
    a('s_mov_b64 exec, 0x00ff00ff\nds_write_b64 v10, v[20:21]\ns_waitcnt lgkmcnt(0)')
    a('s_branch L_Aend')
    a('L_fin:')
    ldsdata('f3b', ['ds_read_b128 v[28:31], v14'], range(28, 32), 22, 1)
    a('buffer_load_ushort v14, v12, s[44:47], s55 offen')
    gather('fg', [('buffer_load_dwordx4 v[24:27], v11, s[28:31], s51 offen sc1', 24, 4)], 20, 2)
    a('buffer_load_dwordx4 v[28:31], v11, s[28:31], s50 offen sc1')
    red4(24); allred_row('v_add_f32', 24)
    rbf(24); silu(24, 25); rbf(24)
    a('v_lshlrev_b32 v14, 16, v14')
    stamp(8)
    gather('sg', [('buffer_load_dwordx4 v[28:31], v11, s[28:31], s50 offen sc1', 28, 4)], 20, 0, first=False)
    stamp(9)
    red4(28); allred_row('v_add_f32', 28)
    rbf(28)
    a('v_mul_f32 v28, v28, v24'); rbf(28)
    a('v_add_f32 v28, v28, v14\nv_cvt_pk_bf16_f32 v28, v28, v28')
    a('buffer_store_short v28, v13, s[40:43], s55 offen')
    a('L_Aend:')
    finish()
    a('L_exit:\ns_endpgm')
    a.raw(f'''.section .rodata,"a"
.p2align 6
.amdhsa_kernel {KNAME}
  .amdhsa_next_free_vgpr 256
  .amdhsa_next_free_sgpr 96
  .amdhsa_accum_offset 256
  .amdhsa_group_segment_fixed_size 0
  .amdhsa_kernarg_size 96
  .amdhsa_user_sgpr_count 2
  .amdhsa_user_sgpr_kernarg_segment_ptr 1
  .amdhsa_system_sgpr_workgroup_id_x 1
  .amdhsa_float_denorm_mode_32 3
.end_amdhsa_kernel''')
    return a.text()

if __name__ == '__main__':
    out = sys.argv[1]
    kw = eval('dict(' + (sys.argv[2] if len(sys.argv) > 2 else '') + ')')
    open(out, 'w').write(gen(**kw))
```

```python
import sys
sys.path.insert(0, 'work')
from asmlib import Asm

KNAME = 'recurrent_scan__gqa_block_cached__swiglu_ffn__decode_kernel'
MB = 1 << 20
QP, GP, UP = 1310720, 0, 57344
ML, QF = 196608, 196608 + 16384
SP, FP, OP, WSEND = 262144, 524288, 786432, 1441792
STAMPS = 8 * MB
L_K, L_OR, L_X, L_Q = 0, 131072, 147968, 150016
L_MLW, L_MG, L_H, L_O16, L_F, L_END = 152192, 152448, 152512, 152640, 152768, 153088
OOB = 0x40000000
LOG2E = 0x3fb8aa3b
SCALE = 0x3db504f3
SPIN = 400000

HEADER = open('recurrent_scan__gqa_block_cached__swiglu_ffn__decode.s.ref').read().split('; Override')[0]

def gen(pol='nt', sA=((0,1),(2,3),(18,6)), sQ=((0,16),), sG=((0,2),(4,6)), wT=6, nB1=18, early2=0, nF1=10, nF1b=28, shu=3, f3at=14, pref=True,
        stamps=False, sleep=16, dbgst=None):
    a = Asm()
    if dbgst: stamps = True
    P = {'nt': ' nt', 'plain': ''}[pol]
    def sched(sc, i): return [w for (st, w) in sc if st <= i][-1]
    def stamp(k):
        if stamps: a(f's_memrealtime s[{64+2*k}:{65+2*k}]')
    def srd(d, p, size):
        a(f's_mov_b32 s{d}, s{p}\ns_mov_b32 s{d+1}, s{p+1}\ns_mov_b32 s{d+2}, {size}\ns_mov_b32 s{d+3}, 0x20000')
    def allred_row(op, v, steps=(8, 4, 2, 1)):
        for r in steps: a(f'{op}_dpp v{v}, v{v}, v{v} row_ror:{r} row_mask:0xf bank_mask:0xf')
    def allred_xrow(op, v, t):
        a(f'v_mov_b32 v{t}, v{v}\nv_permlane16_swap_b32 v{t}, v{v}\n{op} v{v}, v{v}, v{t}')
        a(f'v_mov_b32 v{t}, v{v}\nv_permlane32_swap_b32 v{t}, v{v}\n{op} v{v}, v{v}, v{t}')
    def rbf(v):
        a(f'v_cvt_pk_bf16_f32 v{v}, v{v}, v{v}\nv_lshlrev_b32 v{v}, 16, v{v}')
    def perms_pair(La, Lb, TB, u):
        for d in range(4):
            a(f'v_perm_b32 v{TB+4*(2*d)+u}, v{Lb+d}, v{La+d}, s60')
            a(f'v_perm_b32 v{TB+4*(2*d+1)+u}, v{Lb+d}, v{La+d}, s61')
    def umax(regs, t):
        regs = list(regs)
        if len(regs) == 2:
            a(f'v_max_u32 v{t}, v{regs[0]}, v{regs[1]}'); return
        a(f'v_max3_u32 v{t}, v{regs[0]}, v{regs[1]}, v{regs[2]}')
        regs = regs[3:]
        while len(regs) >= 2:
            a(f'v_max3_u32 v{t}, v{t}, v{regs[0]}, v{regs[1]}'); regs = regs[2:]
        if regs: a(f'v_max_u32 v{t}, v{t}, v{regs[0]}')
    def again(lbl): a(f's_sub_u32 s62, s62, 1\ns_cmp_gt_i32 s62, 0\ns_cbranch_scc1 {lbl}')
    def retry(lbl_loop, lbl_done, slp):
        a(f's_cbranch_vccz {lbl_done}')
        if slp: a(f's_sleep {slp}')
        again(lbl_loop)
        a(f'{lbl_done}:')
    def gather(name, loads, tmp, slp, first=True, spec=None):
        if first:
            for t, _, _ in loads: a(t)
        a(f'L_{name}:\ns_waitcnt vmcnt(0)')
        if spec: spec()
        n = len(loads)
        for k, (_, r, c) in enumerate(loads):
            if c > 1: umax(range(r, r+c), tmp+k)
        tk = [tmp+k if c > 1 else r for k, (_, r, c) in enumerate(loads)]
        if n > 1:
            umax(tk, tmp+n); a(f'v_cmp_eq_u32 vcc, -1, v{tmp+n}')
        else: a(f'v_cmp_eq_u32 vcc, -1, v{tk[0]}')
        a(f's_cbranch_vccz L_{name}_ok')
        if slp: a(f's_sleep {slp}')
        for k, (t, _, _) in enumerate(loads):
            if n > 1:
                a(f'v_cmp_eq_u32 vcc, -1, v{tk[k]}\ns_cbranch_vccz L_{name}_s{k}')
            a(f's_mov_b64 exec, vcc\n{t}\ns_mov_b64 exec, -1')
            if n > 1: a(f'L_{name}_s{k}:')
        again(f'L_{name}')
        a(f's_waitcnt vmcnt(0)\nL_{name}_ok:')
    def ldswait(name, off, slp):
        base = L_F if off < 4096 else L_F - 65536
        a(f'v_mov_b32 v12, {base}\nL_{name}:')
        a(f'ds_read_b32 v11, v12 offset:{off}\ns_waitcnt lgkmcnt(0)\nv_cmp_eq_u32 vcc, -1, v11')
        retry(f'L_{name}', f'L_{name}_ok', slp)
    def ldsdata(name, reads, regs, t, slp):
        a(f'L_{name}:')
        for r in reads: a(r)
        a('s_waitcnt lgkmcnt(0)')
        umax(regs, t)
        a(f'v_cmp_eq_u32 vcc, -1, v{t}')
        retry(f'L_{name}', f'L_{name}_ok', slp)
    def silu(v, t):
        a(f'v_mul_f32 v{t}, 0xbfb8aa3b, v{v}\nv_exp_f32 v{t}, v{t}\nv_add_f32 v{t}, 1.0, v{t}\nv_rcp_f32 v{t}, v{t}\nv_mul_f32 v{v}, v{v}, v{t}')
    def fold_cols(D, o):
        for k in range(4):
            a(f'v_add_f32_dpp v{o+k}, v{D+4*k+1}, v{D+4*k} row_ror:8 row_mask:0xf bank_mask:0x3')
            a(f'v_add_f32_dpp v{o+((k+2)&3)}, v{D+4*(((k+2)&3)+4)}, v{D+4*(((k+2)&3)+4)+1} row_ror:8 row_mask:0xf bank_mask:0xc')
    def red4(r):
        a(f'v_permlane32_swap_b32 v{r}, v{r+2}\nv_permlane32_swap_b32 v{r+1}, v{r+3}')
        a(f'v_add_f32 v{r}, v{r}, v{r+2}\nv_add_f32 v{r+1}, v{r+1}, v{r+3}')
        a(f'v_permlane16_swap_b32 v{r}, v{r+1}\nv_add_f32 v{r}, v{r}, v{r+1}')
    def rb_of(d, t):
        a(f's_lshr_b32 {d}, s2, 5\ns_lshl_b32 {d}, {d}, 3\ns_and_b32 {t}, s2, 7\ns_add_u32 {d}, {d}, {t}')
    fin = [0]
    def finish():
        if dbgst:
            stamp(7)
            a('s_waitcnt lgkmcnt(0)\ns_mov_b64 exec, 1\nv_mov_b32 v2, 0')
            fin[0] += 1
            for i, (wv, k) in enumerate(dbgst):
                a(f's_cmp_lg_u32 s3, {wv}\ns_cbranch_scc1 L_dbg{fin[0]}_{i}')
                a(f'v_mov_b32 v4, s{64+2*k}\nv_not_b32 v5, v4')
                a(f'global_atomic_umax v2, v4, s[24:25] offset:{8*i} sc1\nglobal_atomic_umax v2, v5, s[24:25] offset:{8*i+4} sc1')
                a(f'L_dbg{fin[0]}_{i}:')
        elif stamps:
            stamp(7)
            a('s_waitcnt lgkmcnt(0)')
            a('s_lshl_b32 s52, s2, 3\ns_add_u32 s52, s52, s3\ns_lshl_b32 s52, s52, 7')
            a(f's_add_u32 s54, s26, {STAMPS}\ns_addc_u32 s55, s27, 0')
            a('v_mov_b32 v2, s52\ns_mov_b64 exec, 1')
            for k in range(6):
                a(f'v_mov_b32 v4, s{64+4*k}\nv_mov_b32 v5, s{65+4*k}\nv_mov_b32 v6, s{66+4*k}\nv_mov_b32 v7, s{67+4*k}')
                a(f'global_store_dwordx4 v2, v[4:7], s[54:55] offset:{16*k}\ns_nop 1')
        a('s_endpgm')

    a.raw(HEADER.rstrip())
    a.raw(f'; @launch grid=(256,1,1) block=(512,1,1) lds={L_END}')
    a.raw('.amdgcn_target "amdgcn-amd-amdhsa--gfx950"\n.text')
    a.raw(f'.globl {KNAME}\n.p2align 8\n.type {KNAME},@function\n{KNAME}:')
    if stamps:
        for k in range(64, 88, 2): a(f's_mov_b64 s[{k}:{k+1}], 0')
    stamp(0)
    a('s_cmp_ge_u32 s2, 256\ns_cbranch_scc1 L_exit')
    a('s_load_dwordx16 s[4:19], s[0:1], 0\ns_load_dwordx8 s[20:27], s[0:1], 64')
    a('v_lshrrev_b32 v2, 6, v0\nv_and_b32 v1, 63, v0\nv_readfirstlane_b32 s3, v2')
    if pref:
        a('s_cmp_lg_u32 s3, 7\ns_cbranch_scc1 L_nopf')
        a(f's_getpc_b64 s[56:57]\nL_pc:\ns_lshr_b32 s58, s2, 3\ns_mul_i32 s58, s58, 640\nv_and_b32 v2, 7, v1\nv_lshl_add_u32 v2, v2, 7, s58')
        a(f'v_min_u32 v2, L_exit-L_pc, v2\nglobal_load_dword v255, v2, s[56:57]')
        a('L_nopf:')
    a(f's_mov_b32 s60, 0x05040100\ns_mov_b32 s61, 0x07060302\ns_mov_b32 s62, {SPIN}')
    a('s_cmp_ge_u32 s3, 4\ns_cbranch_scc1 L_A')
    a('s_setprio 2')
    a('v_lshrrev_b32 v2, 3, v1')
    a('v_and_b32 v3, 7, v1\nv_lshlrev_b32 v3, 4, v3')
    a('s_and_b32 s55, s2, 3\ns_lshr_b32 s54, s2, 2')
    a('s_cmp_eq_u32 s3, 3\ns_cbranch_scc1 L_W3')
    X, D, TB, L = 48, 64, 96, 128
    def tile(Lb, Xr, first, waits=None):
        for u in range(4):
            if waits: a.vm_wait(waits(2*u+1))
            perms_pair(Lb+8*u, Lb+8*u+4, TB, u)
        if first: a('s_waitcnt lgkmcnt(0)')
        for j in range(8):
            c = '0' if first else f'v[{D+4*j}:{D+4*j+3}]'
            a(f'v_mfma_f32_16x16x32_bf16 v[{D+4*j}:{D+4*j+3}], v[{Xr}:{Xr+3}], v[{TB+4*j}:{TB+4*j+3}], {c}')
    def job(name, sc, pitch, tilerows, setup):
        a.vm_reset()
        for i in range(32):
            a.vm_window(sched(sc, i))
            a(f'buffer_load_dwordx4 v[{L+4*i}:{L+4*i+3}], v6, s[32:35], s52 offen{P}', tag=('j', i))
            if i < 31: a(f's_add_u32 s52, s52, {pitch*(tilerows-7) if i % 8 == 7 else pitch}')
            if i == 0: stamp(10)
            if i == sched(sc, 0) - 1:
                a('s_barrier')
                srd(28, 26, WSEND)
                setup()
        stamp(1)
        ldswait(name, 0, 2)
        for T in range(4): a(f'ds_read_b128 v[{X+4*T}:{X+4*T+3}], v7 offset:{2*tilerows*T}')
        for T in range(4):
            tile(L+32*T, X+4*T, T == 0, (lambda i, T=T: ('j', 8*T+i)) if 8*T+7 > 31 - sched(sc, 31) else None)
    a('s_cmp_eq_u32 s3, 0\ns_cbranch_scc1 L_q')
    a('s_cmp_ge_u32 s2, 224\ns_cbranch_scc1 L_nojob')
    a(f's_sub_u32 s59, s3, 1\ns_mul_i32 s58, s59, {shu}\ns_add_u32 s54, s54, s58')
    a('s_cmp_ge_u32 s54, 56\ns_cselect_b32 s58, 56, 0\ns_sub_u32 s54, s54, s58\ns_lshl_b32 s54, s54, 7')
    a(f's_mul_i32 s52, s55, {256*7168}\ns_add_u32 s52, s52, s54')
    a(f'v_mul_u32_u24 v6, {8*7168}, v2\nv_add_u32 v6, v6, v3')
    a(f's_mov_b32 s34, {1024*7168}\ns_mov_b32 s35, 0x20000')
    a('s_cmp_eq_u32 s3, 1\ns_waitcnt lgkmcnt(0)\ns_cselect_b32 s32, s16, s18\ns_cselect_b32 s33, s17, s19')
    def gu_setup():
        a(f's_mul_i32 s58, s55, 14336\ns_lshl_b32 s54, s54, 1\ns_add_u32 s58, s58, s54\ns_mul_i32 s59, s59, {UP-GP}\ns_add_u32 s58, s58, s59')
        assert GP == 0
        a('v_lshrrev_b32 v4, 4, v1\nv_lshlrev_b32 v4, 1, v4\nv_and_b32 v5, 1, v1\nv_add_u32 v4, v4, v5\nv_lshlrev_b32 v4, 4, v4')
        a(f's_lshl_b32 s55, s55, 9\ns_add_u32 s55, s55, {L_X}\nv_add_u32 v7, s55, v4')
        a('v_lshlrev_b32 v8, 1, v3\nv_and_b32 v9, 8, v1\nv_lshl_add_u32 v8, v9, 1, v8')
        a(f'v_mov_b32 v9, {OOB}\nv_cmp_gt_u32 vcc, 16, v1\nv_cndmask_b32 v8, v9, v8, vcc')
    job('f0g', sG, 7168, 64, gu_setup)
    fold_cols(D, 16)
    a('buffer_store_dwordx4 v[16:19], v8, s[28:31], s58 offen sc1')
    stamp(2)
    a('s_branch L_WB1')
    a('L_q:')
    a('s_and_b32 s55, s2, 7\ns_lshr_b32 s54, s2, 3\ns_lshl_b32 s52, s55, 20\ns_lshl_b32 s53, s54, 8\ns_add_u32 s52, s52, s53')
    a('v_lshrrev_b32 v4, 4, v1\nv_and_b32 v5, 15, v1\nv_lshlrev_b32 v6, 16, v4\nv_lshl_add_u32 v6, v5, 4, v6')
    a(f's_mov_b32 s34, {1024*8192}\ns_mov_b32 s35, 0x20000\ns_waitcnt lgkmcnt(0)\ns_mov_b32 s32, s10\ns_mov_b32 s33, s11')
    def q_setup():
        srd(48, 24, 256)
        a(f's_lshl_b32 s58, s55, 14\ns_lshl_b32 s53, s54, 9\ns_add_u32 s58, s58, s53\ns_add_u32 s58, s58, {QP}')
        a(f's_lshl_b32 s55, s55, 8\ns_add_u32 s55, s55, {L_X}\nv_lshlrev_b32 v7, 4, v4\nv_add_u32 v7, s55, v7')
        a('v_lshlrev_b32 v8, 5, v5\nv_lshl_add_u32 v8, v4, 4, v8')
        a(f'v_mov_b32 v9, {OOB}\nv_cmp_gt_u32 vcc, 32, v1\nv_cndmask_b32 v8, v9, v8, vcc')
    job('f0q', sQ, 8192, 32, q_setup)
    for k in range(4): a(f'v_mov_b32 v{16+k}, v{D+4*k}')
    for k in range(4): a(f'v_mov_b32_dpp v{16+k}, v{D+16+4*k} quad_perm:[0,1,2,3] row_mask:0x2 bank_mask:0xf')
    a('buffer_store_dwordx4 v[16:19], v8, s[28:31], s58 offen sc1')
    stamp(2)
    a('s_lshr_b32 s52, s2, 3\ns_xor_b32 s53, s52, s2\ns_and_b32 s63, s53, 7')
    ldswait('f1', 4, 2)
    a('v_lshlrev_b32 v10, 2, v1\nv_or_b32 v10, 128, v10')
    a('L_clr_poll:')
    a('buffer_load_dword v11, v10, s[48:51], 0 offen sc1\ns_waitcnt vmcnt(0)\nv_cmp_gt_u32 vcc, 8, v11')
    retry('L_clr_poll', 'L_clr_ok', 2*sleep)
    stamp(3)
    a('s_cmp_lg_u32 s63, 0\ns_cbranch_scc1 L_qf0')
    a('v_lshrrev_b32 v10, 5, v1\nv_and_b32 v11, 31, v1\nv_lshlrev_b32 v10, 14, v10\nv_lshl_add_u32 v10, v11, 4, v10')
    a(f's_lshl_b32 s53, s52, 9\ns_add_u32 s53, s53, {QP}\ns_lshl_b32 s57, s52, 8\ns_add_u32 s57, s57, {QF}')
    for n in range(1, 4): a(f's_add_u32 s{53+n}, s53, {32768*n}')
    gather('qp', [(f'buffer_load_dwordx4 v[{L+4*n}:{L+4*n+3}], v10, s[28:31], s{53+n} offen sc1', L+4*n, 4) for n in range(4)], 20, 4)
    for k in range(4): a(f'v_add_f32 v{L+k}, v{L+k}, v{L+4+k}\nv_add_f32 v{L+8+k}, v{L+8+k}, v{L+12+k}')
    for k in range(4): a(f'v_add_f32 v{L+k}, v{L+k}, v{L+8+k}')
    for k in range(4): a(f'v_mov_b32 v{L+4+k}, v{L+k}')
    for k in range(4): a(f'v_permlane32_swap_b32 v{L+4+k}, v{L+k}')
    for k in range(4): a(f'v_add_f32 v{L+k}, v{L+k}, v{L+4+k}')
    a(f'v_cvt_pk_bf16_f32 v20, v{L}, v{L+1}\nv_cvt_pk_bf16_f32 v21, v{L+2}, v{L+3}')
    a(f'v_lshlrev_b32 v10, 3, v1\nv_mov_b32 v11, {OOB}\nv_cmp_gt_u32 vcc, 32, v1\nv_cndmask_b32 v10, v11, v10, vcc')
    a('buffer_store_dwordx2 v[20:21], v10, s[28:31], s57 offen sc1')
    stamp(8)
    a('L_qf0:')
    ldswait('f1b', 12, 2)
    a(f's_lshr_b32 s52, s2, 6\ns_lshl_b32 s52, s52, 11\ns_add_u32 s52, s52, {QF}\nv_lshlrev_b32 v10, 4, v1')
    gather('qf', [(f'buffer_load_dwordx4 v[{L+4*n}:{L+4*n+3}], v10, s[28:31], s52 offen offset:{1024*n} sc1', L+4*n, 4) for n in range(2)], 20, sleep//2)
    a(f'v_lshrrev_b32 v11, 4, v1\nv_add_lshl_u32 v11, v11, v1, 4\nv_add_u32 v11, {L_Q}, v11')
    for n in range(2): a(f'ds_write_b128 v11, v[{L+4*n}:{L+4*n+3}] offset:{1088*n}')
    a('s_branch L_WB1')
    a('L_nojob:')
    a('s_barrier')
    a('s_waitcnt lgkmcnt(0)')
    srd(28, 26, WSEND)
    a('s_branch L_WB1')
    a('L_W3:')
    XS, t = 40, 20
    a('v_lshlrev_b32 v7, 5, v1\nv_lshlrev_b32 v10, 4, v1')
    a(f'v_mov_b32 v13, {L_F}')
    a('v_mov_b32 v16, -1\nv_mov_b32 v17, -1\nv_mov_b32 v18, -1\nv_mov_b32 v19, -1')
    a(f'v_add_u32 v12, {L_Q}, v10')
    for k in range(3): a(f'ds_write_b128 v12, v[16:19] offset:{1024*k}')
    assert L_Q + 3072 == L_END
    a(f's_and_b32 s56, s2, 7\ns_lshl_b32 s56, s56, 14\ns_lshr_b32 s59, s2, 3\ns_lshl_b32 s59, s59, 9\ns_add_u32 s56, s56, s59\ns_add_u32 s56, s56, {QP}')
    a(f's_mul_i32 s55, s55, 14336\ns_cmp_ge_u32 s2, 224\ns_cselect_b32 s55, {OOB}, s55')
    a(f's_lshl_b32 s57, s54, 8\ns_add_u32 s57, s57, s55\ns_add_u32 s57, s57, {GP}')
    a(f's_add_u32 s54, s54, {shu}\ns_cmp_ge_u32 s54, 56\ns_cselect_b32 s59, 56, 0\ns_sub_u32 s54, s54, s59')
    a(f's_lshl_b32 s58, s54, 8\ns_add_u32 s58, s58, s55\ns_add_u32 s58, s58, {UP-256}')
    a(f's_lshl_b32 s59, s2, 10\ns_add_u32 s59, s59, {ML}\ns_cmp_ge_u32 s2, 24\ns_cselect_b32 s59, {OOB}, s59')
    a(f's_lshl_b32 s52, s2, 12\ns_add_u32 s52, s52, {SP}')
    a('v_mov_b32 v11, s58')
    for lim, sr in ((48, 57), (32, 56)):
        a(f'v_mov_b32 v12, s{sr}\nv_cmp_gt_u32 vcc, {lim}, v1\nv_cndmask_b32 v11, v11, v12, vcc')
    a('v_and_b32 v12, 31, v1\nv_lshl_add_u32 v11, v12, 4, v11\nv_add_u32 v14, s59, v10')
    a('s_waitcnt lgkmcnt(0)')
    srd(44, 4, 2048); srd(28, 26, WSEND)
    a(f'buffer_load_dwordx4 v[{XS}:{XS+3}], v7, s[44:47], 0 offen')
    a(f'buffer_load_dwordx4 v[{XS+4}:{XS+7}], v7, s[44:47], 0 offen offset:16')
    a('buffer_store_dwordx4 v[16:19], v11, s[28:31], 0 offen sc1')
    a('buffer_store_dwordx4 v[16:19], v14, s[28:31], 0 offen sc1')
    for k in range(4):
        a(f'buffer_store_dwordx4 v[16:19], v10, s[28:31], s52 offen offset:{1024*k} sc1')
    stamp(10)
    a('s_barrier')
    srd(48, 24, 256)
    a('s_waitcnt vmcnt(6)')
    for d in range(8):
        a(f'v_lshlrev_b32 v{t+2*d}, 16, v{XS+d}\nv_and_b32 v{t+2*d+1}, 0xffff0000, v{XS+d}')
    a(f'v_add_f32 v8, v{t}, v{t+1}')
    for k in range(2, 16): a(f'v_add_f32 v8, v8, v{t+k}')
    allred_row('v_add_f32', 8); allred_xrow('v_add_f32', 8, 9)
    a('v_mul_f32 v8, 0x3a800000, v8')
    a(f'v_sub_f32 v9, v{t}, v8\nv_mul_f32 v10, v9, v9')
    for k in range(1, 16): a(f'v_sub_f32 v9, v{t+k}, v8\nv_fmac_f32 v10, v9, v9')
    allred_row('v_add_f32', 10); allred_xrow('v_add_f32', 10, 9)
    a('v_mul_f32 v10, 0x3a800000, v10')
    rbf(8); rbf(10)
    a('v_add_f32 v10, 0x3727c5ac, v10'); rbf(10)
    a('v_sqrt_f32 v10, v10'); rbf(10)
    a('v_rcp_f32 v11, v10\nv_fma_f32 v12, -v10, v11, 1.0\nv_fma_f32 v11, v12, v11, v11')
    for d in range(8):
        r = t + 2*d
        a(f'v_sub_f32 v{r}, v{r}, v8\nv_sub_f32 v{r+1}, v{r+1}, v8')
        a(f'v_cvt_pk_bf16_f32 v{r}, v{r}, v{r+1}\nv_and_b32 v{r+1}, 0xffff0000, v{r}\nv_lshlrev_b32 v{r}, 16, v{r}')
        a(f'v_mul_f32 v{r}, v{r}, v11\nv_mul_f32 v{r+1}, v{r+1}, v11\nv_cvt_pk_bf16_f32 v{XS+d}, v{r}, v{r+1}')
    a(f'v_add_u32 v7, {L_X}, v7\nds_write_b128 v7, v[{XS}:{XS+3}]\nds_write_b128 v7, v[{XS+4}:{XS+7}] offset:16')
    a('s_and_b32 s54, s2, 31\ns_lshl_b32 s54, s54, 2\ns_add_u32 s54, s54, 128')
    a(f'v_mov_b32 v11, {OOB}\nv_cmp_ne_u32 vcc, 0, v1\nv_cndmask_b32 v11, 0, v11, vcc\nv_mov_b32 v12, 1')
    a('s_waitcnt vmcnt(0) lgkmcnt(0)')
    stamp(1)
    a('buffer_atomic_add v12, v11, s[48:51], s54 offen sc1')
    a('ds_write_b32 v13, v12')
    if stamps: a('s_waitcnt vmcnt(0)'); stamp(2)
    a('L_WB1:')
    srd(36, 12, 4096*2048); srd(40, 20, 3584*2048)
    rb_of('s52', 's53')
    a('s_lshr_b32 s53, s2, 1\ns_and_b32 s53, s53, 12\ns_add_u32 s53, s53, s3')
    a(f's_lshl_b32 s54, s53, 7\ns_mul_i32 s55, s52, {56*2048}\ns_add_u32 s55, s55, s54')
    a('s_lshl_b32 s56, s52, 17\ns_add_u32 s56, s56, s54')
    a(f's_lshl_b32 s57, s53, 14\ns_lshl_b32 s58, s52, 7\ns_add_u32 s57, s57, s58\ns_add_u32 s58, s57, {FP}\ns_add_u32 s57, s57, {SP}')
    a(f'v_mul_u32_u24 v6, {7*2048}, v2\nv_add_u32 v6, v6, v3')
    a('v_and_b32 v7, 3, v2\nv_lshl_add_u32 v7, v7, 12, v3\nv_and_b32 v9, 4, v2\nv_lshl_add_u32 v7, v9, 14, v7')
    a('v_and_b32 v8, 3, v1\nv_lshlrev_b32 v8, 5, v8\nv_and_b32 v9, 8, v1\nv_lshl_add_u32 v8, v9, 1, v8\nv_and_b32 v9, 4, v1\nv_lshl_add_u32 v8, v9, 11, v8')
    a(f'v_mov_b32 v9, {OOB}\nv_cmp_gt_u32 vcc, 16, v1\nv_cndmask_b32 v8, v9, v8, vcc')
    a(f'v_lshrrev_b32 v4, 4, v1\nv_lshlrev_b32 v4, 1, v4\nv_and_b32 v5, 1, v1\nv_add_u32 v4, v4, v5\nv_lshlrev_b32 v4, 4, v4\nv_add_u32 v4, {L_H}, v4')
    for k in range(4): a(f'v_mov_b32 v{L+28+k}, 0')
    stamp(4)
    a('s_cmp_lg_u32 s3, 1\ns_cbranch_scc1 L_WB2')
    ldswait('qseen', L_Q - L_F + 65536, 4)
    a(f's_mul_i32 s88, s52, 224\ns_add_u32 s88, s88, {GP}')
    a('v_and_b32 v11, 7, v1\nv_min_u32 v12, 6, v11\nv_mul_u32_u24 v10, 7, v2\nv_add_lshl_u32 v10, v10, v12, 2')
    for p in range(1, 8): a(f's_add_u32 s{88+p}, s88, {p*14336}')
    gather('hg', [(f'buffer_load_dword v{20+p}, v10, s[28:31], s{88+p} offen sc1', 20+p, 1) for p in range(8)], 30, sleep)
    a('v_add_f32 v20, v20, v21\nv_add_f32 v22, v22, v23\nv_add_f32 v24, v24, v25\nv_add_f32 v26, v26, v27\nv_add_f32 v20, v20, v22\nv_add_f32 v24, v24, v26')
    rbf(20); rbf(24); silu(20, 21); rbf(20)
    a('v_mul_f32 v20, v20, v24\nv_cvt_pk_bf16_f32 v20, v20, v20')
    a('v_cmp_ne_u32 vcc, 7, v11\nv_cndmask_b32 v20, 0, v20, vcc')
    a('v_mov_b32_dpp v21, v20 quad_perm:[0,0,2,2] row_mask:0xf bank_mask:0xf\nv_mov_b32_dpp v22, v20 quad_perm:[1,1,3,3] row_mask:0xf bank_mask:0xf')
    a(f'v_perm_b32 v20, v22, v21, s60\nv_and_b32 v10, 62, v1\nv_lshlrev_b32 v10, 1, v10\nv_add_u32 v10, {L_H}, v10\nds_write_b32 v10, v20')
    a('L_WB2:')
    a('s_waitcnt vmcnt(0)')
    stamp(9)
    a(f's_lshl_b32 s59, s3, 2\ns_add_u32 s59, s59, {L_F+16}\nv_mov_b32 v13, s59')
    ldswait('f2', 8, 1)
    a.vm_reset()
    for i in range(7):
        a.vm_window(wT)
        a(f'buffer_load_dwordx4 v[{L+4*i}:{L+4*i+3}], v6, s[40:43], s55 offen offset:{2048*(i & 1)}{P}', tag=('d', i))
        if i & 1: a('s_add_u32 s55, s55, 4096')
        if i == f3at: a('ds_write_b32 v13, v13')
    for i in range(8):
        a.vm_window(wT)
        if i & 3: a('s_add_u32 s56, s56, 16384')
        elif i: a('s_sub_u32 s56, s56, 49152')
        a(f'buffer_load_dwordx4 v[{L+32+4*i}:{L+32+4*i+3}], v7, s[36:39], s56 offen offset:{2048*(i >> 2)}{P}', tag=('o', i))
        if i + 7 == f3at: a('ds_write_b32 v13, v13')
    ldsdata('hw', [f'ds_read_b128 v[{X}:{X+3}], v4'], range(X, X+4), 20, 1)
    a.vm_wait(('d', 6))
    tile(L, X, True)
    fold_cols(D, 16)
    a('buffer_store_dwordx4 v[16:19], v8, s[28:31], s58 offen sc1', tag='fp')
    for u in range(4):
        a.vm_wait(('o', 2*u+1))
        perms_pair(L+32+8*u, L+32+8*u+4, TB, u)
    stamp(5)
    ldsdata('ow', [f'ds_read_b128 v[{X}:{X+3}], v4 offset:{L_O16-L_H}'], range(X, X+4), 20, 0)
    for j in (0, 6, 1, 7, 2, 4, 3, 5):
        a(f'v_mfma_f32_16x16x32_bf16 v[{D+4*j}:{D+4*j+3}], v[{X}:{X+3}], v[{TB+4*j}:{TB+4*j+3}], 0')
    fold_cols(D, 20)
    a('buffer_store_dwordx4 v[20:23], v8, s[28:31], s57 offen sc1')
    stamp(6)
    finish()

    a('L_A:')
    V, TB, PO, O, S, PP, QL, QH = 128, 96, 64, 48, 32, 24, 64, 80
    a('s_sub_u32 s63, s3, 4')
    a('s_lshr_b32 s52, s2, 6\ns_and_b32 s53, s2, 63')
    a('s_lshl_b32 s54, s52, 23\ns_lshl_b32 s55, s53, 2\ns_add_u32 s55, s55, s63\ns_lshl_b32 s55, s55, 13\ns_add_u32 s54, s54, s55')
    a('s_lshl_b32 s55, s63, 15')
    a('v_lshrrev_b32 v2, 4, v1\nv_and_b32 v3, 15, v1')
    a('v_lshlrev_b32 v4, 2, v2\nv_xor_b32 v4, v4, v3\nv_lshlrev_b32 v4, 4, v4\nv_lshl_add_u32 v5, v2, 8, v4')
    for k in range(1, 4): a(f'v_xor_b32 v{5+k}, {16*k}, v5')
    a(f's_mov_b32 s34, {32*MB}\ns_mov_b32 s35, 0x20000')
    a('s_waitcnt lgkmcnt(0)\ns_mov_b32 s32, s6\ns_mov_b32 s33, s7')
    def a_setup():
        srd(36, 8, 32*MB); srd(28, 26, WSEND); srd(40, 22, 2048); srd(44, 4, 2048)
        a('v_lshlrev_b32 v9, 4, v1')
        a(f's_mul_i32 s57, s63, 4224\ns_add_u32 s57, s57, {L_OR}\nv_add_u32 v10, s57, v9')
        for k in range(4): a(f'v_mov_b32 v{20+k}, -1')
        for k in range(4): a(f'ds_write_b128 v10, v[20:23] offset:{1024*k}')
        a('ds_write_b128 v10, v[20:23] offset:3200')
        a('s_waitcnt lgkmcnt(0)\ns_barrier')
        a('v_and_b32 v14, 3, v3\nv_lshlrev_b32 v14, 2, v14\nv_lshrrev_b32 v15, 2, v3\nv_add_u32 v14, v14, v15\nv_lshlrev_b32 v14, 8, v14\nv_add_u32 v14, s55, v14')
        a('v_xor_b32 v15, v2, v3')
        for s in range(4):
            a(f'v_xor_b32 v{10+s}, {4*s}, v15\nv_lshl_add_u32 v{10+s}, v{10+s}, 4, v14')
        a(f'v_and_b32 v18, 7, v1\nv_mul_u32_u24 v14, 272, v18\nv_lshl_add_u32 v14, v2, 4, v14\nv_add_u32 v14, {L_Q}, v14')
        a('v_cmp_gt_u32 vcc, 8, v3\nv_cndmask_b32 v15, 0, -1, vcc\nv_not_b32 v16, v15')
        a(f'v_lshlrev_b32 v17, 3, v18\nv_add_u32 v17, {L_MLW}, v17')
    a.vm_reset()
    for i in range(32):
        if i % 4 == 0:
            a(f's_add_u32 s56, s54, {(i >> 3)*2*MB + (i & 4)*1024}\ns_add_u32 m0, s55, {i*1024}')
        a.vm_window(sched(sA, i))
        a(f'buffer_load_dwordx4 v{5+(i & 3)}, s[32:35], s56 offen offset:{1024*(i & 3)}{P} lds', tag=('k', i))
        if i == 0: stamp(1)
        if i == sched(sA, 0) - 1: a_setup()
        if i == nF1: a(f'v_mov_b32 v18, {L_F}\nds_write_b32 v18, v18 offset:4')
        if i == nF1b: a(f'v_mov_b32 v18, {L_F}\nds_write_b32 v18, v18 offset:12')
    vn = [0]
    def after_b2():
        stamp(4)
        a(f'v_mov_b32 v23, {L_F}\nds_write_b32 v23, v23 offset:8')
    def vload():
        if vn[0] == 32: return
        if vn[0] == 32 - early2: after_b2()
        i = vn[0]; vn[0] += 1
        if i % 4 == 0: a(f's_add_u32 s56, s54, {(i >> 3)*2*MB + (i & 4)*1024}')
        a.vm_window(sched(sA, 32+i))
        a(f'buffer_load_dwordx4 v[{V+4*i}:{V+4*i+3}], v9, s[36:39], s56 offen offset:{1024*(i & 3)}{P}', tag=('v', i))
    for i in range(nB1): vload()
    a.vm_wait(('k', 31))
    stamp(2)
    ldsdata('qw', [f'ds_read_b128 v[{QL+4*s}:{QL+4*s+3}], v14 offset:{64*s}' for s in range(4)], range(QL, QL+16), 18, 1)
    stamp(3)
    units = [(p, hh, ts) for p in range(2) for hh in range(2) for ts in range(2)]
    def kreads(k):
        p, hh, ts = units[k]
        for s in range(4):
            r = TB + 16*(k & 1) + 4*s
            a(f'ds_read_b128 v[{r}:{r+3}], v{10+s} offset:{(2*p+ts)*8192 + hh*4096}')
    kreads(0); kreads(1)
    for k in range(16): a(f'v_and_b32 v{QH+k}, v16, v{QL+k}\nv_and_b32 v{QL+k}, v15, v{QL+k}')
    vload()
    for k in range(8):
        p, hh, ts = units[k]
        a(f's_waitcnt lgkmcnt({4 if k < 7 else 0})')
        d = S + 8*p + 4*hh
        for s in range(4):
            r = TB + 16*(k & 1) + 4*s; q = (QH if ts else QL) + 4*s
            c = '0' if (ts == 0 and s == 0) else f'v[{d}:{d+3}]'
            a(f'v_mfma_f32_16x16x32_bf16 v[{d}:{d+3}], v[{r}:{r+3}], v[{q}:{q+3}], {c}')
        if k + 2 < 8: kreads(k+2)
        if k in (3, 7): vload()
    a(f's_mov_b32 s57, {SCALE}\ns_mov_b32 s58, {LOG2E}')
    for k in range(0, 16, 2):
        r = S + k
        a(f'v_cvt_pk_bf16_f32 v{r}, v{r}, v{r+1}\nv_and_b32 v{r+1}, 0xffff0000, v{r}\nv_lshlrev_b32 v{r}, 16, v{r}')
        a(f'v_mul_f32 v{r}, s57, v{r}\nv_mul_f32 v{r+1}, s57, v{r+1}')
        a(f'v_cvt_pk_bf16_f32 v{r}, v{r}, v{r+1}\nv_and_b32 v{r+1}, 0xffff0000, v{r}\nv_lshlrev_b32 v{r}, 16, v{r}')
    vload()
    a(f'v_max3_f32 v18, v{S}, v{S+1}, v{S+2}')
    for k in range(3, 15, 2): a(f'v_max3_f32 v18, v18, v{S+k}, v{S+k+1}')
    a(f'v_max_f32 v18, v18, v{S+15}')
    allred_row('v_max_f32', 18, (8,)); allred_xrow('v_max_f32', 18, 20)
    for k in range(16): a(f'v_sub_f32 v{S+k}, v{S+k}, v18\nv_mul_f32 v{S+k}, s58, v{S+k}')
    for k in range(16): a(f'v_exp_f32 v{S+k}, v{S+k}')
    vload()
    a(f'v_add_f32 v19, v{S}, v{S+1}')
    for k in range(2, 16): a(f'v_add_f32 v19, v19, v{S+k}')
    allred_row('v_add_f32', 19, (8,)); allred_xrow('v_add_f32', 19, 20)
    a('s_lshl_b32 s59, s63, 6\nv_add_u32 v20, s59, v17\nds_write_b64 v20, v[18:19]')
    for k in range(8): a(f'v_cvt_pk_bf16_f32 v{PP+k}, v{S+2*k}, v{S+2*k+1}')
    stamp(11)
    for p in range(2):
        for k in range(4):
            src = PP + 4*p + k
            a(f'v_and_b32 v{PO+16*p+k}, v15, v{src}')
            a(f'v_mov_b32_dpp v{PO+16*p+4+k}, v{src} row_shr:8 row_mask:0xf bank_mask:0xf bound_ctrl:1')
            a(f'v_mov_b32_dpp v{PO+16*p+8+k}, v{src} row_shl:8 row_mask:0xf bank_mask:0xf bound_ctrl:1')
            a(f'v_and_b32 v{PO+16*p+12+k}, v16, v{src}')
    mlat = min(vn[0] + 2, 32)
    done = [0]
    def pv_pair():
        pr = done[0]; done[0] += 1
        T, u = pr >> 2, pr & 3
        perms_pair(V+8*pr, V+8*pr+4, TB, u)
        if u == 3:
            for half in range(2):
                for q in range(4):
                    c = '0' if (T == 0 and half == 0) else f'v[{O+4*q}:{O+4*q+3}]'
                    j = q + 4*half; b = PO + 8*T + 4*half
                    a(f'v_mfma_f32_16x16x32_bf16 v[{O+4*q}:{O+4*q+3}], v[{TB+4*j}:{TB+4*j+3}], v[{b}:{b+3}], {c}')
    def ml_pub():
        ldsdata('mlw', [f'ds_read_b64 v[{S+2*w}:{S+2*w+1}], v17 offset:{64*w}' for w in range(4)], range(S, S+8), 20, 0)
        a(f's_lshl_b32 s59, s2, 6\ns_add_u32 s59, s59, {ML}\ns_cmp_eq_u32 s63, 0\ns_cselect_b32 s57, 8, 0')
        a(f'v_lshlrev_b32 v22, 3, v1\nv_mov_b32 v23, {OOB}\nv_cmp_gt_u32 vcc, s57, v1\nv_cndmask_b32 v22, v23, v22, vcc')
        a(f'v_max3_f32 v20, v{S}, v{S+2}, v{S+4}\nv_max_f32 v20, v20, v{S+6}\nv_mul_f32 v20, s58, v20\nv_ceil_f32 v20, v20')
        for w in range(4): a(f'v_fma_f32 v{S+2*w}, v{S+2*w}, s58, -v20\nv_exp_f32 v{S+2*w}, v{S+2*w}')
        a('v_fma_f32 v18, v18, s58, -v20\nv_exp_f32 v18, v18')
        a(f'v_mul_f32 v21, v{S}, v{S+1}')
        for w in range(1, 4): a(f'v_fmac_f32 v21, v{S+2*w}, v{S+2*w+1}')
        a('buffer_store_dwordx2 v[20:21], v22, s[28:31], s59 offen sc1', tag='ml')
        stamp(10)
    if vn[0] == mlat: ml_pub()
    while vn[0] < 32:
        vload()
        if vn[0] == mlat: ml_pub()
        landed = vn[0] - sched(sA, 31+vn[0])
        k = 0
        while 2*done[0] + 2 <= landed and k < 2:
            pv_pair(); k += 1
    if early2 == 0: after_b2()
    a(f'v_and_b32 v5, 7, v1\nv_mul_u32_u24 v5, 528, v5\nv_lshl_add_u32 v5, v2, 7, v5\nv_and_b32 v6, 8, v1\nv_lshl_add_u32 v5, v6, 3, v5')
    a(f's_mul_i32 s57, s63, 4224\ns_add_u32 s57, s57, {L_OR}\nv_add_u32 v5, s57, v5')
    a(f'v_lshrrev_b32 v6, 5, v1\nv_add_lshl_u32 v6, v6, v1, 4')
    a(f's_mul_i32 s57, s63, 1056\ns_add_u32 s57, s57, {L_OR}\nv_add_u32 v6, s57, v6')
    a('v_lshlrev_b32 v7, 13, v2\nv_lshl_add_u32 v7, v3, 3, v7')
    a(f's_lshl_b32 s56, s52, 17\ns_lshl_b32 s57, s63, 15\ns_add_u32 s56, s56, s57\ns_lshl_b32 s57, s53, 7\ns_add_u32 s56, s56, s57\ns_add_u32 s56, s56, {OP}')
    rb_of('s48', 's57')
    a(f's_lshl_b32 s54, s48, 2\ns_and_b32 s54, s54, 56\ns_lshl_b32 s57, s52, 12\ns_add_u32 s54, s54, s57\ns_add_u32 s54, s54, {ML}')
    a(f's_lshl_b32 s48, s48, 13\ns_add_u32 s48, s48, {OP}\ns_add_u32 s49, s48, 4096')
    a('v_and_b32 v10, 1, v1\nv_lshlrev_b32 v10, 4, v10\nv_mov_b32 v11, 0xffff\nv_lshlrev_b32 v10, v10, v11\nv_bfe_u32 v11, v1, 1, 2')
    for d in range(4): a(f'v_cmp_eq_u32 vcc, {d}, v11\nv_cndmask_b32 v{24+d}, 0, v10, vcc')
    a('v_and_b32 v8, 7, v1\nv_lshlrev_b32 v8, 9, v8\nv_lshrrev_b32 v10, 3, v1\nv_lshl_add_u32 v8, v10, 6, v8')
    a(f'v_and_b32 v10, 7, v1\nv_lshlrev_b32 v10, 4, v10\nv_lshl_add_u32 v10, v2, 3, v10\nv_add_u32 v10, {L_O16}, v10')
    a('s_and_b32 s50, s2, 7\ns_lshr_b32 s51, s2, 3\ns_lshl_b32 s50, s50, 5\ns_add_u32 s50, s50, s51\ns_lshl_b32 s55, s50, 3')
    a(f's_lshr_b32 s51, s50, 3\ns_lshl_b32 s51, s51, 13\ns_and_b32 s50, s50, 7\ns_lshl_b32 s50, s50, 4\ns_add_u32 s50, s50, s51\ns_add_u32 s51, s50, {FP}\ns_add_u32 s50, s50, {SP}')
    a('v_lshlrev_b32 v11, 7, v1\nv_lshlrev_b32 v12, 1, v2')
    a(f'v_mov_b32 v13, {OOB}\nv_cmp_eq_u32 vcc, 0, v3\nv_cndmask_b32 v13, v13, v12, vcc')
    while done[0] < 16:
        a.vm_wait(('v', 2*done[0]+1))
        pv_pair()
    stamp(5)
    for q in range(4):
        for k in range(4): a(f'v_mul_f32 v{O+4*q+k}, v18, v{O+4*q+k}')
        a(f'ds_write_b128 v5, v[{O+4*q}:{O+4*q+3}] offset:{16*q}')
    ldsdata('orw', [f'ds_read_b128 v[{S+4*w}:{S+4*w+3}], v6 offset:{4224*w}' for w in range(4)], range(S, S+16), 20, 0)
    for k in range(0, 4, 2): a(f'v_pk_add_f32 v[{S+k}:{S+k+1}], v[{S+k}:{S+k+1}], v[{S+4+k}:{S+5+k}]\nv_pk_add_f32 v[{S+8+k}:{S+9+k}], v[{S+8+k}:{S+9+k}], v[{S+12+k}:{S+13+k}]')
    for k in range(0, 4, 2): a(f'v_pk_add_f32 v[{S+k}:{S+k+1}], v[{S+k}:{S+k+1}], v[{S+8+k}:{S+9+k}]')
    a(f'v_cvt_pk_bf16_f32 v20, v{S}, v{S+1}\nv_cvt_pk_bf16_f32 v21, v{S+2}, v{S+3}')
    a(f'buffer_store_dwordx2 v[20:21], v7, s[28:31], s56 offen sc1')
    stamp(6)
    a('s_cmp_ge_u32 s63, 2\ns_cbranch_scc1 L_Aend')
    a(f'v_mov_b32 v14, {L_F+16}')
    a('s_cmp_eq_u32 s63, 1\ns_cbranch_scc1 L_fin')
    G, SEL = 64, 128
    gather('mlg', [('buffer_load_dwordx2 v[16:17], v8, s[28:31], s54 offen sc1', 16, 2)], 22, 4)
    a('v_mov_b32 v22, v16')
    allred_row('v_max_f32', 22); allred_xrow('v_max_f32', 22, 23)
    a('v_sub_f32 v16, v16, v22\nv_cvt_i32_f32 v16, v16\nv_ldexp_f32 v16, 1.0, v16\nv_mul_f32 v17, v16, v17')
    allred_row('v_add_f32', 17); allred_xrow('v_add_f32', 17, 23)
    a('v_rcp_f32 v17, v17\nv_perm_b32 v16, v16, v16, s61')
    for n in range(8):
        a(f'v_mov_b32_dpp v{SEL+32+n}, v16 row_newbcast:{n} row_mask:0xf bank_mask:0x3')
    for n in range(8):
        a(f'v_mov_b32_dpp v{SEL+32+n}, v16 row_newbcast:{8+n} row_mask:0xf bank_mask:0xc')
    for n in range(8):
        for d in range(4): a(f'v_and_b32 v{SEL+4*n+d}, v{SEL+32+n}, v{24+d}')
    stamp(9)
    ldsdata('f3', ['ds_read_b128 v[28:31], v14'], range(28, 32), 22, 1)
    def spec():
        for n in range(8):
            c = '0' if n == 0 else f'v[{S}:{S+3}]'
            a(f'v_mfma_f32_16x16x32_bf16 v[{S}:{S+3}], v[{SEL+4*n}:{SEL+4*n+3}], v[{G+4*n}:{G+4*n+3}], {c}')
    gather('og', [(f'buffer_load_dwordx4 v[{G+4*n}:{G+4*n+3}], v9, s[28:31], s{48+(n >> 2)} offen offset:{1024*(n & 3)} sc1', G+4*n, 4) for n in range(8)], 112, 0, spec=spec)
    stamp(8)
    for k in range(4): a(f'v_mul_f32 v{S+4+k}, v17, v{S+k}\nv_mul_f32 v{S+k}, v17, v{S+k}')
    for k in range(4): a(f'v_permlane32_swap_b32 v{S+4+k}, v{S+k}')
    for k in range(4): a(f'v_add_f32_dpp v{S+k}, v{S+k}, v{S+4+k} row_ror:8 row_mask:0xf bank_mask:0xf')
    a(f'v_cvt_pk_bf16_f32 v20, v{S}, v{S+1}\nv_cvt_pk_bf16_f32 v21, v{S+2}, v{S+3}')
    a('s_mov_b64 exec, 0x00ff00ff\nds_write_b64 v10, v[20:21]\ns_waitcnt lgkmcnt(0)')
    a('s_branch L_Aend')
    a('L_fin:')
    ldsdata('f3b', ['ds_read_b128 v[28:31], v14'], range(28, 32), 22, 1)
    a('buffer_load_ushort v14, v12, s[44:47], s55 offen')
    gather('fg', [('buffer_load_dwordx4 v[24:27], v11, s[28:31], s51 offen sc1', 24, 4)], 20, 2)
    a('buffer_load_dwordx4 v[28:31], v11, s[28:31], s50 offen sc1')
    red4(24); allred_row('v_add_f32', 24)
    rbf(24); silu(24, 25); rbf(24)
    a('v_lshlrev_b32 v14, 16, v14')
    stamp(8)
    gather('sg', [('buffer_load_dwordx4 v[28:31], v11, s[28:31], s50 offen sc1', 28, 4)], 20, 0, first=False)
    stamp(9)
    red4(28); allred_row('v_add_f32', 28)
    rbf(28)
    a('v_mul_f32 v28, v28, v24'); rbf(28)
    a('v_add_f32 v28, v28, v14\nv_cvt_pk_bf16_f32 v28, v28, v28')
    a('buffer_store_short v28, v13, s[40:43], s55 offen')
    a('L_Aend:')
    finish()
    a('L_exit:\ns_endpgm')
    a.raw(f'''.section .rodata,"a"
.p2align 6
.amdhsa_kernel {KNAME}
  .amdhsa_next_free_vgpr 256
  .amdhsa_next_free_sgpr 96
  .amdhsa_accum_offset 256
  .amdhsa_group_segment_fixed_size 0
  .amdhsa_kernarg_size 96
  .amdhsa_user_sgpr_count 2
  .amdhsa_user_sgpr_kernarg_segment_ptr 1
  .amdhsa_system_sgpr_workgroup_id_x 1
  .amdhsa_float_denorm_mode_32 3
.end_amdhsa_kernel''')
    return a.text()

if __name__ == '__main__':
    out = sys.argv[1]
    kw = eval('dict(' + (sys.argv[2] if len(sys.argv) > 2 else '') + ')')
    open(out, 'w').write(gen(**kw))
```

```python
import sys
sys.path.insert(0, 'work')
from asmlib import Asm

KNAME = 'recurrent_scan__gqa_block_cached__swiglu_ffn__decode_kernel'
MB = 1 << 20
GU = 0
EP = 245760
SP, FP, OP = 262144, 524288, 786432
ML, QF, QP, WSEND = 1310720, 1327104, 1343488, 1474560
STAMPS = 8 * MB
L_K, L_OR, L_X, L_Q = 0, 131072, 147968, 150016
L_MLW, L_H, L_O16, L_F, L_QR, L_GR, L_END = 152192, 152512, 152640, 152768, 153088, 155136, 157184
F0, F1, FT, F3 = 0, 4, 12, 16
OOB = 0x40000000
LOG2E = 0x3fb8aa3b
SCALE = 0x3db504f3
SPIN = 400000
CMIX = 0x9e3779b9
SH12 = (0, 12, 20, 6)

HEADER = open('recurrent_scan__gqa_block_cached__swiglu_ffn__decode.s.ref').read().split('; Override')[0]

def gen(pol='nt', win=((0,6),), nX=18, nB1=10, nF1=24, shu=2, shg=1, f3at=14,
        pref=True, stamps=False, sleep=8):
    a = Asm()
    P = {'nt': ' nt', 'plain': ''}[pol]
    def sched(sc, i): return [w for (st, w) in sc if st <= i][-1]
    def stamp(k):
        if stamps: a(f's_memrealtime s[{64+2*k}:{65+2*k}]')
    def srd(d, p, size):
        a(f's_mov_b32 s{d}, s{p}\ns_mov_b32 s{d+1}, s{p+1}\ns_mov_b32 s{d+2}, {size}\ns_mov_b32 s{d+3}, 0x20000')
    def allred_row(op, v, steps=(8, 4, 2, 1)):
        for r in steps: a(f'{op}_dpp v{v}, v{v}, v{v} row_ror:{r} row_mask:0xf bank_mask:0xf')
    def allred_xrow(op, v, t):
        a(f'v_mov_b32 v{t}, v{v}\nv_permlane16_swap_b32 v{t}, v{v}\n{op} v{v}, v{v}, v{t}')
        a(f'v_mov_b32 v{t}, v{v}\nv_permlane32_swap_b32 v{t}, v{v}\n{op} v{v}, v{v}, v{t}')
    def rbf(v):
        a(f'v_cvt_pk_bf16_f32 v{v}, v{v}, v{v}\nv_lshlrev_b32 v{v}, 16, v{v}')
    def perms_pair(La, Lb, TB, u):
        for d in range(4):
            a(f'v_perm_b32 v{TB+4*(2*d)+u}, v{Lb+d}, v{La+d}, s60')
            a(f'v_perm_b32 v{TB+4*(2*d+1)+u}, v{Lb+d}, v{La+d}, s61')
    def tree(op2, op3, regs, t):
        regs = list(regs)
        if len(regs) == 2:
            a(f'{op2} v{t}, v{regs[0]}, v{regs[1]}'); return
        a(f'{op3} v{t}, v{regs[0]}, v{regs[1]}, v{regs[2]}')
        regs = regs[3:]
        while len(regs) >= 2:
            a(f'{op3} v{t}, v{t}, v{regs[0]}, v{regs[1]}'); regs = regs[2:]
        if regs: a(f'{op2} v{t}, v{t}, v{regs[0]}')
    def umax(regs, t): tree('v_max_u32', 'v_max3_u32', regs, t)
    def orall(regs, t): tree('v_or_b32', 'v_or3_b32', regs, t)
    def again(lbl): a(f's_sub_u32 s62, s62, 1\ns_cmp_gt_i32 s62, 0\ns_cbranch_scc1 {lbl}')
    def retry(lbl_loop, lbl_done, slp):
        a(f's_cbranch_vccz {lbl_done}')
        if slp: a(f's_sleep {slp}')
        again(lbl_loop)
        a(f'{lbl_done}:')
    def gather(name, loads, clean, tag, mask, tmp, slp, mode, first=True, each=None, pre=None):
        n = len(loads)
        if first:
            for t, _, _ in loads: a(t)
        a(f'L_{name}:')
        tk = []; c0 = clean
        for k, (_, r, c) in enumerate(loads):
            if k == 0 or (first and each): a(f's_waitcnt vmcnt({n-1-k if (first and each) else 0})')
            for d in range(c): a(f'v_xor_b32 v{c0+d}, {tag(k, d)}, v{r+d}')
            if pre: pre(c0, tmp+k); tk.append(tmp+k)
            elif c > 1: orall(range(c0, c0+c), tmp+k); tk.append(tmp+k)
            else: tk.append(c0)
            if each: each(k, c0)
            c0 += c
        if n > 1: orall(tk, tmp+n)
        a(f'v_and_b32 v{tmp+n}, {mask}, v{tmp+n if n > 1 else tk[0]}\nv_cmp_ne_u32 vcc, 0, v{tmp+n}')
        a(f's_cbranch_vccz L_{name}_ok')
        if slp: a(f's_sleep {slp}')
        for k, (t, _, _) in enumerate(loads):
            if n > 1 or mode == 'line8':
                a(f'v_and_b32 v{tmp+n}, {mask}, v{tk[k]}')
                if mode == 'line8':
                    for m in ('quad_perm:[1,0,3,2]', 'quad_perm:[2,3,0,1]', 'row_half_mirror'):
                        a(f'v_or_b32_dpp v{tmp+n}, v{tmp+n}, v{tmp+n} {m} row_mask:0xf bank_mask:0xf')
                a(f'v_cmp_ne_u32 vcc, 0, v{tmp+n}\ns_cbranch_vccz L_{name}_s{k}')
            if mode == 'instr': a(t)
            else: a(f's_mov_b64 exec, vcc\n{t}\ns_mov_b64 exec, -1')
            if n > 1 or mode == 'line8': a(f'L_{name}_s{k}:')
        a('s_waitcnt vmcnt(0)')
        again(f'L_{name}')
        a(f'L_{name}_ok:')
    def ldswait(name, addr, slp):
        a(f'v_mov_b32 v12, {addr}\nL_{name}:')
        a(f'ds_read_b32 v11, v12\ns_waitcnt lgkmcnt(0)\nv_cmp_eq_u32 vcc, -1, v11')
        retry(f'L_{name}', f'L_{name}_ok', slp)
    def ldsdata(name, reads, regs, t, slp):
        a(f'L_{name}:')
        for r in reads: a(r)
        a('s_waitcnt lgkmcnt(0)')
        umax(regs, t)
        a(f'v_cmp_eq_u32 vcc, -1, v{t}')
        retry(f'L_{name}', f'L_{name}_ok', slp)
    def get_tag(t):
        a(f'v_mov_b32 v{t}, {L_F}\nds_read_b32 v{t}, v{t} offset:{FT}\ns_waitcnt lgkmcnt(0)\nv_readfirstlane_b32 s96, v{t}')
    def tags(bits, shifts, s0=97):
        for d, sh in enumerate(shifts): a(f's_bfe_u32 s{s0+d}, s96, {(bits << 16) | sh}')
    def put_tag(r, n, bits, vm, s0=97):
        for d in range(n): a(f'v_add_u32 v{r+d}, {1 << (bits-1)}, v{r+d}')
        for d in range(n): a(f'v_and_or_b32 v{r+d}, v{r+d}, v{vm}, s{s0+d}')
    def silu(v, t):
        a(f'v_mul_f32 v{t}, 0xbfb8aa3b, v{v}\nv_exp_f32 v{t}, v{t}\nv_add_f32 v{t}, 1.0, v{t}\nv_rcp_f32 v{t}, v{t}\nv_mul_f32 v{v}, v{v}, v{t}')
    def fold_cols(D, o):
        for k in range(4):
            a(f'v_add_f32_dpp v{o+k}, v{D+4*k+1}, v{D+4*k} row_ror:8 row_mask:0xf bank_mask:0x3')
            a(f'v_add_f32_dpp v{o+((k+2)&3)}, v{D+4*(((k+2)&3)+4)}, v{D+4*(((k+2)&3)+4)+1} row_ror:8 row_mask:0xf bank_mask:0xc')
    def red4(r):
        a(f'v_permlane32_swap_b32 v{r}, v{r+2}\nv_permlane32_swap_b32 v{r+1}, v{r+3}')
        a(f'v_add_f32 v{r}, v{r}, v{r+2}\nv_add_f32 v{r+1}, v{r+1}, v{r+3}')
        a(f'v_permlane16_swap_b32 v{r}, v{r+1}\nv_add_f32 v{r}, v{r}, v{r+1}')
    def rb_of(d, t):
        a(f's_lshr_b32 {d}, s2, 5\ns_lshl_b32 {d}, {d}, 3\ns_and_b32 {t}, s2, 7\ns_add_u32 {d}, {d}, {t}')
    def consts():
        a(f's_mov_b32 s60, 0x05040100\ns_mov_b32 s61, 0x07060302\ns_mov_b32 s62, {SPIN}')
        srd(28, 26, WSEND)
    def finish():
        if stamps:
            stamp(7)
            a('s_waitcnt lgkmcnt(0)')
            a('s_lshl_b32 s52, s2, 3\ns_add_u32 s52, s52, s3\ns_lshl_b32 s52, s52, 7')
            a(f's_add_u32 s54, s26, {STAMPS}\ns_addc_u32 s55, s27, 0')
            a('v_mov_b32 v2, s52\ns_mov_b64 exec, 1')
            for k in range(6):
                a(f'v_mov_b32 v4, s{64+4*k}\nv_mov_b32 v5, s{65+4*k}\nv_mov_b32 v6, s{66+4*k}\nv_mov_b32 v7, s{67+4*k}')
                a(f'global_store_dwordx4 v2, v[4:7], s[54:55] offset:{16*k}\ns_nop 1')
        a('s_endpgm')
    def zstamps():
        if stamps:
            for k in range(68, 88, 2): a(f's_mov_b64 s[{k}:{k+1}], 0')

    a.raw(HEADER.rstrip())
    a.raw(f'; @launch grid=(256,1,1) block=(512,1,1) lds={L_END}')
    a.raw('.amdgcn_target "amdgcn-amd-amdhsa--gfx950"\n.text')
    a.raw(f'.globl {KNAME}\n.p2align 8\n.type {KNAME},@function\n{KNAME}:')
    stamp(0)
    a('s_load_dwordx16 s[4:19], s[0:1], 0\ns_load_dwordx8 s[20:27], s[0:1], 64')
    a('v_lshrrev_b32 v2, 6, v0\nv_and_b32 v1, 63, v0\nv_readfirstlane_b32 s3, v2')
    a('s_cmp_ge_u32 s2, 256\ns_cbranch_scc1 L_exit')
    a('s_cmp_ge_u32 s3, 4\ns_cbranch_scc1 L_S')
    XS = 40
    a('s_setprio 2')
    a('s_cmp_lg_u32 s3, 0\ns_cbranch_scc1 L_H123')
    if pref:
        a(f's_getpc_b64 s[56:57]\nL_pc:\ns_lshr_b32 s58, s2, 3\ns_mulk_i32 s58, 640\nv_and_b32 v2, 7, v1\nv_lshl_add_u32 v2, v2, 7, s58')
        a(f'v_min_u32 v2, L_exit-L_pc, v2\nglobal_load_dword v255, v2, s[56:57]')
    a(f'v_lshlrev_b32 v7, 5, v1\nv_mov_b32 v8, {EP}\ns_waitcnt lgkmcnt(0)')
    a(f'global_load_dwordx4 v[{XS}:{XS+3}], v7, s[4:5]\nglobal_load_dwordx4 v[{XS+4}:{XS+7}], v7, s[4:5] offset:16')
    a('global_load_dword v14, v8, s[26:27] sc1')
    stamp(1)
    a('s_branch L_H0')

    a('L_S:')
    V, TB, PO, O, S, PP, QL, QH, D, X = 128, 96, 64, 48, 32, 24, 64, 80, 64, 32
    n_ld = [0]
    def pace():
        a.vm_window(sched(win, n_ld[0])); n_ld[0] += 1
    a('s_sub_u32 s63, s3, 4')
    a('s_and_b32 s55, s2, 7\ns_lshr_b32 s54, s2, 3')
    a('s_lshl2_add_u32 s53, s55, s63\ns_lshl_b32 s52, s53, 10\ns_add_u32 s52, s52, s54\ns_lshl_b32 s52, s52, 8')
    a('v_lshrrev_b32 v2, 4, v1\nv_and_b32 v3, 15, v1\nv_lshlrev_b32 v4, 4, v3\nv_lshl_add_u32 v6, v2, 16, v4')
    a('s_movk_i32 s57, 0x2000\ns_lshl_b32 s34, s57, 10\ns_mov_b32 s35, 0x20000\ns_waitcnt lgkmcnt(0)\ns_mov_b64 s[32:33], s[10:11]')
    a.vm_reset()
    def s_setup():
        stamp(1)
        a('v_lshlrev_b32 v9, 4, v1')
        a(f's_mul_i32 s58, s63, 4224\ns_add_u32 s58, s58, {L_OR}\nv_add_u32 v10, s58, v9')
        for k in range(4): a(f'v_mov_b32 v{20+k}, -1')
        for k in range(4): a(f'ds_write_b128 v10, v[20:23] offset:{1024*k}')
        a('ds_write_b128 v10, v[20:23] offset:3200')
        zstamps(); consts()
        a(f's_cmp_ge_u32 s63, 2\ns_cselect_b64 s[36:37], s[18:19], s[16:17]\ns_cselect_b32 s58, {shu}, {shg}')
        a(f's_mov_b32 s38, {1024*7168}\ns_mov_b32 s39, 0x20000')
        a('s_add_u32 s58, s58, s54\ns_cmp_ge_u32 s58, 28\ns_cselect_b32 s59, 28, 0\ns_sub_u32 s58, s58, s59\ns_lshl_b32 s58, s58, 8')
        a(f's_and_b32 s59, s63, 1\ns_lshl1_add_u32 s59, s55, s59\ns_mul_i32 s50, s59, {64*7168}\ns_add_u32 s50, s50, s58')
        a(f'v_mul_u32_u24 v7, {8*7168}, v2\nv_add_u32 v7, v7, v4')
        a(f's_lshl_b32 s53, s53, 6\ns_add_u32 s53, s53, {L_X}\nv_lshl_add_u32 v12, v2, 4, s53')
        a(f's_lshl_b32 s59, s59, 7\ns_add_u32 s59, s59, {L_X}\nv_lshl_add_u32 v13, v2, 4, s59')
        a(f's_lshl_b32 s59, s63, 9\ns_add_u32 s59, s59, {L_QR}\nv_lshlrev_b32 v14, 5, v3\nv_lshl_add_u32 v14, v2, 4, v14\nv_add_u32 v14, s59, v14')
        a('s_waitcnt lgkmcnt(0)\ns_barrier')
    for i in range(8):
        pace()
        a(f'buffer_load_dwordx4 v[{V+4*i}:{V+4*i+3}], v6, s[32:35], s52 offen{P}', tag=('q', i))
        if i < 7: a('s_add_u32 s52, s52, s57')
        if i == min(sched(win, 0), 8) - 1: s_setup()
    def kv_setup():
        a('s_lshr_b32 s52, s2, 6\ns_and_b32 s53, s2, 63')
        a('s_lshl_b32 s54, s52, 8\ns_add_u32 s54, s54, s53\ns_lshl2_add_u32 s54, s54, s63\ns_lshl_b32 s54, s54, 13')
        a('s_lshl_b32 s55, s63, 15')
        a('v_lshlrev_b32 v5, 6, v2\nv_xor_b32 v5, v5, v4\nv_lshl_add_u32 v16, v2, 8, v5')
        for k in range(1, 4): a(f'v_xor_b32 v{16+k}, {16*k}, v16')
        srd(40, 6, 32*MB); srd(44, 8, 32*MB)
    kv_setup()
    def tile_ops(Lb, Xr, first):
        ops = [(lambda u=u: perms_pair(Lb+8*u, Lb+8*u+4, TB, u)) for u in range(4)]
        def mf():
            for j in range(8):
                c = '0' if first else f'v[{D+4*j}:{D+4*j+3}]'
                a(f'v_mfma_f32_16x16x32_bf16 v[{D+4*j}:{D+4*j+3}], v[{Xr}:{Xr+3}], v[{TB+4*j}:{TB+4*j+3}], {c}')
        return ops + [mf]
    def pack128(off):
        for k in range(4): a(f'v_mov_b32 v{20+k}, v{D+4*k}')
        for k in range(4): a(f'v_mov_b32_dpp v{20+k}, v{D+16+4*k} quad_perm:[0,1,2,3] row_mask:0x2 bank_mask:0xf')
        a(f's_mov_b32 exec_hi, 0\nds_write_b128 v14, v[20:23] offset:{off}\ns_mov_b32 exec_hi, -1')
    def xwait(name, gu):
        a(f'v_mov_b32 v20, {L_F}\nL_{name}:\nds_read_b32 v21, v20 offset:{F0}\ns_waitcnt lgkmcnt(0)\nv_cmp_eq_u32 vcc, -1, v21')
        retry(f'L_{name}', f'L_{name}_ok', 1)
        a(f'ds_read_b128 v[{X}:{X+3}], v12')
        if gu: a(f'ds_read_b128 v[{X+4}:{X+7}], v13\nds_read_b128 v[{X+8}:{X+11}], v13 offset:64')
        a('s_waitcnt lgkmcnt(0)')
    def kload(i):
        if i % 4 == 0:
            a(f's_add_u32 m0, s55, {i*1024}\ns_add_u32 s56, s54, {(i >> 3)*2*MB + (i & 4)*1024}')
        pace()
        a(f'buffer_load_dwordx4 v{16+(i & 3)}, s[40:43], s56 offen offset:{1024*(i & 3)}{P} lds', tag=('k', i))
        if i == nF1: a(f'v_mov_b32 v20, {L_F}\nds_write_b32 v20, v20 offset:{F1}')
    KJ = 16
    def phase1(gu):
        seq = ([('g', i) for i in range(16)] if gu else []) + [('k', i) for i in range(KJ)]
        work = [(None, lambda: xwait('xw%d' % gu, gu))]
        work += [(('q', 7), f) for f in tile_ops(V, X, True)] + [(None, lambda: (pack128(0), stamp(10)))]
        if gu:
            work += [(('g', 7), f) for f in tile_ops(V+32, X+4, True)] + [(('g', 15), f) for f in tile_ops(V+64, X+8, False)]
            work += [(None, lambda: pack128(L_GR-L_QR))]
        for n, (kind, i) in enumerate(seq):
            if kind == 'g':
                pace()
                a(f'buffer_load_dwordx4 v[{V+32+4*i}:{V+32+4*i+3}], v7, s[36:39], s50 offen{P}', tag=('g', i))
                if i < 15: a(f's_add_u32 s50, s50, {7168*25 if i == 7 else 7168}')
            else: kload(i)
            if n + 9 < nX: continue
            st = [t for t in a.vm if isinstance(t, tuple)]
            landed = st[:len(st) - sched(win, n_ld[0]-1)]
            k = 0
            while work and k < 3 and (work[0][0] is None or work[0][0] in landed):
                work.pop(0)[1](); k += 1
        assert not work
    vm0, n0 = list(a.vm), n_ld[0]
    a('s_cmp_ge_u32 s2, 224\ns_cbranch_scc0 L_gu')
    n_ld[0] = n0 + 16
    phase1(0)
    a('s_branch L_kj')
    a('L_gu:')
    a.vm = list(vm0); n_ld[0] = n0
    phase1(1)
    a('L_kj:')
    a('v_and_b32 v14, 3, v3\nv_lshlrev_b32 v14, 2, v14\nv_lshrrev_b32 v15, 2, v3\nv_add_u32 v14, v14, v15\nv_lshlrev_b32 v14, 8, v14\nv_add_u32 v14, s55, v14')
    a('v_xor_b32 v15, v2, v3')
    for s in range(4):
        a(f'v_xor_b32 v{10+s}, {4*s}, v15\nv_lshl_add_u32 v{10+s}, v{10+s}, 4, v14')
    for i in range(KJ, 32): kload(i)
    a(f'v_and_b32 v8, 7, v1\nv_mul_u32_u24 v14, 272, v8\nv_lshl_add_u32 v14, v2, 4, v14\nv_add_u32 v14, {L_Q}, v14')
    a('v_cmp_gt_u32 vcc, 8, v3\nv_cndmask_b32 v15, 0, -1, vcc\nv_not_b32 v16, v15')
    a(f'v_lshlrev_b32 v17, 3, v8\nv_add_u32 v17, {L_MLW}, v17')
    vn = [0]
    def vload():
        i = vn[0]; vn[0] += 1
        assert i < 32
        if i % 4 == 0: a(f's_add_u32 s56, s54, {(i >> 3)*2*MB + (i & 4)*1024}')
        pace()
        a(f'buffer_load_dwordx4 v[{V+4*i}:{V+4*i+3}], v9, s[44:47], s56 offen offset:{1024*(i & 3)}{P}', tag=('v', i))
    for i in range(nB1): vload()
    a.vm_wait(('k', 31))
    stamp(2)
    ldsdata('qw', [f'ds_read_b128 v[{QL+4*s}:{QL+4*s+3}], v14 offset:{64*s}' for s in range(4)], range(QL, QL+16), 18, 1)
    stamp(3)
    units = [(p, hh, ts) for p in range(2) for hh in range(2) for ts in range(2)]
    def kreads(k):
        p, hh, ts = units[k]
        for s in range(4):
            r = TB + 16*(k & 1) + 4*s
            a(f'ds_read_b128 v[{r}:{r+3}], v{10+s} offset:{(2*p+ts)*8192 + hh*4096}')
    kreads(0); kreads(1)
    vload()
    for k in range(16): a(f'v_and_b32 v{QH+k}, v16, v{QL+k}\nv_and_b32 v{QL+k}, v15, v{QL+k}')
    for k in range(8):
        p, hh, ts = units[k]
        a(f's_waitcnt lgkmcnt({4 if k < 7 else 0})')
        d = S + 8*p + 4*hh
        for s in range(4):
            r = TB + 16*(k & 1) + 4*s; q = (QH if ts else QL) + 4*s
            c = '0' if (ts == 0 and s == 0) else f'v[{d}:{d+3}]'
            a(f'v_mfma_f32_16x16x32_bf16 v[{d}:{d+3}], v[{r}:{r+3}], v[{q}:{q+3}], {c}')
        if k + 2 < 8: kreads(k+2)
        if k in (1, 4, 7): vload()
    a(f's_mov_b32 s57, {SCALE}\ns_mov_b32 s58, {LOG2E}')
    for k in range(0, 16, 2):
        r = S + k
        a(f'v_cvt_pk_bf16_f32 v{r}, v{r}, v{r+1}\nv_and_b32 v{r+1}, 0xffff0000, v{r}\nv_lshlrev_b32 v{r}, 16, v{r}')
        a(f'v_mul_f32 v{r}, s57, v{r}\nv_mul_f32 v{r+1}, s57, v{r+1}')
        a(f'v_cvt_pk_bf16_f32 v{r}, v{r}, v{r+1}\nv_and_b32 v{r+1}, 0xffff0000, v{r}\nv_lshlrev_b32 v{r}, 16, v{r}')
    vload()
    tree('v_max_f32', 'v_max3_f32', range(S, S+16), 18)
    allred_row('v_max_f32', 18, (8,)); allred_xrow('v_max_f32', 18, 20)
    for k in range(16): a(f'v_sub_f32 v{S+k}, v{S+k}, v18\nv_mul_f32 v{S+k}, s58, v{S+k}')
    vload()
    for k in range(16): a(f'v_exp_f32 v{S+k}, v{S+k}')
    a(f'v_add_f32 v19, v{S}, v{S+1}')
    for k in range(2, 16): a(f'v_add_f32 v19, v19, v{S+k}')
    allred_row('v_add_f32', 19, (8,)); allred_xrow('v_add_f32', 19, 20)
    a('s_lshl_b32 s59, s63, 6\nv_add_u32 v20, s59, v17\nds_write_b64 v20, v[18:19]')
    vload()
    for k in range(8): a(f'v_cvt_pk_bf16_f32 v{PP+k}, v{S+2*k}, v{S+2*k+1}')
    stamp(11)
    for p in range(2):
        for k in range(4):
            src = PP + 4*p + k
            a(f'v_and_b32 v{PO+16*p+k}, v15, v{src}')
            a(f'v_mov_b32_dpp v{PO+16*p+4+k}, v{src} row_shr:8 row_mask:0xf bank_mask:0xf bound_ctrl:1')
            a(f'v_mov_b32_dpp v{PO+16*p+8+k}, v{src} row_shl:8 row_mask:0xf bank_mask:0xf bound_ctrl:1')
            a(f'v_and_b32 v{PO+16*p+12+k}, v16, v{src}')
    def pv_pair(pr):
        T, u = pr >> 2, pr & 3
        perms_pair(V+8*pr, V+8*pr+4, TB, u)
        if u == 3:
            for half in range(2):
                for q in range(4):
                    c = '0' if (T == 0 and half == 0) else f'v[{O+4*q}:{O+4*q+3}]'
                    j = q + 4*half; b = PO + 8*T + 4*half
                    a(f'v_mfma_f32_16x16x32_bf16 v[{O+4*q}:{O+4*q+3}], v[{TB+4*j}:{TB+4*j+3}], v[{b}:{b+3}], {c}')
    def tail_setup1():
        srd(32, 12, 4096*2048); srd(36, 20, 3584*2048)
        rb_of('s52', 's53')
        a('s_lshr_b32 s53, s2, 1\ns_and_b32 s53, s53, 12\ns_add_u32 s53, s53, s63')
        a(f's_lshl_b32 s57, s53, 7\ns_mul_i32 s48, s52, {56*2048}\ns_add_u32 s48, s48, s57')
        a('s_lshl_b32 s49, s52, 17\ns_add_u32 s49, s49, s57')
        a(f's_lshl_b32 s50, s53, 14\ns_lshl_b32 s51, s52, 7\ns_add_u32 s50, s50, s51\ns_add_u32 s51, s50, {FP}\ns_add_u32 s50, s50, {SP}')
        a(f'v_lshrrev_b32 v20, 3, v1\nv_lshlrev_b32 v21, 4, v8\nv_mul_u32_u24 v6, {7*2048}, v20\nv_add_u32 v6, v6, v21')
        a('v_and_b32 v7, 3, v20\nv_lshl_add_u32 v7, v7, 12, v21\nv_and_b32 v20, 4, v20\nv_lshl_add_u32 v7, v20, 14, v7')
    def tail_setup2():
        a('v_and_b32 v10, 3, v1\nv_lshlrev_b32 v10, 5, v10\nv_and_b32 v20, 8, v1\nv_lshl_add_u32 v10, v20, 1, v10\nv_and_b32 v21, 4, v1\nv_lshl_add_u32 v10, v21, 11, v10')
        a(f'v_mov_b32 v21, {OOB}\nv_cmp_gt_u32 vcc, 16, v1\nv_cndmask_b32 v10, v21, v10, vcc')
        a(f'v_and_b32 v21, 1, v1\nv_lshl_add_u32 v11, v2, 1, v21\nv_lshlrev_b32 v11, 4, v11\nv_add_u32 v11, {L_H}, v11')
        a(f'v_mul_u32_u24 v5, 528, v8\nv_lshl_add_u32 v5, v2, 7, v5\nv_lshl_add_u32 v5, v20, 3, v5')
        a(f's_mul_i32 s57, s63, 4224\ns_add_u32 s57, s57, {L_OR}\nv_add_u32 v5, s57, v5')
        a(f's_lshl_b32 s57, s63, 2\ns_add_u32 s57, s57, {L_F+F3}\nv_mov_b32 v13, s57\nv_mov_b32 v12, 0xfffff000')
        get_tag(20); tags(12, SH12)
    def factor():
        ldsdata('mlw', [f'ds_read_b32 v{S+w}, v17 offset:{64*w}' for w in range(4)], range(S, S+4), 20, 0)
        a(f'v_max3_f32 v20, v{S}, v{S+1}, v{S+2}\nv_max_f32 v20, v20, v{S+3}\nv_mul_f32 v20, s58, v20\nv_ceil_f32 v20, v20')
        a('v_fma_f32 v18, v18, s58, -v20\nv_exp_f32 v18, v18')
    def o_out():
        stamp(5)
        for q in range(4):
            for k in range(4): a(f'v_mul_f32 v{O+4*q+k}, v18, v{O+4*q+k}')
            a(f'ds_write_b128 v5, v[{O+4*q}:{O+4*q+3}] offset:{16*q}')
    donep = [0]
    def pvw(pr):
        pv_pair(pr); donep[0] = pr + 1
        if pr == 3:
            for k in range(4): a(f'v_mov_b32 v{V+28+k}, 0')
        if pr == 15: o_out()
    work = [(None, tail_setup1), (None, tail_setup2)] + [(('v', 2*pr+1), (lambda pr=pr: pvw(pr))) for pr in range(16)]
    work.insert(len(work) - 2, (None, factor))
    seq = [('v', i) for i in range(vn[0], 32)] + [('d', i) for i in range(7)] + [('o', i) for i in range(8)]
    for kind, i in seq:
        if kind == 'v': vload()
        elif kind == 'd':
            assert donep[0] >= 4
            if i == 0: stamp(4)
            pace()
            a(f'buffer_load_dwordx4 v[{V+4*i}:{V+4*i+3}], v6, s[36:39], s48 offen offset:{2048*(i & 1)}{P}', tag=('d', i))
            if i & 1: a('s_add_u32 s48, s48, 4096')
            if i == f3at: a('ds_write_b32 v13, v13')
        else:
            assert donep[0] >= 8
            if i & 3: a('s_add_u32 s49, s49, 16384')
            elif i: a('s_sub_u32 s49, s49, 49152')
            pace()
            a(f'buffer_load_dwordx4 v[{V+32+4*i}:{V+32+4*i+3}], v7, s[32:35], s49 offen offset:{2048*(i >> 2)}{P}', tag=('o', i))
            if i + 7 == f3at: a('ds_write_b32 v13, v13')
        st = [t for t in a.vm if isinstance(t, tuple)]
        landed = st[:len(st) - sched(win, n_ld[0]-1)]
        k = 0
        while work and k < 2 and (work[0][0] is None or work[0][0] in landed):
            work.pop(0)[1](); k += 1
    assert not work
    ldsdata('hw', [f'ds_read_b128 v[{X}:{X+3}], v11'], range(X, X+4), 20, 1)
    a.vm_wait(('d', 6))
    for f in tile_ops(V, X, True): f()
    fold_cols(D, 20)
    put_tag(20, 4, 12, 12)
    a('buffer_store_dwordx4 v[20:23], v10, s[28:31], s51 offen sc1', tag='fp')
    for u in range(4):
        a.vm_wait(('o', 2*u+1))
        perms_pair(V+32+8*u, V+32+8*u+4, TB, u)
    stamp(8)
    ldsdata('ow', [f'ds_read_b128 v[{X}:{X+3}], v11 offset:{L_O16-L_H}'], range(X, X+4), 24, 0)
    for j in (0, 6, 1, 7, 2, 4, 3, 5):
        a(f'v_mfma_f32_16x16x32_bf16 v[{D+4*j}:{D+4*j+3}], v[{X}:{X+3}], v[{TB+4*j}:{TB+4*j+3}], 0')
    fold_cols(D, 24)
    put_tag(24, 4, 12, 12)
    a('buffer_store_dwordx4 v[24:27], v10, s[28:31], s50 offen sc1')
    stamp(6)
    finish()

    def optags():
        a('v_mov_b32 v20, s96\nv_and_b32 v19, 7, v1\nv_lshlrev_b32 v21, 2, v19\nv_alignbit_b32 v20, v20, v20, v21')
        for d in range(4): a(f'v_alignbit_b32 v{28+d}, v20, v20, {d}\nv_and_b32 v{28+d}, 0x10001, v{28+d}')
    a('L_H0:')
    t = 20
    a('s_barrier')
    zstamps(); consts()
    a('s_waitcnt vmcnt(1)')
    for d in range(8):
        a(f'v_lshlrev_b32 v{t+2*d}, 16, v{XS+d}\nv_and_b32 v{t+2*d+1}, 0xffff0000, v{XS+d}')
    a(f'v_add_f32 v8, v{t}, v{t+1}')
    for k in range(2, 16): a(f'v_add_f32 v8, v8, v{t+k}')
    allred_row('v_add_f32', 8); allred_xrow('v_add_f32', 8, 9)
    a('v_mul_f32 v8, 0x3a800000, v8')
    a(f'v_sub_f32 v9, v{t}, v8\nv_mul_f32 v10, v9, v9')
    for k in range(1, 16): a(f'v_sub_f32 v9, v{t+k}, v8\nv_fmac_f32 v10, v9, v9')
    allred_row('v_add_f32', 10); allred_xrow('v_add_f32', 10, 9)
    a('v_mul_f32 v10, 0x3a800000, v10')
    rbf(8); rbf(10)
    a('v_add_f32 v10, 0x3727c5ac, v10'); rbf(10)
    a('v_sqrt_f32 v10, v10'); rbf(10)
    a('v_rcp_f32 v11, v10\nv_fma_f32 v12, -v10, v11, 1.0\nv_fma_f32 v11, v12, v11, v11')
    for d in range(8):
        r = t + 2*d
        a(f'v_sub_f32 v{r}, v{r}, v8\nv_sub_f32 v{r+1}, v{r+1}, v8')
        a(f'v_cvt_pk_bf16_f32 v{r}, v{r}, v{r+1}\nv_and_b32 v{r+1}, 0xffff0000, v{r}\nv_lshlrev_b32 v{r}, 16, v{r}')
        a(f'v_mul_f32 v{r}, v{r}, v11\nv_mul_f32 v{r+1}, v{r+1}, v11\nv_cvt_pk_bf16_f32 v{XS+d}, v{r}, v{r+1}')
    a(f'v_add_u32 v7, {L_X}, v7\nds_write_b128 v7, v[{XS}:{XS+3}]\nds_write_b128 v7, v[{XS+4}:{XS+7}] offset:16')
    a(f's_waitcnt vmcnt(0)\nv_xor_b32 v14, {0xffffffff ^ CMIX}, v14\nv_mov_b32 v13, {L_F}')
    a(f'ds_write_b32 v13, v14 offset:{FT}\nv_readfirstlane_b32 s96, v14\ns_waitcnt lgkmcnt(0)')
    a(f'ds_write_b32 v13, v13 offset:{F0}')
    stamp(2)
    G, GC, SEL, MLR = 64, 176, 128, 44
    optags()
    rb_of('s48', 's57')
    a(f's_lshl_b32 s54, s48, 2\ns_and_b32 s54, s54, 48\ns_lshr_b32 s57, s2, 6\ns_lshl_b32 s57, s57, 12\ns_add_u32 s54, s54, s57\ns_add_u32 s54, s54, {ML}')
    a('v_lshlrev_b32 v8, 9, v19\nv_lshrrev_b32 v10, 3, v1\nv_lshl_add_u32 v8, v10, 6, v8')
    a(f's_lshr_b32 s97, s96, 16\ns_and_b32 s98, s96, 0xfff\ns_mov_b32 s58, {LOG2E}')
    a('v_and_b32 v10, 1, v1\nv_lshlrev_b32 v10, 4, v10\nv_mov_b32 v11, 0xffff\nv_lshlrev_b32 v10, v10, v11\nv_bfe_u32 v11, v1, 1, 2')
    for d in range(4): a(f'v_cmp_eq_u32 vcc, {d}, v11\nv_cndmask_b32 v{24+d}, 0, v10, vcc')
    a(f's_lshl_b32 s50, s48, 13\ns_add_u32 s50, s50, {OP}\ns_add_u32 s51, s50, 4096')
    a(f'v_lshrrev_b32 v2, 4, v1\nv_lshlrev_b32 v10, 4, v19\nv_lshl_add_u32 v10, v2, 3, v10\nv_add_u32 v10, {L_O16}, v10')
    a(f'v_lshlrev_b32 v9, 4, v1\nv_mov_b32 v14, {L_F+F3}')
    ldswait('or0', L_OR, 2)
    stamp(3)
    def mlpre(c0, t):
        a(f'v_or_b32 v{t}, v{c0+1}, v{c0+3}\nv_and_b32 v{t}, 0xfff, v{t}\nv_or3_b32 v{t}, v{t}, v{c0}, v{c0+2}')
    gather('mlg', [(f'buffer_load_dwordx4 v[{MLR}:{MLR+3}], v8, s[28:31], s54 offen sc1', MLR, 4)], 40,
           lambda k, d: f's{97+(d & 1)}', '0xffff', 22, 4, 'lane', pre=mlpre)
    a('s_bitcmp1_b32 s48, 1\ns_cselect_b64 vcc, -1, 0\nv_cndmask_b32 v16, v40, v42, vcc\nv_cndmask_b32 v17, v41, v43, vcc')
    a('v_mul_f32 v16, s58, v16\nv_ceil_f32 v16, v16\nv_mov_b32 v22, v16')
    allred_row('v_max_f32', 22); allred_xrow('v_max_f32', 22, 23)
    a('v_sub_f32 v16, v16, v22\nv_cvt_i32_f32 v16, v16\nv_ldexp_f32 v16, 1.0, v16\nv_mul_f32 v17, v16, v17')
    allred_row('v_add_f32', 17); allred_xrow('v_add_f32', 17, 23)
    a('v_rcp_f32 v17, v17\nv_perm_b32 v16, v16, v16, s61')
    for n in range(8): a(f'v_mov_b32_dpp v{SEL+32+n}, v16 row_newbcast:{n} row_mask:0xf bank_mask:0x3')
    for n in range(8): a(f'v_mov_b32_dpp v{SEL+32+n}, v16 row_newbcast:{8+n} row_mask:0xf bank_mask:0xc')
    for n in range(8):
        for d in range(4): a(f'v_and_b32 v{SEL+4*n+d}, v{SEL+32+n}, v{24+d}')
    stamp(9)
    ldsdata('f3', ['ds_read_b128 v[40:43], v14'], range(40, 44), 22, 1)
    def omfma(n, c0):
        c = '0' if n == 0 else f'v[{S}:{S+3}]'
        a(f'v_mfma_f32_16x16x32_bf16 v[{S}:{S+3}], v[{SEL+4*n}:{SEL+4*n+3}], v[{c0}:{c0+3}], {c}')
    gather('og', [(f'buffer_load_dwordx4 v[{G+4*n}:{G+4*n+3}], v9, s[28:31], s{50+(n >> 2)} offen offset:{1024*(n & 3)} sc1', G+4*n, 4) for n in range(8)],
           GC, lambda k, d: f'v{28+d}', '0x10001', 112, 0, 'line8', each=omfma)
    stamp(8)
    a('s_nop 1')
    for k in range(4): a(f'v_mul_f32 v{S+4+k}, v17, v{S+k}\nv_mul_f32 v{S+k}, v17, v{S+k}')
    for k in range(4): a(f'v_permlane32_swap_b32 v{S+4+k}, v{S+k}')
    for k in range(4): a(f'v_add_f32_dpp v{S+k}, v{S+k}, v{S+4+k} row_ror:8 row_mask:0xf bank_mask:0xf')
    a(f'v_cvt_pk_bf16_f32 v20, v{S}, v{S+1}\nv_cvt_pk_bf16_f32 v21, v{S+2}, v{S+3}')
    a('s_mov_b64 exec, 0x00ff00ff\nds_write_b64 v10, v[20:21]\ns_waitcnt lgkmcnt(0)')
    finish()

    a('L_H123:')
    if stamps: a('s_mov_b64 s[66:67], 0')
    a('v_mov_b32 v16, -1\nv_mov_b32 v17, -1\nv_mov_b32 v18, -1\nv_mov_b32 v19, -1')
    a(f'v_lshlrev_b32 v13, 4, v1\nv_add_u32 v12, {L_Q}, v13')
    for k in range(7): a(f'ds_write_b128 v12, v[16:19] offset:{1024*k}')
    assert L_Q + 7168 == L_END
    a('s_waitcnt lgkmcnt(0)\ns_barrier')
    zstamps(); consts()
    a(f'v_mov_b32 v9, {OOB}\nv_mov_b32 v15, 0xffffff00\nv_lshrrev_b32 v2, 4, v1\nv_and_b32 v3, 15, v1\nv_and_b32 v14, 7, v1')
    a('s_and_b32 s55, s2, 7\ns_lshr_b32 s54, s2, 3')
    ldswait('f0h', L_F+F0, 4)
    get_tag(11); tags(8, (0, 8, 16, 24))
    a('s_cmp_eq_u32 s3, 2\ns_cbranch_scc1 L_H2')
    a('s_cmp_eq_u32 s3, 3\ns_cbranch_scc1 L_H3')
    L, C = 128, 144
    a(f's_lshl_b32 s59, s54, 12\ns_add_u32 s59, s59, {QP}\ns_lshl_b32 s58, s55, 9\ns_add_u32 s58, s58, s59')
    a(f'v_add_u32 v10, {L_QR}, v13\nv_cmp_gt_u32 vcc, 32, v1\nv_cndmask_b32 v8, v9, v13, vcc')
    def sum_halves(r):
        for k in range(4): a(f'v_mov_b32 v{r+4+k}, v{r+k}')
        for k in range(4): a(f'v_permlane32_swap_b32 v{r+4+k}, v{r+k}')
        for k in range(4): a(f'v_add_f32 v{r+k}, v{r+k}, v{r+4+k}')
    ldsdata('qr', [f'ds_read_b128 v[{L+4*n}:{L+4*n+3}], v10 offset:{1024*n}' for n in range(2)], range(L, L+8), 20, 2)
    for k in range(4): a(f'v_add_f32 v{L+k}, v{L+k}, v{L+4+k}')
    sum_halves(L)
    put_tag(L, 4, 8, 15)
    a(f'buffer_store_dwordx4 v[{L}:{L+3}], v8, s[28:31], s58 offen sc1')
    stamp(2)
    a('s_and_b32 s88, s96, 0xffff\ns_lshr_b32 s89, s96, 16')
    a('s_xor_b32 s53, s54, s2\ns_and_b32 s53, s53, 7\ns_cbranch_scc1 L_qf0')
    a(f's_lshl_b32 s57, s54, 9\ns_add_u32 s57, s57, {QF}\ns_waitcnt vmcnt(0)')
    gather('qp', [(f'buffer_load_dwordx4 v[{L+4*n}:{L+4*n+3}], v13, s[28:31], s59 offen offset:{1024*n} sc1', L+4*n, 4) for n in range(4)],
           C, lambda k, d: f's{97+d}', '0xff', 20, 4, 'instr')
    for k in range(4): a(f'v_add_f32 v{C+k}, v{C+k}, v{C+4+k}\nv_add_f32 v{C+8+k}, v{C+8+k}, v{C+12+k}')
    for k in range(4): a(f'v_add_f32 v{C+k}, v{C+k}, v{C+8+k}')
    sum_halves(C)
    for k in range(4): a(f'v_cvt_pk_bf16_f32 v{20+k}, v{C+k}, v{C+k}\nv_lshlrev_b32 v{20+k}, 16, v{20+k}\nv_or_b32 v{20+k}, s{88+(k & 1)}, v{20+k}')
    a('buffer_store_dwordx4 v[20:23], v8, s[28:31], s57 offen sc1')
    stamp(10)
    a('L_qf0:')
    ldswait('f1', L_F+F1, 2)
    stamp(3)
    a(f's_lshr_b32 s52, s2, 6\ns_lshl_b32 s52, s52, 12\ns_add_u32 s52, s52, {QF}')
    gather('qf', [(f'buffer_load_dwordx4 v[{L+4*n}:{L+4*n+3}], v13, s[28:31], s52 offen offset:{1024*n} sc1', L+4*n, 4) for n in range(4)],
           C, lambda k, d: f's{88+(d & 1)}', '0xffff', 20, sleep, 'lane')
    a(f'v_lshrrev_b32 v11, 5, v1\nv_lshlrev_b32 v11, 1, v11\nv_add_lshl_u32 v11, v11, v1, 3\nv_add_u32 v11, {L_Q}, v11')
    for n in range(4):
        a(f'v_perm_b32 v{20+2*n}, v{C+4*n+1}, v{C+4*n}, s61\nv_perm_b32 v{21+2*n}, v{C+4*n+3}, v{C+4*n+2}, s61')
        a(f'ds_write_b64 v11, v[{20+2*n}:{21+2*n}] offset:{544*n}')
    stamp(4)
    srd(40, 22, 2048); srd(44, 4, 2048)
    a('s_lshl_b32 s50, s55, 5\ns_add_u32 s50, s50, s54\ns_lshl_b32 s55, s50, 3')
    a(f's_lshr_b32 s51, s50, 3\ns_lshl_b32 s51, s51, 13\ns_and_b32 s50, s50, 7\ns_lshl_b32 s50, s50, 4\ns_add_u32 s50, s50, s51\ns_add_u32 s51, s50, {FP}\ns_add_u32 s50, s50, {SP}')
    a('v_lshlrev_b32 v11, 7, v1\nv_lshlrev_b32 v12, 1, v2')
    a('buffer_load_ushort v15, v12, s[44:47], s55 offen')
    a('v_cmp_eq_u32 vcc, 0, v3\nv_cndmask_b32 v13, v9, v12, vcc')
    a(f's_xor_b32 s57, s96, {CMIX}\nv_mov_b32 v17, s57\nv_or_b32 v18, s2, v1\nv_mov_b32 v19, {EP}\nv_cmp_eq_u32 vcc, 0, v18\nv_cndmask_b32 v16, v9, v19, vcc')
    tags(12, SH12)
    a(f'v_mov_b32 v14, {L_F+F3}')
    ldsdata('f3b', ['ds_read_b128 v[40:43], v14'], range(40, 44), 22, 2)
    t12 = lambda k, d: f's{97+d}'
    gather('fg', [('buffer_load_dwordx4 v[32:35], v11, s[28:31], s51 offen sc1', 32, 4)], 24, t12, '0xfff', 20, 2, 'lane')
    sload = 'buffer_load_dwordx4 v[36:39], v11, s[28:31], s50 offen sc1'
    a(sload)
    red4(24); allred_row('v_add_f32', 24)
    rbf(24); silu(24, 25); rbf(24)
    a('v_lshlrev_b32 v15, 16, v15')
    stamp(8)
    gather('sg', [(sload, 36, 4)], 28, t12, '0xfff', 20, 0, 'lane', first=False)
    stamp(9)
    red4(28); allred_row('v_add_f32', 28)
    rbf(28)
    a('v_mul_f32 v28, v28, v24'); rbf(28)
    a('v_add_f32 v28, v28, v15\nv_cvt_pk_bf16_f32 v28, v28, v28')
    a('buffer_store_short v28, v13, s[40:43], s55 offen')
    a('buffer_store_dword v17, v16, s[28:31], 0 offen sc1')
    finish()
    a('L_H2:')
    a('s_cmp_ge_u32 s2, 224\ns_cbranch_scc1 L_nogu')
    for sr, sh in ((56, shg), (57, shu)):
        a(f's_add_u32 s{sr}, s54, {sh}\ns_cmp_ge_u32 s{sr}, 28\ns_cselect_b32 s59, 28, 0\ns_sub_u32 s{sr}, s{sr}, s59\ns_lshl_b32 s{sr}, s{sr}, 13')
    a(f's_add_u32 s57, s57, {4096-512}\ns_lshl_b32 s58, s55, 9')
    a('v_mov_b32 v8, s57\nv_mov_b32 v10, s56\nv_cmp_gt_u32 vcc, 32, v1\nv_cndmask_b32 v8, v8, v10, vcc\nv_add_u32 v8, v8, v13')
    a(f'v_and_b32 v10, 32, v1\nv_lshl_add_u32 v10, v10, 4, v13\nv_add_u32 v10, {L_GR}, v10')
    ldsdata('gr', [f'ds_read_b128 v[{L+4*n}:{L+4*n+3}], v10 offset:{512*n}' for n in range(2)], range(L, L+8), 20, 4)
    for k in range(4): a(f'v_add_f32 v{L+k}, v{L+k}, v{L+4+k}')
    put_tag(L, 4, 8, 15)
    assert GU == 0
    a(f'buffer_store_dwordx4 v[{L}:{L+3}], v8, s[28:31], s58 offen sc1')
    stamp(2)
    a('L_nogu:')
    rb_of('s52', 's53')
    a('s_mul_i32 s52, s52, 56\ns_movk_i32 s53, 0x1000')
    ldswait('qseen', L_Q, 4)
    a('v_min_u32 v12, 6, v14\nv_lshrrev_b32 v10, 3, v1\nv_mul_u32_u24 v10, 7, v10\nv_add3_u32 v10, v10, v12, s52')
    a('v_lshlrev_b32 v12, 3, v10\nv_and_b32 v12, 24, v12\nv_bfe_u32 v12, s96, v12, 8')
    a('v_lshrrev_b32 v11, 7, v10\nv_and_b32 v10, 127, v10\nv_lshlrev_b32 v10, 2, v10\nv_lshl_add_u32 v10, v11, 13, v10')
    gather('hg', [(f'buffer_load_dword v{L+p}, v10, s[28:31], {"s53" if p >> 3 else "0"} offen offset:{512*(p & 7)} sc1', L+p, 1) for p in range(16)],
           32, lambda k, d: 'v12', '0xff', 4, sleep, 'instr')
    for b in (32, 40):
        for k in range(4): a(f'v_add_f32 v{b+k}, v{b+k}, v{b+4+k}')
        a(f'v_add_f32 v{b}, v{b}, v{b+1}\nv_add_f32 v{b+2}, v{b+2}, v{b+3}\nv_add_f32 v{b}, v{b}, v{b+2}')
    rbf(32); rbf(40); silu(32, 21); rbf(32)
    a('v_mul_f32 v20, v32, v40\nv_cvt_pk_bf16_f32 v20, v20, v20')
    a('v_cmp_ne_u32 vcc, 7, v14\nv_cndmask_b32 v20, 0, v20, vcc')
    a('v_mov_b32_dpp v21, v20 quad_perm:[0,0,2,2] row_mask:0xf bank_mask:0xf\nv_mov_b32_dpp v22, v20 quad_perm:[1,1,3,3] row_mask:0xf bank_mask:0xf')
    a(f'v_perm_b32 v20, v22, v21, s60\nv_and_b32 v10, 62, v1\nv_lshlrev_b32 v10, 1, v10\nv_add_u32 v10, {L_H}, v10\nds_write_b32 v10, v20')
    stamp(4)
    a('s_branch L_H23')
    a('L_H3:')
    a(f'v_lshlrev_b32 v10, 3, v14\nv_add_u32 v11, {L_MLW}, v10\ns_mov_b32 s88, {LOG2E}\ns_lshr_b32 s90, s96, 16\ns_and_b32 s97, s96, 0xfff')
    a(f's_lshl_b32 s89, s2, 6\ns_add_u32 s89, s89, {ML}\nv_cmp_gt_u32 vcc, 8, v1\nv_cndmask_b32 v10, v9, v10, vcc\nv_mov_b32 v15, 0xfffff000')
    ldsdata('mlp_w', [f'ds_read_b64 v[{20+2*w}:{21+2*w}], v11 offset:{64*w}' for w in range(4)], range(20, 28), 28, 4)
    a('v_max3_f32 v28, v20, v22, v24\nv_max_f32 v28, v28, v26\nv_mul_f32 v30, s88, v28\nv_ceil_f32 v30, v30')
    for w in range(4): a(f'v_fma_f32 v{20+2*w}, v{20+2*w}, s88, -v30\nv_exp_f32 v{20+2*w}, v{20+2*w}')
    a('v_mul_f32 v33, v20, v21\nv_fmac_f32 v33, v22, v23\nv_fmac_f32 v33, v24, v25\nv_fmac_f32 v33, v26, v27')
    put_tag(33, 1, 12, 15)
    a('v_or_b32 v32, s90, v28')
    a('buffer_store_dwordx2 v[32:33], v10, s[28:31], s89 offen sc1')
    stamp(4)
    a('L_H23:')
    optags()
    a(f'v_mul_u32_u24 v6, 528, v2\nv_lshl_add_u32 v6, v3, 5, v6')
    a(f's_and_b32 s59, s3, 1\ns_mul_i32 s57, s59, 2112\ns_add_u32 s57, s57, {L_OR}\nv_add_u32 v6, s57, v6')
    a('v_lshrrev_b32 v7, 3, v1\nv_lshlrev_b32 v7, 13, v7\nv_lshl_add_u32 v7, v19, 4, v7')
    a(f's_lshr_b32 s56, s2, 6\ns_lshl1_add_u32 s56, s56, s59\ns_lshl_b32 s56, s56, 16\ns_and_b32 s57, s2, 63\ns_lshl_b32 s57, s57, 7\ns_add_u32 s56, s56, s57\ns_add_u32 s56, s56, {OP}')
    a('v_mov_b32 v15, 0xfffefffe')
    ldswait('or23', L_OR, 1)
    R = 64
    ldsdata('orw', [f'ds_read_b128 v[{R+8*w+4*e}:{R+8*w+4*e+3}], v6 offset:{4224*w+16*e}' for w in range(4) for e in range(2)], range(R, R+32), 20, 0)
    for k in range(0, 8, 2): a(f'v_pk_add_f32 v[{R+k}:{R+k+1}], v[{R+k}:{R+k+1}], v[{R+8+k}:{R+9+k}]\nv_pk_add_f32 v[{R+16+k}:{R+17+k}], v[{R+16+k}:{R+17+k}], v[{R+24+k}:{R+25+k}]')
    for k in range(0, 8, 2): a(f'v_pk_add_f32 v[{R+k}:{R+k+1}], v[{R+k}:{R+k+1}], v[{R+16+k}:{R+17+k}]')
    for k in range(8): a(f'v_add_u32 v{R+k}, 0x10000, v{R+k}')
    for k in range(4): a(f'v_perm_b32 v{20+k}, v{R+2*k+1}, v{R+2*k}, s61')
    for k in range(4): a(f'v_and_or_b32 v{20+k}, v{20+k}, v15, v{28+k}')
    a(f'buffer_store_dwordx4 v[20:23], v7, s[28:31], s56 offen sc1')
    stamp(6)
    finish()
    a('L_exit:\ns_endpgm')
    a.raw(f'''.section .rodata,"a"
.p2align 6
.amdhsa_kernel {KNAME}
  .amdhsa_next_free_vgpr 256
  .amdhsa_next_free_sgpr 102
  .amdhsa_accum_offset 256
  .amdhsa_group_segment_fixed_size 0
  .amdhsa_kernarg_size 96
  .amdhsa_user_sgpr_count 2
  .amdhsa_user_sgpr_kernarg_segment_ptr 1
  .amdhsa_system_sgpr_workgroup_id_x 1
  .amdhsa_float_denorm_mode_32 3
.end_amdhsa_kernel''')
    return a.text()

if __name__ == '__main__':
    out = sys.argv[1]
    kw = eval('dict(' + (sys.argv[2] if len(sys.argv) > 2 else '') + ')')
    open(out, 'w').write(gen(**kw))
```

```python
import sys
sys.path.insert(0, 'work')
from asmlib import Asm

KNAME = 'recurrent_scan__gqa_block_cached__swiglu_ffn__decode_kernel'
MB = 1 << 20
GU = 0
EP = 245760
SP, FP, OP = 262144, 524288, 786432
ML, QF, QP, WSEND = 1310720, 1327104, 1343488, 1474560
STAMPS = 8 * MB
L_K, L_OR, L_X, L_Q = 0, 131072, 147968, 150016
L_MLW, L_H, L_O16, L_F, L_QR, L_GR, L_END = 152192, 152512, 152640, 152768, 153088, 155136, 157184
F0, F1, FT, F3 = 0, 4, 12, 16
OOB = 0x40000000
LOG2E = 0x3fb8aa3b
SCALE = 0x3db504f3
SPIN = 400000
CMIX = 0x9e3779b9
SH12 = (0, 12, 20, 6)

HEADER = open('recurrent_scan__gqa_block_cached__swiglu_ffn__decode.s.ref').read().split('; Override')[0]

def gen(plain='', win=((0,6),), nX=18, nB1=10, nF1=24, shu=2, shg=1, f3at=14,
        pref=True, stamps=False, sleep=8):
    a = Asm()
    PL = {k: ('' if k in plain else ' nt') for k in 'qgkvdo'}
    def sched(sc, i): return [w for (st, w) in sc if st <= i][-1]
    def stamp(k):
        if stamps: a(f's_memrealtime s[{64+2*k}:{65+2*k}]')
    def srd(d, p, size):
        a(f's_mov_b32 s{d}, s{p}\ns_mov_b32 s{d+1}, s{p+1}\ns_mov_b32 s{d+2}, {size}\ns_mov_b32 s{d+3}, 0x20000')
    def allred_row(op, v, steps=(8, 4, 2, 1)):
        for r in steps: a(f'{op}_dpp v{v}, v{v}, v{v} row_ror:{r} row_mask:0xf bank_mask:0xf')
    def allred_xrow(op, v, t):
        a(f'v_mov_b32 v{t}, v{v}\nv_permlane16_swap_b32 v{t}, v{v}\n{op} v{v}, v{v}, v{t}')
        a(f'v_mov_b32 v{t}, v{v}\nv_permlane32_swap_b32 v{t}, v{v}\n{op} v{v}, v{v}, v{t}')
    def rbf(v):
        a(f'v_cvt_pk_bf16_f32 v{v}, v{v}, v{v}\nv_lshlrev_b32 v{v}, 16, v{v}')
    def perms_pair(La, Lb, TB, u):
        for d in range(4):
            a(f'v_perm_b32 v{TB+4*(2*d)+u}, v{Lb+d}, v{La+d}, s60')
            a(f'v_perm_b32 v{TB+4*(2*d+1)+u}, v{Lb+d}, v{La+d}, s61')
    def tree(op2, op3, regs, t):
        regs = list(regs)
        if len(regs) == 2:
            a(f'{op2} v{t}, v{regs[0]}, v{regs[1]}'); return
        a(f'{op3} v{t}, v{regs[0]}, v{regs[1]}, v{regs[2]}')
        regs = regs[3:]
        while len(regs) >= 2:
            a(f'{op3} v{t}, v{t}, v{regs[0]}, v{regs[1]}'); regs = regs[2:]
        if regs: a(f'{op2} v{t}, v{t}, v{regs[0]}')
    def umax(regs, t): tree('v_max_u32', 'v_max3_u32', regs, t)
    def orall(regs, t): tree('v_or_b32', 'v_or3_b32', regs, t)
    def again(lbl): a(f's_sub_u32 s62, s62, 1\ns_cmp_gt_i32 s62, 0\ns_cbranch_scc1 {lbl}')
    def retry(lbl_loop, lbl_done, slp):
        a(f's_cbranch_vccz {lbl_done}')
        if slp: a(f's_sleep {slp}')
        again(lbl_loop)
        a(f'{lbl_done}:')
    def gather(name, loads, clean, tag, mask, tmp, slp, mode, first=True, each=None, pre=None):
        n = len(loads)
        if first:
            for t, _, _ in loads: a(t)
        a(f'L_{name}:')
        tk = []; c0 = clean
        for k, (_, r, c) in enumerate(loads):
            if k == 0 or (first and each): a(f's_waitcnt vmcnt({n-1-k if (first and each) else 0})')
            for d in range(c): a(f'v_xor_b32 v{c0+d}, {tag(k, d)}, v{r+d}')
            if pre: pre(c0, tmp+k); tk.append(tmp+k)
            elif c > 1: orall(range(c0, c0+c), tmp+k); tk.append(tmp+k)
            else: tk.append(c0)
            if each: each(k, c0)
            c0 += c
        if n > 1: orall(tk, tmp+n)
        a(f'v_and_b32 v{tmp+n}, {mask}, v{tmp+n if n > 1 else tk[0]}\nv_cmp_ne_u32 vcc, 0, v{tmp+n}')
        a(f's_cbranch_vccz L_{name}_ok')
        if slp: a(f's_sleep {slp}')
        for k, (t, _, _) in enumerate(loads):
            if n > 1 or mode == 'line8':
                a(f'v_and_b32 v{tmp+n}, {mask}, v{tk[k]}')
                if mode == 'line8':
                    for m in ('quad_perm:[1,0,3,2]', 'quad_perm:[2,3,0,1]', 'row_half_mirror'):
                        a(f'v_or_b32_dpp v{tmp+n}, v{tmp+n}, v{tmp+n} {m} row_mask:0xf bank_mask:0xf')
                a(f'v_cmp_ne_u32 vcc, 0, v{tmp+n}\ns_cbranch_vccz L_{name}_s{k}')
            if mode == 'instr': a(t)
            else: a(f's_mov_b64 exec, vcc\n{t}\ns_mov_b64 exec, -1')
            if n > 1 or mode == 'line8': a(f'L_{name}_s{k}:')
        a('s_waitcnt vmcnt(0)')
        again(f'L_{name}')
        a(f'L_{name}_ok:')
    def ldswait(name, addr, slp):
        a(f'v_mov_b32 v12, {addr}\nL_{name}:')
        a(f'ds_read_b32 v11, v12\ns_waitcnt lgkmcnt(0)\nv_cmp_eq_u32 vcc, -1, v11')
        retry(f'L_{name}', f'L_{name}_ok', slp)
    def ldsdata(name, reads, regs, t, slp):
        a(f'L_{name}:')
        for r in reads: a(r)
        a('s_waitcnt lgkmcnt(0)')
        umax(regs, t)
        a(f'v_cmp_eq_u32 vcc, -1, v{t}')
        retry(f'L_{name}', f'L_{name}_ok', slp)
    def get_tag(t):
        a(f'v_mov_b32 v{t}, {L_F}\nds_read_b32 v{t}, v{t} offset:{FT}\ns_waitcnt lgkmcnt(0)\nv_readfirstlane_b32 s96, v{t}')
    def tags(bits, shifts, s0=97):
        for d, sh in enumerate(shifts): a(f's_bfe_u32 s{s0+d}, s96, {(bits << 16) | sh}')
    def put_tag(r, n, bits, vm, s0=97):
        for d in range(n): a(f'v_add_u32 v{r+d}, {1 << (bits-1)}, v{r+d}')
        for d in range(n): a(f'v_and_or_b32 v{r+d}, v{r+d}, v{vm}, s{s0+d}')
    def silu(v, t):
        a(f'v_mul_f32 v{t}, 0xbfb8aa3b, v{v}\nv_exp_f32 v{t}, v{t}\nv_add_f32 v{t}, 1.0, v{t}\nv_rcp_f32 v{t}, v{t}\nv_mul_f32 v{v}, v{v}, v{t}')
    def fold_cols(D, o):
        for k in range(4):
            a(f'v_add_f32_dpp v{o+k}, v{D+4*k+1}, v{D+4*k} row_ror:8 row_mask:0xf bank_mask:0x3')
            a(f'v_add_f32_dpp v{o+((k+2)&3)}, v{D+4*(((k+2)&3)+4)}, v{D+4*(((k+2)&3)+4)+1} row_ror:8 row_mask:0xf bank_mask:0xc')
    def red4(r):
        a(f'v_permlane32_swap_b32 v{r}, v{r+2}\nv_permlane32_swap_b32 v{r+1}, v{r+3}')
        a(f'v_add_f32 v{r}, v{r}, v{r+2}\nv_add_f32 v{r+1}, v{r+1}, v{r+3}')
        a(f'v_permlane16_swap_b32 v{r}, v{r+1}\nv_add_f32 v{r}, v{r}, v{r+1}')
    def rb_of(d, t):
        a(f's_lshr_b32 {d}, s2, 5\ns_lshl_b32 {d}, {d}, 3\ns_and_b32 {t}, s2, 7\ns_add_u32 {d}, {d}, {t}')
    def consts():
        a(f's_mov_b32 s60, 0x05040100\ns_mov_b32 s61, 0x07060302\ns_mov_b32 s62, {SPIN}')
        srd(28, 26, WSEND)
    def finish():
        if stamps:
            stamp(7)
            a('s_waitcnt lgkmcnt(0)')
            a('s_lshl_b32 s52, s2, 3\ns_add_u32 s52, s52, s3\ns_lshl_b32 s52, s52, 7')
            a(f's_add_u32 s54, s26, {STAMPS}\ns_addc_u32 s55, s27, 0')
            a('v_mov_b32 v2, s52\ns_mov_b64 exec, 1')
            for k in range(6):
                a(f'v_mov_b32 v4, s{64+4*k}\nv_mov_b32 v5, s{65+4*k}\nv_mov_b32 v6, s{66+4*k}\nv_mov_b32 v7, s{67+4*k}')
                a(f'global_store_dwordx4 v2, v[4:7], s[54:55] offset:{16*k}\ns_nop 1')
        a('s_endpgm')
    def zstamps():
        if stamps:
            for k in range(68, 88, 2): a(f's_mov_b64 s[{k}:{k+1}], 0')

    a.raw(HEADER.rstrip())
    a.raw(f'; @launch grid=(256,1,1) block=(512,1,1) lds={L_END}')
    a.raw('.amdgcn_target "amdgcn-amd-amdhsa--gfx950"\n.text')
    a.raw(f'.globl {KNAME}\n.p2align 8\n.type {KNAME},@function\n{KNAME}:')
    stamp(0)
    a('s_load_dwordx16 s[4:19], s[0:1], 0\ns_load_dwordx8 s[20:27], s[0:1], 64')
    a('v_lshrrev_b32 v2, 6, v0\nv_and_b32 v1, 63, v0\nv_readfirstlane_b32 s3, v2')
    a('s_cmp_ge_u32 s2, 256\ns_cbranch_scc1 L_exit')
    a('s_cmp_ge_u32 s3, 4\ns_cbranch_scc1 L_S')
    XS = 40
    a('s_setprio 2')
    a('s_cmp_lg_u32 s3, 0\ns_cbranch_scc1 L_H123')
    if pref:
        a(f's_getpc_b64 s[56:57]\nL_pc:\ns_lshr_b32 s58, s2, 3\ns_mulk_i32 s58, 640\nv_and_b32 v2, 7, v1\nv_lshl_add_u32 v2, v2, 7, s58')
        a(f'v_min_u32 v2, L_exit-L_pc, v2\nglobal_load_dword v255, v2, s[56:57]')
    a(f'v_lshlrev_b32 v7, 5, v1\nv_mov_b32 v8, {EP}\ns_waitcnt lgkmcnt(0)')
    a(f'global_load_dwordx4 v[{XS}:{XS+3}], v7, s[4:5]\nglobal_load_dwordx4 v[{XS+4}:{XS+7}], v7, s[4:5] offset:16')
    a('global_load_dword v14, v8, s[26:27] sc1')
    stamp(1)
    a('s_branch L_H0')

    a('L_S:')
    V, TB, PO, O, S, PP, QL, QH, D, X = 128, 96, 64, 48, 32, 24, 64, 80, 64, 32
    n_ld = [0]
    def pace():
        a.vm_window(sched(win, n_ld[0])); n_ld[0] += 1
    a('s_sub_u32 s63, s3, 4')
    a('s_and_b32 s55, s2, 7\ns_lshr_b32 s54, s2, 3')
    a('s_lshl2_add_u32 s53, s55, s63\ns_lshl_b32 s52, s53, 10\ns_add_u32 s52, s52, s54\ns_lshl_b32 s52, s52, 8')
    a('v_lshrrev_b32 v2, 4, v1\nv_and_b32 v3, 15, v1\nv_lshlrev_b32 v4, 4, v3\nv_lshl_add_u32 v6, v2, 16, v4')
    a('s_movk_i32 s57, 0x2000\ns_lshl_b32 s34, s57, 10\ns_mov_b32 s35, 0x20000\ns_waitcnt lgkmcnt(0)\ns_mov_b64 s[32:33], s[10:11]')
    a.vm_reset()
    def s_setup():
        stamp(1)
        a('v_lshlrev_b32 v9, 4, v1')
        a(f's_mul_i32 s58, s63, 4224\ns_add_u32 s58, s58, {L_OR}\nv_add_u32 v10, s58, v9')
        for k in range(4): a(f'v_mov_b32 v{20+k}, -1')
        for k in range(4): a(f'ds_write_b128 v10, v[20:23] offset:{1024*k}')
        a('ds_write_b128 v10, v[20:23] offset:3200')
        zstamps(); consts()
        a(f's_cmp_ge_u32 s63, 2\ns_cselect_b64 s[36:37], s[18:19], s[16:17]\ns_cselect_b32 s58, {shu}, {shg}')
        a(f's_mov_b32 s38, {1024*7168}\ns_mov_b32 s39, 0x20000')
        a('s_add_u32 s58, s58, s54\ns_cmp_ge_u32 s58, 28\ns_cselect_b32 s59, 28, 0\ns_sub_u32 s58, s58, s59\ns_lshl_b32 s58, s58, 8')
        a(f's_and_b32 s59, s63, 1\ns_lshl1_add_u32 s59, s55, s59\ns_mul_i32 s50, s59, {64*7168}\ns_add_u32 s50, s50, s58')
        a(f'v_mul_u32_u24 v7, {8*7168}, v2\nv_add_u32 v7, v7, v4')
        a(f's_lshl_b32 s53, s53, 6\ns_add_u32 s53, s53, {L_X}\nv_lshl_add_u32 v12, v2, 4, s53')
        a(f's_lshl_b32 s59, s59, 7\ns_add_u32 s59, s59, {L_X}\nv_lshl_add_u32 v13, v2, 4, s59')
        a(f's_lshl_b32 s59, s63, 9\ns_add_u32 s59, s59, {L_QR}\nv_lshlrev_b32 v14, 5, v3\nv_lshl_add_u32 v14, v2, 4, v14\nv_add_u32 v14, s59, v14')
        a('s_waitcnt lgkmcnt(0)\ns_barrier')
    for i in range(8):
        pace()
        a(f'buffer_load_dwordx4 v[{V+4*i}:{V+4*i+3}], v6, s[32:35], s52 offen{PL["q"]}', tag=('q', i))
        if i < 7: a('s_add_u32 s52, s52, s57')
        if i == min(sched(win, 0), 8) - 1: s_setup()
    def kv_setup():
        a('s_lshr_b32 s52, s2, 6\ns_and_b32 s53, s2, 63')
        a('s_lshl_b32 s54, s52, 8\ns_add_u32 s54, s54, s53\ns_lshl2_add_u32 s54, s54, s63\ns_lshl_b32 s54, s54, 13')
        a('s_lshl_b32 s55, s63, 15')
        a('v_lshlrev_b32 v5, 6, v2\nv_xor_b32 v5, v5, v4\nv_lshl_add_u32 v16, v2, 8, v5')
        for k in range(1, 4): a(f'v_xor_b32 v{16+k}, {16*k}, v16')
        srd(40, 6, 32*MB); srd(44, 8, 32*MB)
    kv_setup()
    def tile_ops(Lb, Xr, first):
        ops = [(lambda u=u: perms_pair(Lb+8*u, Lb+8*u+4, TB, u)) for u in range(4)]
        def mf():
            for j in range(8):
                c = '0' if first else f'v[{D+4*j}:{D+4*j+3}]'
                a(f'v_mfma_f32_16x16x32_bf16 v[{D+4*j}:{D+4*j+3}], v[{Xr}:{Xr+3}], v[{TB+4*j}:{TB+4*j+3}], {c}')
        return ops + [mf]
    def pack128(off):
        for k in range(4): a(f'v_mov_b32 v{20+k}, v{D+4*k}')
        for k in range(4): a(f'v_mov_b32_dpp v{20+k}, v{D+16+4*k} quad_perm:[0,1,2,3] row_mask:0x2 bank_mask:0xf')
        a(f's_mov_b32 exec_hi, 0\nds_write_b128 v14, v[20:23] offset:{off}\ns_mov_b32 exec_hi, -1')
    def xwait(name, gu):
        a(f'v_mov_b32 v20, {L_F}\nL_{name}:\nds_read_b32 v21, v20 offset:{F0}\ns_waitcnt lgkmcnt(0)\nv_cmp_eq_u32 vcc, -1, v21')
        retry(f'L_{name}', f'L_{name}_ok', 1)
        a(f'ds_read_b128 v[{X}:{X+3}], v12')
        if gu: a(f'ds_read_b128 v[{X+4}:{X+7}], v13\nds_read_b128 v[{X+8}:{X+11}], v13 offset:64')
        a('s_waitcnt lgkmcnt(0)')
    def kload(i):
        if i % 4 == 0:
            a(f's_add_u32 m0, s55, {i*1024}\ns_add_u32 s56, s54, {(i >> 3)*2*MB + (i & 4)*1024}')
        pace()
        a(f'buffer_load_dwordx4 v{16+(i & 3)}, s[40:43], s56 offen offset:{1024*(i & 3)}{PL["k"]} lds', tag=('k', i))
        if i == nF1: a(f'v_mov_b32 v20, {L_F}\nds_write_b32 v20, v20 offset:{F1}')
    KJ = 16
    def phase1(gu):
        seq = ([('g', i) for i in range(16)] if gu else []) + [('k', i) for i in range(KJ)]
        work = [(None, lambda: xwait('xw%d' % gu, gu))]
        work += [(('q', 7), f) for f in tile_ops(V, X, True)] + [(None, lambda: (pack128(0), stamp(10)))]
        if gu:
            work += [(('g', 7), f) for f in tile_ops(V+32, X+4, True)] + [(('g', 15), f) for f in tile_ops(V+64, X+8, False)]
            work += [(None, lambda: pack128(L_GR-L_QR))]
        for n, (kind, i) in enumerate(seq):
            if kind == 'g':
                pace()
                a(f'buffer_load_dwordx4 v[{V+32+4*i}:{V+32+4*i+3}], v7, s[36:39], s50 offen{PL["g"]}', tag=('g', i))
                if i < 15: a(f's_add_u32 s50, s50, {7168*25 if i == 7 else 7168}')
            else: kload(i)
            if n + 9 < nX: continue
            st = [t for t in a.vm if isinstance(t, tuple)]
            landed = st[:len(st) - sched(win, n_ld[0]-1)]
            k = 0
            while work and k < 3 and (work[0][0] is None or work[0][0] in landed):
                work.pop(0)[1](); k += 1
        assert not work
    vm0, n0 = list(a.vm), n_ld[0]
    a('s_cmp_ge_u32 s2, 224\ns_cbranch_scc0 L_gu')
    n_ld[0] = n0 + 16
    phase1(0)
    a('s_branch L_kj')
    a('L_gu:')
    a.vm = list(vm0); n_ld[0] = n0
    phase1(1)
    a('L_kj:')
    a('v_and_b32 v14, 3, v3\nv_lshlrev_b32 v14, 2, v14\nv_lshrrev_b32 v15, 2, v3\nv_add_u32 v14, v14, v15\nv_lshlrev_b32 v14, 8, v14\nv_add_u32 v14, s55, v14')
    a('v_xor_b32 v15, v2, v3')
    for s in range(4):
        a(f'v_xor_b32 v{10+s}, {4*s}, v15\nv_lshl_add_u32 v{10+s}, v{10+s}, 4, v14')
    for i in range(KJ, 32): kload(i)
    a(f'v_and_b32 v8, 7, v1\nv_mul_u32_u24 v14, 272, v8\nv_lshl_add_u32 v14, v2, 4, v14\nv_add_u32 v14, {L_Q}, v14')
    a('v_cmp_gt_u32 vcc, 8, v3\nv_cndmask_b32 v15, 0, -1, vcc\nv_not_b32 v16, v15')
    a(f'v_lshlrev_b32 v17, 3, v8\nv_add_u32 v17, {L_MLW}, v17')
    vn = [0]
    def vload():
        i = vn[0]; vn[0] += 1
        assert i < 32
        if i % 4 == 0: a(f's_add_u32 s56, s54, {(i >> 3)*2*MB + (i & 4)*1024}')
        pace()
        a(f'buffer_load_dwordx4 v[{V+4*i}:{V+4*i+3}], v9, s[44:47], s56 offen offset:{1024*(i & 3)}{PL["v"]}', tag=('v', i))
    for i in range(nB1): vload()
    a.vm_wait(('k', 31))
    stamp(2)
    ldsdata('qw', [f'ds_read_b128 v[{QL+4*s}:{QL+4*s+3}], v14 offset:{64*s}' for s in range(4)], range(QL, QL+16), 18, 1)
    stamp(3)
    units = [(p, hh, ts) for p in range(2) for hh in range(2) for ts in range(2)]
    def kreads(k):
        p, hh, ts = units[k]
        for s in range(4):
            r = TB + 16*(k & 1) + 4*s
            a(f'ds_read_b128 v[{r}:{r+3}], v{10+s} offset:{(2*p+ts)*8192 + hh*4096}')
    kreads(0); kreads(1)
    vload()
    for k in range(16): a(f'v_and_b32 v{QH+k}, v16, v{QL+k}\nv_and_b32 v{QL+k}, v15, v{QL+k}')
    for k in range(8):
        p, hh, ts = units[k]
        a(f's_waitcnt lgkmcnt({4 if k < 7 else 0})')
        d = S + 8*p + 4*hh
        for s in range(4):
            r = TB + 16*(k & 1) + 4*s; q = (QH if ts else QL) + 4*s
            c = '0' if (ts == 0 and s == 0) else f'v[{d}:{d+3}]'
            a(f'v_mfma_f32_16x16x32_bf16 v[{d}:{d+3}], v[{r}:{r+3}], v[{q}:{q+3}], {c}')
        if k + 2 < 8: kreads(k+2)
        if k in (1, 4, 7): vload()
    a(f's_mov_b32 s57, {SCALE}\ns_mov_b32 s58, {LOG2E}')
    for k in range(0, 16, 2):
        r = S + k
        a(f'v_cvt_pk_bf16_f32 v{r}, v{r}, v{r+1}\nv_and_b32 v{r+1}, 0xffff0000, v{r}\nv_lshlrev_b32 v{r}, 16, v{r}')
        a(f'v_mul_f32 v{r}, s57, v{r}\nv_mul_f32 v{r+1}, s57, v{r+1}')
        a(f'v_cvt_pk_bf16_f32 v{r}, v{r}, v{r+1}\nv_and_b32 v{r+1}, 0xffff0000, v{r}\nv_lshlrev_b32 v{r}, 16, v{r}')
    vload()
    tree('v_max_f32', 'v_max3_f32', range(S, S+16), 18)
    allred_row('v_max_f32', 18, (8,)); allred_xrow('v_max_f32', 18, 20)
    for k in range(16): a(f'v_sub_f32 v{S+k}, v{S+k}, v18\nv_mul_f32 v{S+k}, s58, v{S+k}')
    vload()
    for k in range(16): a(f'v_exp_f32 v{S+k}, v{S+k}')
    a(f'v_add_f32 v19, v{S}, v{S+1}')
    for k in range(2, 16): a(f'v_add_f32 v19, v19, v{S+k}')
    allred_row('v_add_f32', 19, (8,)); allred_xrow('v_add_f32', 19, 20)
    a('s_lshl_b32 s59, s63, 6\nv_add_u32 v20, s59, v17\nds_write_b64 v20, v[18:19]')
    vload()
    for k in range(8): a(f'v_cvt_pk_bf16_f32 v{PP+k}, v{S+2*k}, v{S+2*k+1}')
    stamp(11)
    for p in range(2):
        for k in range(4):
            src = PP + 4*p + k
            a(f'v_and_b32 v{PO+16*p+k}, v15, v{src}')
            a(f'v_mov_b32_dpp v{PO+16*p+4+k}, v{src} row_shr:8 row_mask:0xf bank_mask:0xf bound_ctrl:1')
            a(f'v_mov_b32_dpp v{PO+16*p+8+k}, v{src} row_shl:8 row_mask:0xf bank_mask:0xf bound_ctrl:1')
            a(f'v_and_b32 v{PO+16*p+12+k}, v16, v{src}')
    def pv_pair(pr):
        T, u = pr >> 2, pr & 3
        perms_pair(V+8*pr, V+8*pr+4, TB, u)
        if u == 3:
            for half in range(2):
                for q in range(4):
                    c = '0' if (T == 0 and half == 0) else f'v[{O+4*q}:{O+4*q+3}]'
                    j = q + 4*half; b = PO + 8*T + 4*half
                    a(f'v_mfma_f32_16x16x32_bf16 v[{O+4*q}:{O+4*q+3}], v[{TB+4*j}:{TB+4*j+3}], v[{b}:{b+3}], {c}')
    def tail_setup1():
        srd(32, 12, 4096*2048); srd(36, 20, 3584*2048)
        rb_of('s52', 's53')
        a('s_lshr_b32 s53, s2, 1\ns_and_b32 s53, s53, 12\ns_add_u32 s53, s53, s63')
        a(f's_lshl_b32 s57, s53, 7\ns_mul_i32 s48, s52, {56*2048}\ns_add_u32 s48, s48, s57')
        a('s_lshl_b32 s49, s52, 17\ns_add_u32 s49, s49, s57')
        a(f's_lshl_b32 s50, s53, 14\ns_lshl_b32 s51, s52, 7\ns_add_u32 s50, s50, s51\ns_add_u32 s51, s50, {FP}\ns_add_u32 s50, s50, {SP}')
        a(f'v_lshrrev_b32 v20, 3, v1\nv_lshlrev_b32 v21, 4, v8\nv_mul_u32_u24 v6, {7*2048}, v20\nv_add_u32 v6, v6, v21')
        a('v_and_b32 v7, 3, v20\nv_lshl_add_u32 v7, v7, 12, v21\nv_and_b32 v20, 4, v20\nv_lshl_add_u32 v7, v20, 14, v7')
    def tail_setup2():
        a('v_and_b32 v10, 3, v1\nv_lshlrev_b32 v10, 5, v10\nv_and_b32 v20, 8, v1\nv_lshl_add_u32 v10, v20, 1, v10\nv_and_b32 v21, 4, v1\nv_lshl_add_u32 v10, v21, 11, v10')
        a(f'v_mov_b32 v21, {OOB}\nv_cmp_gt_u32 vcc, 16, v1\nv_cndmask_b32 v10, v21, v10, vcc')
        a(f'v_and_b32 v21, 1, v1\nv_lshl_add_u32 v11, v2, 1, v21\nv_lshlrev_b32 v11, 4, v11\nv_add_u32 v11, {L_H}, v11')
        a(f'v_mul_u32_u24 v5, 528, v8\nv_lshl_add_u32 v5, v2, 7, v5\nv_lshl_add_u32 v5, v20, 3, v5')
        a(f's_mul_i32 s57, s63, 4224\ns_add_u32 s57, s57, {L_OR}\nv_add_u32 v5, s57, v5')
        a(f's_lshl_b32 s57, s63, 2\ns_add_u32 s57, s57, {L_F+F3}\nv_mov_b32 v13, s57\nv_mov_b32 v12, 0xfffff000')
        get_tag(20); tags(12, SH12)
    def factor():
        ldsdata('mlw', [f'ds_read_b32 v{S+w}, v17 offset:{64*w}' for w in range(4)], range(S, S+4), 20, 0)
        a(f'v_max3_f32 v20, v{S}, v{S+1}, v{S+2}\nv_max_f32 v20, v20, v{S+3}\nv_mul_f32 v20, s58, v20\nv_ceil_f32 v20, v20')
        a('v_fma_f32 v18, v18, s58, -v20\nv_exp_f32 v18, v18')
    def o_out():
        stamp(5)
        for q in range(4):
            for k in range(4): a(f'v_mul_f32 v{O+4*q+k}, v18, v{O+4*q+k}')
            a(f'ds_write_b128 v5, v[{O+4*q}:{O+4*q+3}] offset:{16*q}')
    donep = [0]
    def pvw(pr):
        pv_pair(pr); donep[0] = pr + 1
        if pr == 3:
            for k in range(4): a(f'v_mov_b32 v{V+28+k}, 0')
        if pr == 15: o_out()
    work = [(None, tail_setup1), (None, tail_setup2)] + [(('v', 2*pr+1), (lambda pr=pr: pvw(pr))) for pr in range(16)]
    work.insert(len(work) - 2, (None, factor))
    seq = [('v', i) for i in range(vn[0], 32)] + [('d', i) for i in range(7)] + [('o', i) for i in range(8)]
    for kind, i in seq:
        if kind == 'v': vload()
        elif kind == 'd':
            assert donep[0] >= 4
            if i == 0: stamp(4)
            pace()
            a(f'buffer_load_dwordx4 v[{V+4*i}:{V+4*i+3}], v6, s[36:39], s48 offen offset:{2048*(i & 1)}{PL["d"]}', tag=('d', i))
            if i & 1: a('s_add_u32 s48, s48, 4096')
            if i == f3at: a('ds_write_b32 v13, v13')
        else:
            assert donep[0] >= 8
            if i & 3: a('s_add_u32 s49, s49, 16384')
            elif i: a('s_sub_u32 s49, s49, 49152')
            pace()
            a(f'buffer_load_dwordx4 v[{V+32+4*i}:{V+32+4*i+3}], v7, s[32:35], s49 offen offset:{2048*(i >> 2)}{PL["o"]}', tag=('o', i))
            if i + 7 == f3at: a('ds_write_b32 v13, v13')
        st = [t for t in a.vm if isinstance(t, tuple)]
        landed = st[:len(st) - sched(win, n_ld[0]-1)]
        k = 0
        while work and k < 2 and (work[0][0] is None or work[0][0] in landed):
            work.pop(0)[1](); k += 1
    assert not work
    ldsdata('hw', [f'ds_read_b128 v[{X}:{X+3}], v11'], range(X, X+4), 20, 1)
    a.vm_wait(('d', 6))
    for f in tile_ops(V, X, True): f()
    fold_cols(D, 20)
    put_tag(20, 4, 12, 12)
    a('buffer_store_dwordx4 v[20:23], v10, s[28:31], s51 offen sc1', tag='fp')
    for u in range(4):
        a.vm_wait(('o', 2*u+1))
        perms_pair(V+32+8*u, V+32+8*u+4, TB, u)
    stamp(8)
    ldsdata('ow', [f'ds_read_b128 v[{X}:{X+3}], v11 offset:{L_O16-L_H}'], range(X, X+4), 24, 0)
    for j in (0, 6, 1, 7, 2, 4, 3, 5):
        a(f'v_mfma_f32_16x16x32_bf16 v[{D+4*j}:{D+4*j+3}], v[{X}:{X+3}], v[{TB+4*j}:{TB+4*j+3}], 0')
    fold_cols(D, 24)
    put_tag(24, 4, 12, 12)
    a('buffer_store_dwordx4 v[24:27], v10, s[28:31], s50 offen sc1')
    stamp(6)
    finish()

    def optags():
        a('v_mov_b32 v20, s96\nv_and_b32 v19, 7, v1\nv_lshlrev_b32 v21, 2, v19\nv_alignbit_b32 v20, v20, v20, v21')
        for d in range(4): a(f'v_alignbit_b32 v{28+d}, v20, v20, {d}\nv_and_b32 v{28+d}, 0x10001, v{28+d}')
    a('L_H0:')
    t = 20
    a('s_barrier')
    zstamps(); consts()
    a('s_waitcnt vmcnt(1)')
    for d in range(8):
        a(f'v_lshlrev_b32 v{t+2*d}, 16, v{XS+d}\nv_and_b32 v{t+2*d+1}, 0xffff0000, v{XS+d}')
    a(f'v_add_f32 v8, v{t}, v{t+1}')
    for k in range(2, 16): a(f'v_add_f32 v8, v8, v{t+k}')
    allred_row('v_add_f32', 8); allred_xrow('v_add_f32', 8, 9)
    a('v_mul_f32 v8, 0x3a800000, v8')
    a(f'v_sub_f32 v9, v{t}, v8\nv_mul_f32 v10, v9, v9')
    for k in range(1, 16): a(f'v_sub_f32 v9, v{t+k}, v8\nv_fmac_f32 v10, v9, v9')
    allred_row('v_add_f32', 10); allred_xrow('v_add_f32', 10, 9)
    a('v_mul_f32 v10, 0x3a800000, v10')
    rbf(8); rbf(10)
    a('v_add_f32 v10, 0x3727c5ac, v10'); rbf(10)
    a('v_sqrt_f32 v10, v10'); rbf(10)
    a('v_rcp_f32 v11, v10\nv_fma_f32 v12, -v10, v11, 1.0\nv_fma_f32 v11, v12, v11, v11')
    for d in range(8):
        r = t + 2*d
        a(f'v_sub_f32 v{r}, v{r}, v8\nv_sub_f32 v{r+1}, v{r+1}, v8')
        a(f'v_cvt_pk_bf16_f32 v{r}, v{r}, v{r+1}\nv_and_b32 v{r+1}, 0xffff0000, v{r}\nv_lshlrev_b32 v{r}, 16, v{r}')
        a(f'v_mul_f32 v{r}, v{r}, v11\nv_mul_f32 v{r+1}, v{r+1}, v11\nv_cvt_pk_bf16_f32 v{XS+d}, v{r}, v{r+1}')
    a(f'v_add_u32 v7, {L_X}, v7\nds_write_b128 v7, v[{XS}:{XS+3}]\nds_write_b128 v7, v[{XS+4}:{XS+7}] offset:16')
    a(f's_waitcnt vmcnt(0)\nv_xor_b32 v14, {0xffffffff ^ CMIX}, v14\nv_mov_b32 v13, {L_F}')
    a(f'ds_write_b32 v13, v14 offset:{FT}\nv_readfirstlane_b32 s96, v14\ns_waitcnt lgkmcnt(0)')
    a(f'ds_write_b32 v13, v13 offset:{F0}')
    stamp(2)
    G, GC, SEL, MLR = 64, 176, 128, 44
    optags()
    rb_of('s48', 's57')
    a(f's_lshl_b32 s54, s48, 2\ns_and_b32 s54, s54, 48\ns_lshr_b32 s57, s2, 6\ns_lshl_b32 s57, s57, 12\ns_add_u32 s54, s54, s57\ns_add_u32 s54, s54, {ML}')
    a('v_lshlrev_b32 v8, 9, v19\nv_lshrrev_b32 v10, 3, v1\nv_lshl_add_u32 v8, v10, 6, v8')
    a(f's_lshr_b32 s97, s96, 16\ns_and_b32 s98, s96, 0xfff\ns_mov_b32 s58, {LOG2E}')
    a('v_and_b32 v10, 1, v1\nv_lshlrev_b32 v10, 4, v10\nv_mov_b32 v11, 0xffff\nv_lshlrev_b32 v10, v10, v11\nv_bfe_u32 v11, v1, 1, 2')
    for d in range(4): a(f'v_cmp_eq_u32 vcc, {d}, v11\nv_cndmask_b32 v{24+d}, 0, v10, vcc')
    a(f's_lshl_b32 s50, s48, 13\ns_add_u32 s50, s50, {OP}\ns_add_u32 s51, s50, 4096')
    a(f'v_lshrrev_b32 v2, 4, v1\nv_lshlrev_b32 v10, 4, v19\nv_lshl_add_u32 v10, v2, 3, v10\nv_add_u32 v10, {L_O16}, v10')
    a(f'v_lshlrev_b32 v9, 4, v1\nv_mov_b32 v14, {L_F+F3}')
    ldswait('or0', L_OR, 2)
    stamp(3)
    def mlpre(c0, t):
        a(f'v_or_b32 v{t}, v{c0+1}, v{c0+3}\nv_and_b32 v{t}, 0xfff, v{t}\nv_or3_b32 v{t}, v{t}, v{c0}, v{c0+2}')
    gather('mlg', [(f'buffer_load_dwordx4 v[{MLR}:{MLR+3}], v8, s[28:31], s54 offen sc1', MLR, 4)], 40,
           lambda k, d: f's{97+(d & 1)}', '0xffff', 22, 4, 'lane', pre=mlpre)
    a('s_bitcmp1_b32 s48, 1\ns_cselect_b64 vcc, -1, 0\nv_cndmask_b32 v16, v40, v42, vcc\nv_cndmask_b32 v17, v41, v43, vcc')
    a('v_mul_f32 v16, s58, v16\nv_ceil_f32 v16, v16\nv_mov_b32 v22, v16')
    allred_row('v_max_f32', 22); allred_xrow('v_max_f32', 22, 23)
    a('v_sub_f32 v16, v16, v22\nv_cvt_i32_f32 v16, v16\nv_ldexp_f32 v16, 1.0, v16\nv_mul_f32 v17, v16, v17')
    allred_row('v_add_f32', 17); allred_xrow('v_add_f32', 17, 23)
    a('v_rcp_f32 v17, v17\nv_perm_b32 v16, v16, v16, s61')
    for n in range(8): a(f'v_mov_b32_dpp v{SEL+32+n}, v16 row_newbcast:{n} row_mask:0xf bank_mask:0x3')
    for n in range(8): a(f'v_mov_b32_dpp v{SEL+32+n}, v16 row_newbcast:{8+n} row_mask:0xf bank_mask:0xc')
    for n in range(8):
        for d in range(4): a(f'v_and_b32 v{SEL+4*n+d}, v{SEL+32+n}, v{24+d}')
    stamp(9)
    ldsdata('f3', ['ds_read_b128 v[40:43], v14'], range(40, 44), 22, 1)
    def omfma(n, c0):
        c = '0' if n == 0 else f'v[{S}:{S+3}]'
        a(f'v_mfma_f32_16x16x32_bf16 v[{S}:{S+3}], v[{SEL+4*n}:{SEL+4*n+3}], v[{c0}:{c0+3}], {c}')
    gather('og', [(f'buffer_load_dwordx4 v[{G+4*n}:{G+4*n+3}], v9, s[28:31], s{50+(n >> 2)} offen offset:{1024*(n & 3)} sc1', G+4*n, 4) for n in range(8)],
           GC, lambda k, d: f'v{28+d}', '0x10001', 112, 0, 'line8', each=omfma)
    stamp(8)
    a('s_nop 1')
    for k in range(4): a(f'v_mul_f32 v{S+4+k}, v17, v{S+k}\nv_mul_f32 v{S+k}, v17, v{S+k}')
    for k in range(4): a(f'v_permlane32_swap_b32 v{S+4+k}, v{S+k}')
    for k in range(4): a(f'v_add_f32_dpp v{S+k}, v{S+k}, v{S+4+k} row_ror:8 row_mask:0xf bank_mask:0xf')
    a(f'v_cvt_pk_bf16_f32 v20, v{S}, v{S+1}\nv_cvt_pk_bf16_f32 v21, v{S+2}, v{S+3}')
    a('s_mov_b64 exec, 0x00ff00ff\nds_write_b64 v10, v[20:21]\ns_waitcnt lgkmcnt(0)')
    finish()

    a('L_H123:')
    if stamps: a('s_mov_b64 s[66:67], 0')
    a('v_mov_b32 v16, -1\nv_mov_b32 v17, -1\nv_mov_b32 v18, -1\nv_mov_b32 v19, -1')
    a(f'v_lshlrev_b32 v13, 4, v1\nv_add_u32 v12, {L_Q}, v13')
    for k in range(7): a(f'ds_write_b128 v12, v[16:19] offset:{1024*k}')
    assert L_Q + 7168 == L_END
    a('s_waitcnt lgkmcnt(0)\ns_barrier')
    zstamps(); consts()
    a(f'v_mov_b32 v9, {OOB}\nv_mov_b32 v15, 0xffffff00\nv_lshrrev_b32 v2, 4, v1\nv_and_b32 v3, 15, v1\nv_and_b32 v14, 7, v1')
    a('s_and_b32 s55, s2, 7\ns_lshr_b32 s54, s2, 3')
    ldswait('f0h', L_F+F0, 4)
    get_tag(11); tags(8, (0, 8, 16, 24))
    a('s_cmp_eq_u32 s3, 2\ns_cbranch_scc1 L_H2')
    a('s_cmp_eq_u32 s3, 3\ns_cbranch_scc1 L_H3')
    L, C = 128, 144
    a(f's_lshl_b32 s59, s54, 12\ns_add_u32 s59, s59, {QP}\ns_lshl_b32 s58, s55, 9\ns_add_u32 s58, s58, s59')
    a(f'v_add_u32 v10, {L_QR}, v13\nv_cmp_gt_u32 vcc, 32, v1\nv_cndmask_b32 v8, v9, v13, vcc')
    def sum_halves(r):
        for k in range(4): a(f'v_mov_b32 v{r+4+k}, v{r+k}')
        for k in range(4): a(f'v_permlane32_swap_b32 v{r+4+k}, v{r+k}')
        for k in range(4): a(f'v_add_f32 v{r+k}, v{r+k}, v{r+4+k}')
    ldsdata('qr', [f'ds_read_b128 v[{L+4*n}:{L+4*n+3}], v10 offset:{1024*n}' for n in range(2)], range(L, L+8), 20, 2)
    for k in range(4): a(f'v_add_f32 v{L+k}, v{L+k}, v{L+4+k}')
    sum_halves(L)
    put_tag(L, 4, 8, 15)
    a(f'buffer_store_dwordx4 v[{L}:{L+3}], v8, s[28:31], s58 offen sc1')
    stamp(2)
    a('s_and_b32 s88, s96, 0xffff\ns_lshr_b32 s89, s96, 16')
    a('s_xor_b32 s53, s54, s2\ns_and_b32 s53, s53, 7\ns_cbranch_scc1 L_qf0')
    a(f's_lshl_b32 s57, s54, 9\ns_add_u32 s57, s57, {QF}\ns_waitcnt vmcnt(0)')
    gather('qp', [(f'buffer_load_dwordx4 v[{L+4*n}:{L+4*n+3}], v13, s[28:31], s59 offen offset:{1024*n} sc1', L+4*n, 4) for n in range(4)],
           C, lambda k, d: f's{97+d}', '0xff', 20, 4, 'instr')
    for k in range(4): a(f'v_add_f32 v{C+k}, v{C+k}, v{C+4+k}\nv_add_f32 v{C+8+k}, v{C+8+k}, v{C+12+k}')
    for k in range(4): a(f'v_add_f32 v{C+k}, v{C+k}, v{C+8+k}')
    sum_halves(C)
    for k in range(4): a(f'v_cvt_pk_bf16_f32 v{20+k}, v{C+k}, v{C+k}\nv_lshlrev_b32 v{20+k}, 16, v{20+k}\nv_or_b32 v{20+k}, s{88+(k & 1)}, v{20+k}')
    a('buffer_store_dwordx4 v[20:23], v8, s[28:31], s57 offen sc1')
    stamp(10)
    a('L_qf0:')
    ldswait('f1', L_F+F1, 2)
    stamp(3)
    a(f's_lshr_b32 s52, s2, 6\ns_lshl_b32 s52, s52, 12\ns_add_u32 s52, s52, {QF}')
    gather('qf', [(f'buffer_load_dwordx4 v[{L+4*n}:{L+4*n+3}], v13, s[28:31], s52 offen offset:{1024*n} sc1', L+4*n, 4) for n in range(4)],
           C, lambda k, d: f's{88+(d & 1)}', '0xffff', 20, sleep, 'lane')
    a(f'v_lshrrev_b32 v11, 5, v1\nv_lshlrev_b32 v11, 1, v11\nv_add_lshl_u32 v11, v11, v1, 3\nv_add_u32 v11, {L_Q}, v11')
    for n in range(4):
        a(f'v_perm_b32 v{20+2*n}, v{C+4*n+1}, v{C+4*n}, s61\nv_perm_b32 v{21+2*n}, v{C+4*n+3}, v{C+4*n+2}, s61')
        a(f'ds_write_b64 v11, v[{20+2*n}:{21+2*n}] offset:{544*n}')
    stamp(4)
    srd(40, 22, 2048); srd(44, 4, 2048)
    a('s_lshl_b32 s50, s55, 5\ns_add_u32 s50, s50, s54\ns_lshl_b32 s55, s50, 3')
    a(f's_lshr_b32 s51, s50, 3\ns_lshl_b32 s51, s51, 13\ns_and_b32 s50, s50, 7\ns_lshl_b32 s50, s50, 4\ns_add_u32 s50, s50, s51\ns_add_u32 s51, s50, {FP}\ns_add_u32 s50, s50, {SP}')
    a('v_lshlrev_b32 v11, 7, v1\nv_lshlrev_b32 v12, 1, v2')
    a('buffer_load_ushort v15, v12, s[44:47], s55 offen')
    a('v_cmp_eq_u32 vcc, 0, v3\nv_cndmask_b32 v13, v9, v12, vcc')
    a(f's_xor_b32 s57, s96, {CMIX}\nv_mov_b32 v17, s57\nv_or_b32 v18, s2, v1\nv_mov_b32 v19, {EP}\nv_cmp_eq_u32 vcc, 0, v18\nv_cndmask_b32 v16, v9, v19, vcc')
    tags(12, SH12)
    a(f'v_mov_b32 v14, {L_F+F3}')
    ldsdata('f3b', ['ds_read_b128 v[40:43], v14'], range(40, 44), 22, 2)
    t12 = lambda k, d: f's{97+d}'
    gather('fg', [('buffer_load_dwordx4 v[32:35], v11, s[28:31], s51 offen sc1', 32, 4)], 24, t12, '0xfff', 20, 2, 'lane')
    sload = 'buffer_load_dwordx4 v[36:39], v11, s[28:31], s50 offen sc1'
    a(sload)
    red4(24); allred_row('v_add_f32', 24)
    rbf(24); silu(24, 25); rbf(24)
    a('v_lshlrev_b32 v15, 16, v15')
    stamp(8)
    gather('sg', [(sload, 36, 4)], 28, t12, '0xfff', 20, 0, 'lane', first=False)
    stamp(9)
    red4(28); allred_row('v_add_f32', 28)
    rbf(28)
    a('v_mul_f32 v28, v28, v24'); rbf(28)
    a('v_add_f32 v28, v28, v15\nv_cvt_pk_bf16_f32 v28, v28, v28')
    a('buffer_store_short v28, v13, s[40:43], s55 offen')
    a('buffer_store_dword v17, v16, s[28:31], 0 offen sc1')
    finish()
    a('L_H2:')
    a('s_cmp_ge_u32 s2, 224\ns_cbranch_scc1 L_nogu')
    for sr, sh in ((56, shg), (57, shu)):
        a(f's_add_u32 s{sr}, s54, {sh}\ns_cmp_ge_u32 s{sr}, 28\ns_cselect_b32 s59, 28, 0\ns_sub_u32 s{sr}, s{sr}, s59\ns_lshl_b32 s{sr}, s{sr}, 13')
    a(f's_add_u32 s57, s57, {4096-512}\ns_lshl_b32 s58, s55, 9')
    a('v_mov_b32 v8, s57\nv_mov_b32 v10, s56\nv_cmp_gt_u32 vcc, 32, v1\nv_cndmask_b32 v8, v8, v10, vcc\nv_add_u32 v8, v8, v13')
    a(f'v_and_b32 v10, 32, v1\nv_lshl_add_u32 v10, v10, 4, v13\nv_add_u32 v10, {L_GR}, v10')
    ldsdata('gr', [f'ds_read_b128 v[{L+4*n}:{L+4*n+3}], v10 offset:{512*n}' for n in range(2)], range(L, L+8), 20, 4)
    for k in range(4): a(f'v_add_f32 v{L+k}, v{L+k}, v{L+4+k}')
    put_tag(L, 4, 8, 15)
    assert GU == 0
    a(f'buffer_store_dwordx4 v[{L}:{L+3}], v8, s[28:31], s58 offen sc1')
    stamp(2)
    a('L_nogu:')
    rb_of('s52', 's53')
    a('s_mul_i32 s52, s52, 56\ns_movk_i32 s53, 0x1000')
    ldswait('qseen', L_Q, 4)
    a('v_min_u32 v12, 6, v14\nv_lshrrev_b32 v10, 3, v1\nv_mul_u32_u24 v10, 7, v10\nv_add3_u32 v10, v10, v12, s52')
    a('v_lshlrev_b32 v12, 3, v10\nv_and_b32 v12, 24, v12\nv_bfe_u32 v12, s96, v12, 8')
    a('v_lshrrev_b32 v11, 7, v10\nv_and_b32 v10, 127, v10\nv_lshlrev_b32 v10, 2, v10\nv_lshl_add_u32 v10, v11, 13, v10')
    gather('hg', [(f'buffer_load_dword v{L+p}, v10, s[28:31], {"s53" if p >> 3 else "0"} offen offset:{512*(p & 7)} sc1', L+p, 1) for p in range(16)],
           32, lambda k, d: 'v12', '0xff', 4, sleep, 'instr')
    for b in (32, 40):
        for k in range(4): a(f'v_add_f32 v{b+k}, v{b+k}, v{b+4+k}')
        a(f'v_add_f32 v{b}, v{b}, v{b+1}\nv_add_f32 v{b+2}, v{b+2}, v{b+3}\nv_add_f32 v{b}, v{b}, v{b+2}')
    rbf(32); rbf(40); silu(32, 21); rbf(32)
    a('v_mul_f32 v20, v32, v40\nv_cvt_pk_bf16_f32 v20, v20, v20')
    a('v_cmp_ne_u32 vcc, 7, v14\nv_cndmask_b32 v20, 0, v20, vcc')
    a('v_mov_b32_dpp v21, v20 quad_perm:[0,0,2,2] row_mask:0xf bank_mask:0xf\nv_mov_b32_dpp v22, v20 quad_perm:[1,1,3,3] row_mask:0xf bank_mask:0xf')
    a(f'v_perm_b32 v20, v22, v21, s60\nv_and_b32 v10, 62, v1\nv_lshlrev_b32 v10, 1, v10\nv_add_u32 v10, {L_H}, v10\nds_write_b32 v10, v20')
    stamp(4)
    a('s_branch L_H23')
    a('L_H3:')
    a(f'v_lshlrev_b32 v10, 3, v14\nv_add_u32 v11, {L_MLW}, v10\ns_mov_b32 s88, {LOG2E}\ns_lshr_b32 s90, s96, 16\ns_and_b32 s97, s96, 0xfff')
    a(f's_lshl_b32 s89, s2, 6\ns_add_u32 s89, s89, {ML}\nv_cmp_gt_u32 vcc, 8, v1\nv_cndmask_b32 v10, v9, v10, vcc\nv_mov_b32 v15, 0xfffff000')
    ldsdata('mlp_w', [f'ds_read_b64 v[{20+2*w}:{21+2*w}], v11 offset:{64*w}' for w in range(4)], range(20, 28), 28, 4)
    a('v_max3_f32 v28, v20, v22, v24\nv_max_f32 v28, v28, v26\nv_mul_f32 v30, s88, v28\nv_ceil_f32 v30, v30')
    for w in range(4): a(f'v_fma_f32 v{20+2*w}, v{20+2*w}, s88, -v30\nv_exp_f32 v{20+2*w}, v{20+2*w}')
    a('v_mul_f32 v33, v20, v21\nv_fmac_f32 v33, v22, v23\nv_fmac_f32 v33, v24, v25\nv_fmac_f32 v33, v26, v27')
    put_tag(33, 1, 12, 15)
    a('v_or_b32 v32, s90, v28')
    a('buffer_store_dwordx2 v[32:33], v10, s[28:31], s89 offen sc1')
    stamp(4)
    a('L_H23:')
    optags()
    a(f'v_mul_u32_u24 v6, 528, v2\nv_lshl_add_u32 v6, v3, 5, v6')
    a(f's_and_b32 s59, s3, 1\ns_mul_i32 s57, s59, 2112\ns_add_u32 s57, s57, {L_OR}\nv_add_u32 v6, s57, v6')
    a('v_lshrrev_b32 v7, 3, v1\nv_lshlrev_b32 v7, 13, v7\nv_lshl_add_u32 v7, v19, 4, v7')
    a(f's_lshr_b32 s56, s2, 6\ns_lshl1_add_u32 s56, s56, s59\ns_lshl_b32 s56, s56, 16\ns_and_b32 s57, s2, 63\ns_lshl_b32 s57, s57, 7\ns_add_u32 s56, s56, s57\ns_add_u32 s56, s56, {OP}')
    a('v_mov_b32 v15, 0xfffefffe')
    ldswait('or23', L_OR, 1)
    R = 64
    ldsdata('orw', [f'ds_read_b128 v[{R+8*w+4*e}:{R+8*w+4*e+3}], v6 offset:{4224*w+16*e}' for w in range(4) for e in range(2)], range(R, R+32), 20, 0)
    for k in range(0, 8, 2): a(f'v_pk_add_f32 v[{R+k}:{R+k+1}], v[{R+k}:{R+k+1}], v[{R+8+k}:{R+9+k}]\nv_pk_add_f32 v[{R+16+k}:{R+17+k}], v[{R+16+k}:{R+17+k}], v[{R+24+k}:{R+25+k}]')
    for k in range(0, 8, 2): a(f'v_pk_add_f32 v[{R+k}:{R+k+1}], v[{R+k}:{R+k+1}], v[{R+16+k}:{R+17+k}]')
    for k in range(8): a(f'v_add_u32 v{R+k}, 0x10000, v{R+k}')
    for k in range(4): a(f'v_perm_b32 v{20+k}, v{R+2*k+1}, v{R+2*k}, s61')
    for k in range(4): a(f'v_and_or_b32 v{20+k}, v{20+k}, v15, v{28+k}')
    a(f'buffer_store_dwordx4 v[20:23], v7, s[28:31], s56 offen sc1')
    stamp(6)
    finish()
    a('L_exit:\ns_endpgm')
    a.raw(f'''.section .rodata,"a"
.p2align 6
.amdhsa_kernel {KNAME}
  .amdhsa_next_free_vgpr 256
  .amdhsa_next_free_sgpr 102
  .amdhsa_accum_offset 256
  .amdhsa_group_segment_fixed_size 0
  .amdhsa_kernarg_size 96
  .amdhsa_user_sgpr_count 2
  .amdhsa_user_sgpr_kernarg_segment_ptr 1
  .amdhsa_system_sgpr_workgroup_id_x 1
  .amdhsa_float_denorm_mode_32 3
.end_amdhsa_kernel''')
    return a.text()

if __name__ == '__main__':
    out = sys.argv[1]
    kw = eval('dict(' + (sys.argv[2] if len(sys.argv) > 2 else '') + ')')
    open(out, 'w').write(gen(**kw))
```

```python
import sys
sys.path.insert(0, 'work')
from asmlib import Asm

KNAME = 'recurrent_scan__gqa_block_cached__swiglu_ffn__decode_kernel'
MB = 1 << 20
GU = 0
EP = 245760
SP, FP, OP = 262144, 524288, 786432
ML, QF, QP, WSEND = 1310720, 1327104, 1343488, 1474560
STAMPS = 8 * MB
L_K, L_OR, L_X, L_Q = 0, 131072, 147968, 150016
L_MLW, L_H, L_O16, L_F, L_QR, L_GR, L_END = 152192, 152512, 152640, 152768, 153088, 155136, 157184
F0, F1, FT, F3 = 0, 4, 12, 16
OOB = 0x40000000
LOG2E = 0x3fb8aa3b
SCALE = 0x3db504f3
SPIN = 400000
CMIX = 0x9e3779b9
SH12 = (0, 12, 20, 6)

HEADER = open('recurrent_scan__gqa_block_cached__swiglu_ffn__decode.s.ref').read().split('; Override')[0]

def gen(plain='', win=((0,6),), nX=18, nB1=10, nF1=24, shu=2, shg=1, f3at=14,
        pref=True, tlbpf=True, stamps=False, sleep=8):
    a = Asm()
    PL = {k: ('' if k in plain else ' nt') for k in 'qgkvdo'}
    def sched(sc, i): return [w for (st, w) in sc if st <= i][-1]
    def stamp(k):
        if stamps: a(f's_memrealtime s[{64+2*k}:{65+2*k}]')
    def srd(d, p, size):
        a(f's_mov_b32 s{d}, s{p}\ns_mov_b32 s{d+1}, s{p+1}\ns_mov_b32 s{d+2}, {size}\ns_mov_b32 s{d+3}, 0x20000')
    def allred_row(op, v, steps=(8, 4, 2, 1)):
        for r in steps: a(f'{op}_dpp v{v}, v{v}, v{v} row_ror:{r} row_mask:0xf bank_mask:0xf')
    def allred_xrow(op, v, t):
        a(f'v_mov_b32 v{t}, v{v}\nv_permlane16_swap_b32 v{t}, v{v}\n{op} v{v}, v{v}, v{t}')
        a(f'v_mov_b32 v{t}, v{v}\nv_permlane32_swap_b32 v{t}, v{v}\n{op} v{v}, v{v}, v{t}')
    def rbf(v):
        a(f'v_cvt_pk_bf16_f32 v{v}, v{v}, v{v}\nv_lshlrev_b32 v{v}, 16, v{v}')
    def perms_pair(La, Lb, TB, u):
        for d in range(4):
            a(f'v_perm_b32 v{TB+4*(2*d)+u}, v{Lb+d}, v{La+d}, s60')
            a(f'v_perm_b32 v{TB+4*(2*d+1)+u}, v{Lb+d}, v{La+d}, s61')
    def tree(op2, op3, regs, t):
        regs = list(regs)
        if len(regs) == 2:
            a(f'{op2} v{t}, v{regs[0]}, v{regs[1]}'); return
        a(f'{op3} v{t}, v{regs[0]}, v{regs[1]}, v{regs[2]}')
        regs = regs[3:]
        while len(regs) >= 2:
            a(f'{op3} v{t}, v{t}, v{regs[0]}, v{regs[1]}'); regs = regs[2:]
        if regs: a(f'{op2} v{t}, v{t}, v{regs[0]}')
    def umax(regs, t): tree('v_max_u32', 'v_max3_u32', regs, t)
    def orall(regs, t): tree('v_or_b32', 'v_or3_b32', regs, t)
    def again(lbl): a(f's_sub_u32 s62, s62, 1\ns_cmp_gt_i32 s62, 0\ns_cbranch_scc1 {lbl}')
    def retry(lbl_loop, lbl_done, slp):
        a(f's_cbranch_vccz {lbl_done}')
        if slp: a(f's_sleep {slp}')
        again(lbl_loop)
        a(f'{lbl_done}:')
    def gather(name, loads, clean, tag, mask, tmp, slp, mode, first=True, each=None, pre=None):
        n = len(loads)
        if first:
            for t, _, _ in loads: a(t)
        a(f'L_{name}:')
        tk = []; c0 = clean
        for k, (_, r, c) in enumerate(loads):
            if k == 0 or (first and each): a(f's_waitcnt vmcnt({n-1-k if (first and each) else 0})')
            for d in range(c): a(f'v_xor_b32 v{c0+d}, {tag(k, d)}, v{r+d}')
            if pre: pre(c0, tmp+k); tk.append(tmp+k)
            elif c > 1: orall(range(c0, c0+c), tmp+k); tk.append(tmp+k)
            else: tk.append(c0)
            if each: each(k, c0)
            c0 += c
        if n > 1: orall(tk, tmp+n)
        a(f'v_and_b32 v{tmp+n}, {mask}, v{tmp+n if n > 1 else tk[0]}\nv_cmp_ne_u32 vcc, 0, v{tmp+n}')
        a(f's_cbranch_vccz L_{name}_ok')
        if slp: a(f's_sleep {slp}')
        for k, (t, _, _) in enumerate(loads):
            if n > 1 or mode == 'line8':
                a(f'v_and_b32 v{tmp+n}, {mask}, v{tk[k]}')
                if mode == 'line8':
                    for m in ('quad_perm:[1,0,3,2]', 'quad_perm:[2,3,0,1]', 'row_half_mirror'):
                        a(f'v_or_b32_dpp v{tmp+n}, v{tmp+n}, v{tmp+n} {m} row_mask:0xf bank_mask:0xf')
                a(f'v_cmp_ne_u32 vcc, 0, v{tmp+n}\ns_cbranch_vccz L_{name}_s{k}')
            if mode == 'instr': a(t)
            else: a(f's_mov_b64 exec, vcc\n{t}\ns_mov_b64 exec, -1')
            if n > 1 or mode == 'line8': a(f'L_{name}_s{k}:')
        a('s_waitcnt vmcnt(0)')
        again(f'L_{name}')
        a(f'L_{name}_ok:')
    def ldswait(name, addr, slp):
        a(f'v_mov_b32 v12, {addr}\nL_{name}:')
        a(f'ds_read_b32 v11, v12\ns_waitcnt lgkmcnt(0)\nv_cmp_eq_u32 vcc, -1, v11')
        retry(f'L_{name}', f'L_{name}_ok', slp)
    def ldsdata(name, reads, regs, t, slp):
        a(f'L_{name}:')
        for r in reads: a(r)
        a('s_waitcnt lgkmcnt(0)')
        umax(regs, t)
        a(f'v_cmp_eq_u32 vcc, -1, v{t}')
        retry(f'L_{name}', f'L_{name}_ok', slp)
    def get_tag(t):
        a(f'v_mov_b32 v{t}, {L_F}\nds_read_b32 v{t}, v{t} offset:{FT}\ns_waitcnt lgkmcnt(0)\nv_readfirstlane_b32 s96, v{t}')
    def tags(bits, shifts, s0=97):
        for d, sh in enumerate(shifts): a(f's_bfe_u32 s{s0+d}, s96, {(bits << 16) | sh}')
    def put_tag(r, n, bits, vm, s0=97):
        for d in range(n): a(f'v_add_u32 v{r+d}, {1 << (bits-1)}, v{r+d}')
        for d in range(n): a(f'v_and_or_b32 v{r+d}, v{r+d}, v{vm}, s{s0+d}')
    def silu(v, t):
        a(f'v_mul_f32 v{t}, 0xbfb8aa3b, v{v}\nv_exp_f32 v{t}, v{t}\nv_add_f32 v{t}, 1.0, v{t}\nv_rcp_f32 v{t}, v{t}\nv_mul_f32 v{v}, v{v}, v{t}')
    def fold_cols(D, o):
        for k in range(4):
            a(f'v_add_f32_dpp v{o+k}, v{D+4*k+1}, v{D+4*k} row_ror:8 row_mask:0xf bank_mask:0x3')
            a(f'v_add_f32_dpp v{o+((k+2)&3)}, v{D+4*(((k+2)&3)+4)}, v{D+4*(((k+2)&3)+4)+1} row_ror:8 row_mask:0xf bank_mask:0xc')
    def red4(r):
        a(f'v_permlane32_swap_b32 v{r}, v{r+2}\nv_permlane32_swap_b32 v{r+1}, v{r+3}')
        a(f'v_add_f32 v{r}, v{r}, v{r+2}\nv_add_f32 v{r+1}, v{r+1}, v{r+3}')
        a(f'v_permlane16_swap_b32 v{r}, v{r+1}\nv_add_f32 v{r}, v{r}, v{r+1}')
    def rb_of(d, t):
        a(f's_lshr_b32 {d}, s2, 5\ns_lshl_b32 {d}, {d}, 3\ns_and_b32 {t}, s2, 7\ns_add_u32 {d}, {d}, {t}')
    def consts():
        a(f's_mov_b32 s60, 0x05040100\ns_mov_b32 s61, 0x07060302\ns_mov_b32 s62, {SPIN}')
        srd(28, 26, WSEND)
    def finish():
        if stamps:
            stamp(7)
            a('s_waitcnt lgkmcnt(0)')
            a('s_lshl_b32 s52, s2, 3\ns_add_u32 s52, s52, s3\ns_lshl_b32 s52, s52, 7')
            a(f's_add_u32 s54, s26, {STAMPS}\ns_addc_u32 s55, s27, 0')
            a('v_mov_b32 v2, s52\ns_mov_b64 exec, 1')
            for k in range(6):
                a(f'v_mov_b32 v4, s{64+4*k}\nv_mov_b32 v5, s{65+4*k}\nv_mov_b32 v6, s{66+4*k}\nv_mov_b32 v7, s{67+4*k}')
                a(f'global_store_dwordx4 v2, v[4:7], s[54:55] offset:{16*k}\ns_nop 1')
        a('s_endpgm')
    def zstamps():
        if stamps:
            for k in range(68, 88, 2): a(f's_mov_b64 s[{k}:{k+1}], 0')

    a.raw(HEADER.rstrip())
    a.raw(f'; @launch grid=(256,1,1) block=(512,1,1) lds={L_END}')
    a.raw('.amdgcn_target "amdgcn-amd-amdhsa--gfx950"\n.text')
    a.raw(f'.globl {KNAME}\n.p2align 8\n.type {KNAME},@function\n{KNAME}:')
    stamp(0)
    a('s_load_dwordx16 s[4:19], s[0:1], 0\ns_load_dwordx8 s[20:27], s[0:1], 64')
    a('v_lshrrev_b32 v2, 6, v0\nv_and_b32 v1, 63, v0\nv_readfirstlane_b32 s3, v2')
    a('s_cmp_ge_u32 s2, 256\ns_cbranch_scc1 L_exit')
    a('s_cmp_ge_u32 s3, 4\ns_cbranch_scc1 L_S')
    XS = 40
    a('s_setprio 2')
    a('s_cmp_lg_u32 s3, 0\ns_cbranch_scc1 L_H123')
    if pref:
        a(f's_getpc_b64 s[56:57]\nL_pc:\ns_lshr_b32 s58, s2, 3\ns_mulk_i32 s58, 640\nv_and_b32 v2, 7, v1\nv_lshl_add_u32 v2, v2, 7, s58')
        a(f'v_min_u32 v2, L_exit-L_pc, v2\nglobal_load_dword v255, v2, s[56:57]')
    a(f'v_lshlrev_b32 v7, 5, v1\nv_mov_b32 v8, {EP}\ns_waitcnt lgkmcnt(0)')
    a(f'global_load_dwordx4 v[{XS}:{XS+3}], v7, s[4:5]\nglobal_load_dwordx4 v[{XS+4}:{XS+7}], v7, s[4:5] offset:16')
    a('global_load_dword v14, v8, s[26:27] sc1')
    stamp(1)
    a('s_branch L_H0')

    a('L_S:')
    V, TB, PO, O, S, PP, QL, QH, D, X = 128, 96, 64, 48, 32, 24, 64, 80, 64, 32
    n_ld = [0]
    def pace():
        a.vm_window(sched(win, n_ld[0])); n_ld[0] += 1
    a('s_sub_u32 s63, s3, 4')
    a('s_and_b32 s55, s2, 7\ns_lshr_b32 s54, s2, 3')
    a('s_lshl2_add_u32 s53, s55, s63\ns_lshl_b32 s52, s53, 10\ns_add_u32 s52, s52, s54\ns_lshl_b32 s52, s52, 8')
    a('v_lshrrev_b32 v2, 4, v1\nv_and_b32 v3, 15, v1\nv_lshlrev_b32 v4, 4, v3\nv_lshl_add_u32 v6, v2, 16, v4')
    a('s_movk_i32 s57, 0x2000\ns_lshl_b32 s34, s57, 10\ns_mov_b32 s35, 0x20000\ns_waitcnt lgkmcnt(0)\ns_mov_b64 s[32:33], s[10:11]')
    a.vm_reset()
    def s_setup():
        stamp(1)
        a('v_lshlrev_b32 v9, 4, v1')
        a(f's_mul_i32 s58, s63, 4224\ns_add_u32 s58, s58, {L_OR}\nv_add_u32 v10, s58, v9')
        for k in range(4): a(f'v_mov_b32 v{20+k}, -1')
        for k in range(4): a(f'ds_write_b128 v10, v[20:23] offset:{1024*k}')
        a('ds_write_b128 v10, v[20:23] offset:3200')
        zstamps(); consts()
        a(f's_cmp_ge_u32 s63, 2\ns_cselect_b64 s[36:37], s[18:19], s[16:17]\ns_cselect_b32 s58, {shu}, {shg}')
        a(f's_mov_b32 s38, {1024*7168}\ns_mov_b32 s39, 0x20000')
        a('s_add_u32 s58, s58, s54\ns_cmp_ge_u32 s58, 28\ns_cselect_b32 s59, 28, 0\ns_sub_u32 s58, s58, s59\ns_lshl_b32 s58, s58, 8')
        a(f's_and_b32 s59, s63, 1\ns_lshl1_add_u32 s59, s55, s59\ns_mul_i32 s50, s59, {64*7168}\ns_add_u32 s50, s50, s58')
        a(f'v_mul_u32_u24 v7, {8*7168}, v2\nv_add_u32 v7, v7, v4')
        a(f's_lshl_b32 s53, s53, 6\ns_add_u32 s53, s53, {L_X}\nv_lshl_add_u32 v12, v2, 4, s53')
        a(f's_lshl_b32 s59, s59, 7\ns_add_u32 s59, s59, {L_X}\nv_lshl_add_u32 v13, v2, 4, s59')
        a(f's_lshl_b32 s59, s63, 9\ns_add_u32 s59, s59, {L_QR}\nv_lshlrev_b32 v14, 5, v3\nv_lshl_add_u32 v14, v2, 4, v14\nv_add_u32 v14, s59, v14')
        a('s_waitcnt lgkmcnt(0)\ns_barrier')
    for i in range(8):
        pace()
        a(f'buffer_load_dwordx4 v[{V+4*i}:{V+4*i+3}], v6, s[32:35], s52 offen{PL["q"]}', tag=('q', i))
        if i < 7: a('s_add_u32 s52, s52, s57')
        if i == min(sched(win, 0), 8) - 1: s_setup()
    def kv_setup():
        a('s_lshr_b32 s52, s2, 6\ns_and_b32 s53, s2, 63')
        a('s_lshl_b32 s54, s52, 8\ns_add_u32 s54, s54, s53\ns_lshl2_add_u32 s54, s54, s63\ns_lshl_b32 s54, s54, 13')
        a('s_lshl_b32 s55, s63, 15')
        a('v_lshlrev_b32 v5, 6, v2\nv_xor_b32 v5, v5, v4\nv_lshl_add_u32 v16, v2, 8, v5')
        for k in range(1, 4): a(f'v_xor_b32 v{16+k}, {16*k}, v16')
        srd(40, 6, 32*MB); srd(44, 8, 32*MB)
    kv_setup()
    def tile_ops(Lb, Xr, first):
        ops = [(lambda u=u: perms_pair(Lb+8*u, Lb+8*u+4, TB, u)) for u in range(4)]
        def mf():
            for j in range(8):
                c = '0' if first else f'v[{D+4*j}:{D+4*j+3}]'
                a(f'v_mfma_f32_16x16x32_bf16 v[{D+4*j}:{D+4*j+3}], v[{Xr}:{Xr+3}], v[{TB+4*j}:{TB+4*j+3}], {c}')
        return ops + [mf]
    def pack128(off):
        for k in range(4): a(f'v_mov_b32 v{20+k}, v{D+4*k}')
        for k in range(4): a(f'v_mov_b32_dpp v{20+k}, v{D+16+4*k} quad_perm:[0,1,2,3] row_mask:0x2 bank_mask:0xf')
        a(f's_mov_b32 exec_hi, 0\nds_write_b128 v14, v[20:23] offset:{off}\ns_mov_b32 exec_hi, -1')
    def xwait(name, gu):
        a(f'v_mov_b32 v20, {L_F}\nL_{name}:\nds_read_b32 v21, v20 offset:{F0}\ns_waitcnt lgkmcnt(0)\nv_cmp_eq_u32 vcc, -1, v21')
        retry(f'L_{name}', f'L_{name}_ok', 1)
        a(f'ds_read_b128 v[{X}:{X+3}], v12')
        if gu: a(f'ds_read_b128 v[{X+4}:{X+7}], v13\nds_read_b128 v[{X+8}:{X+11}], v13 offset:64')
        a('s_waitcnt lgkmcnt(0)')
    def kload(i):
        if i % 4 == 0:
            a(f's_add_u32 m0, s55, {i*1024}\ns_add_u32 s56, s54, {(i >> 3)*2*MB + (i & 4)*1024}')
        pace()
        a(f'buffer_load_dwordx4 v{16+(i & 3)}, s[40:43], s56 offen offset:{1024*(i & 3)}{PL["k"]} lds', tag=('k', i))
        if i == nF1: a(f'v_mov_b32 v20, {L_F}\nds_write_b32 v20, v20 offset:{F1}')
    KJ = 16
    def phase1(gu):
        seq = ([('g', i) for i in range(16)] if gu else []) + [('k', i) for i in range(KJ)]
        work = [(None, lambda: xwait('xw%d' % gu, gu))]
        work += [(('q', 7), f) for f in tile_ops(V, X, True)] + [(None, lambda: (pack128(0), stamp(10)))]
        if gu:
            work += [(('g', 7), f) for f in tile_ops(V+32, X+4, True)] + [(('g', 15), f) for f in tile_ops(V+64, X+8, False)]
            work += [(None, lambda: pack128(L_GR-L_QR))]
        for n, (kind, i) in enumerate(seq):
            if kind == 'g':
                pace()
                a(f'buffer_load_dwordx4 v[{V+32+4*i}:{V+32+4*i+3}], v7, s[36:39], s50 offen{PL["g"]}', tag=('g', i))
                if i < 15: a(f's_add_u32 s50, s50, {7168*25 if i == 7 else 7168}')
            else: kload(i)
            if n + 9 < nX: continue
            st = [t for t in a.vm if isinstance(t, tuple)]
            landed = st[:len(st) - sched(win, n_ld[0]-1)]
            k = 0
            while work and k < 3 and (work[0][0] is None or work[0][0] in landed):
                work.pop(0)[1](); k += 1
        assert not work
    vm0, n0 = list(a.vm), n_ld[0]
    a('s_cmp_ge_u32 s2, 224\ns_cbranch_scc0 L_gu')
    n_ld[0] = n0 + 16
    phase1(0)
    a('s_branch L_kj')
    a('L_gu:')
    a.vm = list(vm0); n_ld[0] = n0
    phase1(1)
    a('L_kj:')
    a('v_and_b32 v14, 3, v3\nv_lshlrev_b32 v14, 2, v14\nv_lshrrev_b32 v15, 2, v3\nv_add_u32 v14, v14, v15\nv_lshlrev_b32 v14, 8, v14\nv_add_u32 v14, s55, v14')
    a('v_xor_b32 v15, v2, v3')
    for s in range(4):
        a(f'v_xor_b32 v{10+s}, {4*s}, v15\nv_lshl_add_u32 v{10+s}, v{10+s}, 4, v14')
    for i in range(KJ, 32): kload(i)
    a(f'v_and_b32 v8, 7, v1\nv_mul_u32_u24 v14, 272, v8\nv_lshl_add_u32 v14, v2, 4, v14\nv_add_u32 v14, {L_Q}, v14')
    a('v_cmp_gt_u32 vcc, 8, v3\nv_cndmask_b32 v15, 0, -1, vcc\nv_not_b32 v16, v15')
    a(f'v_lshlrev_b32 v17, 3, v8\nv_add_u32 v17, {L_MLW}, v17')
    vn = [0]
    def vload():
        i = vn[0]; vn[0] += 1
        assert i < 32
        if i % 4 == 0: a(f's_add_u32 s56, s54, {(i >> 3)*2*MB + (i & 4)*1024}')
        pace()
        a(f'buffer_load_dwordx4 v[{V+4*i}:{V+4*i+3}], v9, s[44:47], s56 offen offset:{1024*(i & 3)}{PL["v"]}', tag=('v', i))
    for i in range(nB1): vload()
    a.vm_wait(('k', 31))
    stamp(2)
    ldsdata('qw', [f'ds_read_b128 v[{QL+4*s}:{QL+4*s+3}], v14 offset:{64*s}' for s in range(4)], range(QL, QL+16), 18, 1)
    stamp(3)
    units = [(p, hh, ts) for p in range(2) for hh in range(2) for ts in range(2)]
    def kreads(k):
        p, hh, ts = units[k]
        for s in range(4):
            r = TB + 16*(k & 1) + 4*s
            a(f'ds_read_b128 v[{r}:{r+3}], v{10+s} offset:{(2*p+ts)*8192 + hh*4096}')
    kreads(0); kreads(1)
    vload()
    for k in range(16): a(f'v_and_b32 v{QH+k}, v16, v{QL+k}\nv_and_b32 v{QL+k}, v15, v{QL+k}')
    for k in range(8):
        p, hh, ts = units[k]
        a(f's_waitcnt lgkmcnt({4 if k < 7 else 0})')
        d = S + 8*p + 4*hh
        for s in range(4):
            r = TB + 16*(k & 1) + 4*s; q = (QH if ts else QL) + 4*s
            c = '0' if (ts == 0 and s == 0) else f'v[{d}:{d+3}]'
            a(f'v_mfma_f32_16x16x32_bf16 v[{d}:{d+3}], v[{r}:{r+3}], v[{q}:{q+3}], {c}')
        if k + 2 < 8: kreads(k+2)
        if k in (1, 4, 7): vload()
    a(f's_mov_b32 s57, {SCALE}\ns_mov_b32 s58, {LOG2E}')
    for k in range(0, 16, 2):
        r = S + k
        a(f'v_cvt_pk_bf16_f32 v{r}, v{r}, v{r+1}\nv_and_b32 v{r+1}, 0xffff0000, v{r}\nv_lshlrev_b32 v{r}, 16, v{r}')
        a(f'v_mul_f32 v{r}, s57, v{r}\nv_mul_f32 v{r+1}, s57, v{r+1}')
        a(f'v_cvt_pk_bf16_f32 v{r}, v{r}, v{r+1}\nv_and_b32 v{r+1}, 0xffff0000, v{r}\nv_lshlrev_b32 v{r}, 16, v{r}')
    vload()
    tree('v_max_f32', 'v_max3_f32', range(S, S+16), 18)
    allred_row('v_max_f32', 18, (8,)); allred_xrow('v_max_f32', 18, 20)
    for k in range(16): a(f'v_sub_f32 v{S+k}, v{S+k}, v18\nv_mul_f32 v{S+k}, s58, v{S+k}')
    vload()
    for k in range(16): a(f'v_exp_f32 v{S+k}, v{S+k}')
    a(f'v_add_f32 v19, v{S}, v{S+1}')
    for k in range(2, 16): a(f'v_add_f32 v19, v19, v{S+k}')
    allred_row('v_add_f32', 19, (8,)); allred_xrow('v_add_f32', 19, 20)
    a('s_lshl_b32 s59, s63, 6\nv_add_u32 v20, s59, v17\nds_write_b64 v20, v[18:19]')
    vload()
    for k in range(8): a(f'v_cvt_pk_bf16_f32 v{PP+k}, v{S+2*k}, v{S+2*k+1}')
    stamp(11)
    for p in range(2):
        for k in range(4):
            src = PP + 4*p + k
            a(f'v_and_b32 v{PO+16*p+k}, v15, v{src}')
            a(f'v_mov_b32_dpp v{PO+16*p+4+k}, v{src} row_shr:8 row_mask:0xf bank_mask:0xf bound_ctrl:1')
            a(f'v_mov_b32_dpp v{PO+16*p+8+k}, v{src} row_shl:8 row_mask:0xf bank_mask:0xf bound_ctrl:1')
            a(f'v_and_b32 v{PO+16*p+12+k}, v16, v{src}')
    def pv_pair(pr):
        T, u = pr >> 2, pr & 3
        perms_pair(V+8*pr, V+8*pr+4, TB, u)
        if u == 3:
            for half in range(2):
                for q in range(4):
                    c = '0' if (T == 0 and half == 0) else f'v[{O+4*q}:{O+4*q+3}]'
                    j = q + 4*half; b = PO + 8*T + 4*half
                    a(f'v_mfma_f32_16x16x32_bf16 v[{O+4*q}:{O+4*q+3}], v[{TB+4*j}:{TB+4*j+3}], v[{b}:{b+3}], {c}')
    def tail_setup1():
        srd(32, 12, 4096*2048); srd(36, 20, 3584*2048)
        rb_of('s52', 's53')
        a('s_lshr_b32 s53, s2, 1\ns_and_b32 s53, s53, 12\ns_add_u32 s53, s53, s63')
        a(f's_lshl_b32 s57, s53, 7\ns_mul_i32 s48, s52, {56*2048}\ns_add_u32 s48, s48, s57')
        a('s_lshl_b32 s49, s52, 17\ns_add_u32 s49, s49, s57')
        a(f's_lshl_b32 s50, s53, 14\ns_lshl_b32 s51, s52, 7\ns_add_u32 s50, s50, s51\ns_add_u32 s51, s50, {FP}\ns_add_u32 s50, s50, {SP}')
        a(f'v_lshrrev_b32 v20, 3, v1\nv_lshlrev_b32 v21, 4, v8\nv_mul_u32_u24 v6, {7*2048}, v20\nv_add_u32 v6, v6, v21')
        a('v_and_b32 v7, 3, v20\nv_lshl_add_u32 v7, v7, 12, v21\nv_and_b32 v20, 4, v20\nv_lshl_add_u32 v7, v20, 14, v7')
    def tail_setup2():
        a('v_and_b32 v10, 3, v1\nv_lshlrev_b32 v10, 5, v10\nv_and_b32 v20, 8, v1\nv_lshl_add_u32 v10, v20, 1, v10\nv_and_b32 v21, 4, v1\nv_lshl_add_u32 v10, v21, 11, v10')
        a(f'v_mov_b32 v21, {OOB}\nv_cmp_gt_u32 vcc, 16, v1\nv_cndmask_b32 v10, v21, v10, vcc')
        a(f'v_and_b32 v21, 1, v1\nv_lshl_add_u32 v11, v2, 1, v21\nv_lshlrev_b32 v11, 4, v11\nv_add_u32 v11, {L_H}, v11')
        a(f'v_mul_u32_u24 v5, 528, v8\nv_lshl_add_u32 v5, v2, 7, v5\nv_lshl_add_u32 v5, v20, 3, v5')
        a(f's_mul_i32 s57, s63, 4224\ns_add_u32 s57, s57, {L_OR}\nv_add_u32 v5, s57, v5')
        a(f's_lshl_b32 s57, s63, 2\ns_add_u32 s57, s57, {L_F+F3}\nv_mov_b32 v13, s57\nv_mov_b32 v12, 0xfffff000')
        get_tag(20); tags(12, SH12)
    def factor():
        ldsdata('mlw', [f'ds_read_b32 v{S+w}, v17 offset:{64*w}' for w in range(4)], range(S, S+4), 20, 0)
        a(f'v_max3_f32 v20, v{S}, v{S+1}, v{S+2}\nv_max_f32 v20, v20, v{S+3}\nv_mul_f32 v20, s58, v20\nv_ceil_f32 v20, v20')
        a('v_fma_f32 v18, v18, s58, -v20\nv_exp_f32 v18, v18')
    def o_out():
        stamp(5)
        for q in range(4):
            for k in range(4): a(f'v_mul_f32 v{O+4*q+k}, v18, v{O+4*q+k}')
            a(f'ds_write_b128 v5, v[{O+4*q}:{O+4*q+3}] offset:{16*q}')
    donep = [0]
    def pvw(pr):
        pv_pair(pr); donep[0] = pr + 1
        if pr == 3:
            for k in range(4): a(f'v_mov_b32 v{V+28+k}, 0')
        if pr == 15: o_out()
    work = [(None, tail_setup1), (None, tail_setup2)] + [(('v', 2*pr+1), (lambda pr=pr: pvw(pr))) for pr in range(16)]
    work.insert(len(work) - 2, (None, factor))
    seq = [('v', i) for i in range(vn[0], 32)] + [('d', i) for i in range(7)] + [('o', i) for i in range(8)]
    for kind, i in seq:
        if kind == 'v': vload()
        elif kind == 'd':
            assert donep[0] >= 4
            if i == 0: stamp(4)
            pace()
            a(f'buffer_load_dwordx4 v[{V+4*i}:{V+4*i+3}], v6, s[36:39], s48 offen offset:{2048*(i & 1)}{PL["d"]}', tag=('d', i))
            if i & 1: a('s_add_u32 s48, s48, 4096')
            if i == f3at: a('ds_write_b32 v13, v13')
        else:
            assert donep[0] >= 8
            if i & 3: a('s_add_u32 s49, s49, 16384')
            elif i: a('s_sub_u32 s49, s49, 49152')
            pace()
            a(f'buffer_load_dwordx4 v[{V+32+4*i}:{V+32+4*i+3}], v7, s[32:35], s49 offen offset:{2048*(i >> 2)}{PL["o"]}', tag=('o', i))
            if i + 7 == f3at: a('ds_write_b32 v13, v13')
        st = [t for t in a.vm if isinstance(t, tuple)]
        landed = st[:len(st) - sched(win, n_ld[0]-1)]
        k = 0
        while work and k < 2 and (work[0][0] is None or work[0][0] in landed):
            work.pop(0)[1](); k += 1
    assert not work
    ldsdata('hw', [f'ds_read_b128 v[{X}:{X+3}], v11'], range(X, X+4), 20, 1)
    a.vm_wait(('d', 6))
    for f in tile_ops(V, X, True): f()
    fold_cols(D, 20)
    put_tag(20, 4, 12, 12)
    a('buffer_store_dwordx4 v[20:23], v10, s[28:31], s51 offen sc1', tag='fp')
    for u in range(4):
        a.vm_wait(('o', 2*u+1))
        perms_pair(V+32+8*u, V+32+8*u+4, TB, u)
    stamp(8)
    ldsdata('ow', [f'ds_read_b128 v[{X}:{X+3}], v11 offset:{L_O16-L_H}'], range(X, X+4), 24, 0)
    for j in (0, 6, 1, 7, 2, 4, 3, 5):
        a(f'v_mfma_f32_16x16x32_bf16 v[{D+4*j}:{D+4*j+3}], v[{X}:{X+3}], v[{TB+4*j}:{TB+4*j+3}], 0')
    fold_cols(D, 24)
    put_tag(24, 4, 12, 12)
    a('buffer_store_dwordx4 v[24:27], v10, s[28:31], s50 offen sc1')
    stamp(6)
    finish()

    def optags():
        a('v_mov_b32 v20, s96\nv_and_b32 v19, 7, v1\nv_lshlrev_b32 v21, 2, v19\nv_alignbit_b32 v20, v20, v20, v21')
        for d in range(4): a(f'v_alignbit_b32 v{28+d}, v20, v20, {d}\nv_and_b32 v{28+d}, 0x10001, v{28+d}')
    a('L_H0:')
    t = 20
    a('s_barrier')
    zstamps(); consts()
    a('s_waitcnt vmcnt(1)')
    for d in range(8):
        a(f'v_lshlrev_b32 v{t+2*d}, 16, v{XS+d}\nv_and_b32 v{t+2*d+1}, 0xffff0000, v{XS+d}')
    a(f'v_add_f32 v8, v{t}, v{t+1}')
    for k in range(2, 16): a(f'v_add_f32 v8, v8, v{t+k}')
    allred_row('v_add_f32', 8); allred_xrow('v_add_f32', 8, 9)
    a('v_mul_f32 v8, 0x3a800000, v8')
    a(f'v_sub_f32 v9, v{t}, v8\nv_mul_f32 v10, v9, v9')
    for k in range(1, 16): a(f'v_sub_f32 v9, v{t+k}, v8\nv_fmac_f32 v10, v9, v9')
    allred_row('v_add_f32', 10); allred_xrow('v_add_f32', 10, 9)
    a('v_mul_f32 v10, 0x3a800000, v10')
    rbf(8); rbf(10)
    a('v_add_f32 v10, 0x3727c5ac, v10'); rbf(10)
    a('v_sqrt_f32 v10, v10'); rbf(10)
    a('v_rcp_f32 v11, v10\nv_fma_f32 v12, -v10, v11, 1.0\nv_fma_f32 v11, v12, v11, v11')
    for d in range(8):
        r = t + 2*d
        a(f'v_sub_f32 v{r}, v{r}, v8\nv_sub_f32 v{r+1}, v{r+1}, v8')
        a(f'v_cvt_pk_bf16_f32 v{r}, v{r}, v{r+1}\nv_and_b32 v{r+1}, 0xffff0000, v{r}\nv_lshlrev_b32 v{r}, 16, v{r}')
        a(f'v_mul_f32 v{r}, v{r}, v11\nv_mul_f32 v{r+1}, v{r+1}, v11\nv_cvt_pk_bf16_f32 v{XS+d}, v{r}, v{r+1}')
    a(f'v_add_u32 v7, {L_X}, v7\nds_write_b128 v7, v[{XS}:{XS+3}]\nds_write_b128 v7, v[{XS+4}:{XS+7}] offset:16')
    a(f's_waitcnt vmcnt(0)\nv_xor_b32 v14, {0xffffffff ^ CMIX}, v14\nv_mov_b32 v13, {L_F}')
    a(f'ds_write_b32 v13, v14 offset:{FT}\nv_readfirstlane_b32 s96, v14\ns_waitcnt lgkmcnt(0)')
    a(f'ds_write_b32 v13, v13 offset:{F0}')
    stamp(2)
    G, GC, SEL, MLR = 64, 176, 128, 44
    optags()
    rb_of('s48', 's57')
    a(f's_lshl_b32 s54, s48, 2\ns_and_b32 s54, s54, 48\ns_lshr_b32 s57, s2, 6\ns_lshl_b32 s57, s57, 12\ns_add_u32 s54, s54, s57\ns_add_u32 s54, s54, {ML}')
    a('v_lshlrev_b32 v8, 9, v19\nv_lshrrev_b32 v10, 3, v1\nv_lshl_add_u32 v8, v10, 6, v8')
    a(f's_lshr_b32 s97, s96, 16\ns_and_b32 s98, s96, 0xfff\ns_mov_b32 s58, {LOG2E}')
    a('v_and_b32 v10, 1, v1\nv_lshlrev_b32 v10, 4, v10\nv_mov_b32 v11, 0xffff\nv_lshlrev_b32 v10, v10, v11\nv_bfe_u32 v11, v1, 1, 2')
    for d in range(4): a(f'v_cmp_eq_u32 vcc, {d}, v11\nv_cndmask_b32 v{24+d}, 0, v10, vcc')
    a(f's_lshl_b32 s50, s48, 13\ns_add_u32 s50, s50, {OP}\ns_add_u32 s51, s50, 4096')
    a(f'v_lshrrev_b32 v2, 4, v1\nv_lshlrev_b32 v10, 4, v19\nv_lshl_add_u32 v10, v2, 3, v10\nv_add_u32 v10, {L_O16}, v10')
    a(f'v_lshlrev_b32 v9, 4, v1\nv_mov_b32 v14, {L_F+F3}')
    ldswait('or0', L_OR, 2)
    stamp(3)
    def mlpre(c0, t):
        a(f'v_or_b32 v{t}, v{c0+1}, v{c0+3}\nv_and_b32 v{t}, 0xfff, v{t}\nv_or3_b32 v{t}, v{t}, v{c0}, v{c0+2}')
    gather('mlg', [(f'buffer_load_dwordx4 v[{MLR}:{MLR+3}], v8, s[28:31], s54 offen sc1', MLR, 4)], 40,
           lambda k, d: f's{97+(d & 1)}', '0xffff', 22, 4, 'lane', pre=mlpre)
    a('s_bitcmp1_b32 s48, 1\ns_cselect_b64 vcc, -1, 0\nv_cndmask_b32 v16, v40, v42, vcc\nv_cndmask_b32 v17, v41, v43, vcc')
    a('v_mul_f32 v16, s58, v16\nv_ceil_f32 v16, v16\nv_mov_b32 v22, v16')
    allred_row('v_max_f32', 22); allred_xrow('v_max_f32', 22, 23)
    a('v_sub_f32 v16, v16, v22\nv_cvt_i32_f32 v16, v16\nv_ldexp_f32 v16, 1.0, v16\nv_mul_f32 v17, v16, v17')
    allred_row('v_add_f32', 17); allred_xrow('v_add_f32', 17, 23)
    a('v_rcp_f32 v17, v17\nv_perm_b32 v16, v16, v16, s61')
    for n in range(8): a(f'v_mov_b32_dpp v{SEL+32+n}, v16 row_newbcast:{n} row_mask:0xf bank_mask:0x3')
    for n in range(8): a(f'v_mov_b32_dpp v{SEL+32+n}, v16 row_newbcast:{8+n} row_mask:0xf bank_mask:0xc')
    for n in range(8):
        for d in range(4): a(f'v_and_b32 v{SEL+4*n+d}, v{SEL+32+n}, v{24+d}')
    stamp(9)
    ldsdata('f3', ['ds_read_b128 v[40:43], v14'], range(40, 44), 22, 1)
    def omfma(n, c0):
        c = '0' if n == 0 else f'v[{S}:{S+3}]'
        a(f'v_mfma_f32_16x16x32_bf16 v[{S}:{S+3}], v[{SEL+4*n}:{SEL+4*n+3}], v[{c0}:{c0+3}], {c}')
    gather('og', [(f'buffer_load_dwordx4 v[{G+4*n}:{G+4*n+3}], v9, s[28:31], s{50+(n >> 2)} offen offset:{1024*(n & 3)} sc1', G+4*n, 4) for n in range(8)],
           GC, lambda k, d: f'v{28+d}', '0x10001', 112, 0, 'line8', each=omfma)
    stamp(8)
    a('s_nop 1')
    for k in range(4): a(f'v_mul_f32 v{S+4+k}, v17, v{S+k}\nv_mul_f32 v{S+k}, v17, v{S+k}')
    for k in range(4): a(f'v_permlane32_swap_b32 v{S+4+k}, v{S+k}')
    for k in range(4): a(f'v_add_f32_dpp v{S+k}, v{S+k}, v{S+4+k} row_ror:8 row_mask:0xf bank_mask:0xf')
    a(f'v_cvt_pk_bf16_f32 v20, v{S}, v{S+1}\nv_cvt_pk_bf16_f32 v21, v{S+2}, v{S+3}')
    a('s_mov_b64 exec, 0x00ff00ff\nds_write_b64 v10, v[20:21]\ns_waitcnt lgkmcnt(0)')
    finish()

    a('L_H123:')
    if tlbpf:
        a('s_cmp_lg_u32 s3, 1\ns_cbranch_scc1 L_notlb')
        a('s_cmp_lt_u32 s2, 224\ns_cbranch_scc1 L_notlb')
        a('s_lshr_b32 s52, s2, 3\ns_and_b32 s52, s52, 3\ns_and_b32 s55, s2, 7\ns_lshl_b32 s53, s55, 15')
        a('s_lshl_b32 s54, s52, 23\ns_add_u32 s54, s54, s53\nv_lshlrev_b32 v3, 21, v1\nv_add_u32 v3, s54, v3')
        a(f's_lshl2_add_u32 s54, s55, s52\ns_mul_i32 s54, s54, {32*7168}\nv_mov_b32 v4, s54')
        a('s_lshl_b32 s54, s52, 21\ns_add_u32 s54, s54, s53\nv_mov_b32 v5, s54\nv_mov_b32 v7, 0')
        a('s_mov_b64 exec, 15\ns_waitcnt lgkmcnt(0)')
        for k, (v, p) in enumerate(((4, 16), (4, 18), (3, 6), (3, 8), (5, 20), (5, 12), (7, 22))):
            a(f'global_load_dword v{240+k}, v{v}, s[{p}:{p+1}]')
        a('s_mov_b64 exec, -1\nL_notlb:')
    if stamps: a('s_mov_b64 s[66:67], 0')
    a('v_mov_b32 v16, -1\nv_mov_b32 v17, -1\nv_mov_b32 v18, -1\nv_mov_b32 v19, -1')
    a(f'v_lshlrev_b32 v13, 4, v1\nv_add_u32 v12, {L_Q}, v13')
    for k in range(7): a(f'ds_write_b128 v12, v[16:19] offset:{1024*k}')
    assert L_Q + 7168 == L_END
    a('s_waitcnt lgkmcnt(0)\ns_barrier')
    zstamps(); consts()
    a(f'v_mov_b32 v9, {OOB}\nv_mov_b32 v15, 0xffffff00\nv_lshrrev_b32 v2, 4, v1\nv_and_b32 v3, 15, v1\nv_and_b32 v14, 7, v1')
    a('s_and_b32 s55, s2, 7\ns_lshr_b32 s54, s2, 3')
    ldswait('f0h', L_F+F0, 4)
    get_tag(11); tags(8, (0, 8, 16, 24))
    a('s_cmp_eq_u32 s3, 2\ns_cbranch_scc1 L_H2')
    a('s_cmp_eq_u32 s3, 3\ns_cbranch_scc1 L_H3')
    L, C = 128, 144
    a(f's_lshl_b32 s59, s54, 12\ns_add_u32 s59, s59, {QP}\ns_lshl_b32 s58, s55, 9\ns_add_u32 s58, s58, s59')
    a(f'v_add_u32 v10, {L_QR}, v13\nv_cmp_gt_u32 vcc, 32, v1\nv_cndmask_b32 v8, v9, v13, vcc')
    def sum_halves(r):
        for k in range(4): a(f'v_mov_b32 v{r+4+k}, v{r+k}')
        for k in range(4): a(f'v_permlane32_swap_b32 v{r+4+k}, v{r+k}')
        for k in range(4): a(f'v_add_f32 v{r+k}, v{r+k}, v{r+4+k}')
    ldsdata('qr', [f'ds_read_b128 v[{L+4*n}:{L+4*n+3}], v10 offset:{1024*n}' for n in range(2)], range(L, L+8), 20, 2)
    for k in range(4): a(f'v_add_f32 v{L+k}, v{L+k}, v{L+4+k}')
    sum_halves(L)
    put_tag(L, 4, 8, 15)
    a(f'buffer_store_dwordx4 v[{L}:{L+3}], v8, s[28:31], s58 offen sc1')
    stamp(2)
    a('s_and_b32 s88, s96, 0xffff\ns_lshr_b32 s89, s96, 16')
    a('s_xor_b32 s53, s54, s2\ns_and_b32 s53, s53, 7\ns_cbranch_scc1 L_qf0')
    a(f's_lshl_b32 s57, s54, 9\ns_add_u32 s57, s57, {QF}\ns_waitcnt vmcnt(0)')
    gather('qp', [(f'buffer_load_dwordx4 v[{L+4*n}:{L+4*n+3}], v13, s[28:31], s59 offen offset:{1024*n} sc1', L+4*n, 4) for n in range(4)],
           C, lambda k, d: f's{97+d}', '0xff', 20, 4, 'instr')
    for k in range(4): a(f'v_add_f32 v{C+k}, v{C+k}, v{C+4+k}\nv_add_f32 v{C+8+k}, v{C+8+k}, v{C+12+k}')
    for k in range(4): a(f'v_add_f32 v{C+k}, v{C+k}, v{C+8+k}')
    sum_halves(C)
    for k in range(4): a(f'v_cvt_pk_bf16_f32 v{20+k}, v{C+k}, v{C+k}\nv_lshlrev_b32 v{20+k}, 16, v{20+k}\nv_or_b32 v{20+k}, s{88+(k & 1)}, v{20+k}')
    a('buffer_store_dwordx4 v[20:23], v8, s[28:31], s57 offen sc1')
    stamp(10)
    a('L_qf0:')
    ldswait('f1', L_F+F1, 2)
    stamp(3)
    a(f's_lshr_b32 s52, s2, 6\ns_lshl_b32 s52, s52, 12\ns_add_u32 s52, s52, {QF}')
    gather('qf', [(f'buffer_load_dwordx4 v[{L+4*n}:{L+4*n+3}], v13, s[28:31], s52 offen offset:{1024*n} sc1', L+4*n, 4) for n in range(4)],
           C, lambda k, d: f's{88+(d & 1)}', '0xffff', 20, sleep, 'lane')
    a(f'v_lshrrev_b32 v11, 5, v1\nv_lshlrev_b32 v11, 1, v11\nv_add_lshl_u32 v11, v11, v1, 3\nv_add_u32 v11, {L_Q}, v11')
    for n in range(4):
        a(f'v_perm_b32 v{20+2*n}, v{C+4*n+1}, v{C+4*n}, s61\nv_perm_b32 v{21+2*n}, v{C+4*n+3}, v{C+4*n+2}, s61')
        a(f'ds_write_b64 v11, v[{20+2*n}:{21+2*n}] offset:{544*n}')
    stamp(4)
    srd(40, 22, 2048); srd(44, 4, 2048)
    a('s_lshl_b32 s50, s55, 5\ns_add_u32 s50, s50, s54\ns_lshl_b32 s55, s50, 3')
    a(f's_lshr_b32 s51, s50, 3\ns_lshl_b32 s51, s51, 13\ns_and_b32 s50, s50, 7\ns_lshl_b32 s50, s50, 4\ns_add_u32 s50, s50, s51\ns_add_u32 s51, s50, {FP}\ns_add_u32 s50, s50, {SP}')
    a('v_lshlrev_b32 v11, 7, v1\nv_lshlrev_b32 v12, 1, v2')
    a('buffer_load_ushort v15, v12, s[44:47], s55 offen')
    a('v_cmp_eq_u32 vcc, 0, v3\nv_cndmask_b32 v13, v9, v12, vcc')
    a(f's_xor_b32 s57, s96, {CMIX}\nv_mov_b32 v17, s57\nv_or_b32 v18, s2, v1\nv_mov_b32 v19, {EP}\nv_cmp_eq_u32 vcc, 0, v18\nv_cndmask_b32 v16, v9, v19, vcc')
    tags(12, SH12)
    a(f'v_mov_b32 v14, {L_F+F3}')
    ldsdata('f3b', ['ds_read_b128 v[40:43], v14'], range(40, 44), 22, 2)
    t12 = lambda k, d: f's{97+d}'
    gather('fg', [('buffer_load_dwordx4 v[32:35], v11, s[28:31], s51 offen sc1', 32, 4)], 24, t12, '0xfff', 20, 2, 'lane')
    sload = 'buffer_load_dwordx4 v[36:39], v11, s[28:31], s50 offen sc1'
    a(sload)
    red4(24); allred_row('v_add_f32', 24)
    rbf(24); silu(24, 25); rbf(24)
    a('v_lshlrev_b32 v15, 16, v15')
    stamp(8)
    gather('sg', [(sload, 36, 4)], 28, t12, '0xfff', 20, 0, 'lane', first=False)
    stamp(9)
    red4(28); allred_row('v_add_f32', 28)
    rbf(28)
    a('v_mul_f32 v28, v28, v24'); rbf(28)
    a('v_add_f32 v28, v28, v15\nv_cvt_pk_bf16_f32 v28, v28, v28')
    a('buffer_store_short v28, v13, s[40:43], s55 offen')
    a('buffer_store_dword v17, v16, s[28:31], 0 offen sc1')
    finish()
    a('L_H2:')
    a('s_cmp_ge_u32 s2, 224\ns_cbranch_scc1 L_nogu')
    for sr, sh in ((56, shg), (57, shu)):
        a(f's_add_u32 s{sr}, s54, {sh}\ns_cmp_ge_u32 s{sr}, 28\ns_cselect_b32 s59, 28, 0\ns_sub_u32 s{sr}, s{sr}, s59\ns_lshl_b32 s{sr}, s{sr}, 13')
    a(f's_add_u32 s57, s57, {4096-512}\ns_lshl_b32 s58, s55, 9')
    a('v_mov_b32 v8, s57\nv_mov_b32 v10, s56\nv_cmp_gt_u32 vcc, 32, v1\nv_cndmask_b32 v8, v8, v10, vcc\nv_add_u32 v8, v8, v13')
    a(f'v_and_b32 v10, 32, v1\nv_lshl_add_u32 v10, v10, 4, v13\nv_add_u32 v10, {L_GR}, v10')
    ldsdata('gr', [f'ds_read_b128 v[{L+4*n}:{L+4*n+3}], v10 offset:{512*n}' for n in range(2)], range(L, L+8), 20, 4)
    for k in range(4): a(f'v_add_f32 v{L+k}, v{L+k}, v{L+4+k}')
    put_tag(L, 4, 8, 15)
    assert GU == 0
    a(f'buffer_store_dwordx4 v[{L}:{L+3}], v8, s[28:31], s58 offen sc1')
    stamp(2)
    a('L_nogu:')
    rb_of('s52', 's53')
    a('s_mul_i32 s52, s52, 56\ns_movk_i32 s53, 0x1000')
    ldswait('qseen', L_Q, 4)
    a('v_min_u32 v12, 6, v14\nv_lshrrev_b32 v10, 3, v1\nv_mul_u32_u24 v10, 7, v10\nv_add3_u32 v10, v10, v12, s52')
    a('v_lshlrev_b32 v12, 3, v10\nv_and_b32 v12, 24, v12\nv_bfe_u32 v12, s96, v12, 8')
    a('v_lshrrev_b32 v11, 7, v10\nv_and_b32 v10, 127, v10\nv_lshlrev_b32 v10, 2, v10\nv_lshl_add_u32 v10, v11, 13, v10')
    gather('hg', [(f'buffer_load_dword v{L+p}, v10, s[28:31], {"s53" if p >> 3 else "0"} offen offset:{512*(p & 7)} sc1', L+p, 1) for p in range(16)],
           32, lambda k, d: 'v12', '0xff', 4, sleep, 'instr')
    for b in (32, 40):
        for k in range(4): a(f'v_add_f32 v{b+k}, v{b+k}, v{b+4+k}')
        a(f'v_add_f32 v{b}, v{b}, v{b+1}\nv_add_f32 v{b+2}, v{b+2}, v{b+3}\nv_add_f32 v{b}, v{b}, v{b+2}')
    rbf(32); rbf(40); silu(32, 21); rbf(32)
    a('v_mul_f32 v20, v32, v40\nv_cvt_pk_bf16_f32 v20, v20, v20')
    a('v_cmp_ne_u32 vcc, 7, v14\nv_cndmask_b32 v20, 0, v20, vcc')
    a('v_mov_b32_dpp v21, v20 quad_perm:[0,0,2,2] row_mask:0xf bank_mask:0xf\nv_mov_b32_dpp v22, v20 quad_perm:[1,1,3,3] row_mask:0xf bank_mask:0xf')
    a(f'v_perm_b32 v20, v22, v21, s60\nv_and_b32 v10, 62, v1\nv_lshlrev_b32 v10, 1, v10\nv_add_u32 v10, {L_H}, v10\nds_write_b32 v10, v20')
    stamp(4)
    a('s_branch L_H23')
    a('L_H3:')
    a(f'v_lshlrev_b32 v10, 3, v14\nv_add_u32 v11, {L_MLW}, v10\ns_mov_b32 s88, {LOG2E}\ns_lshr_b32 s90, s96, 16\ns_and_b32 s97, s96, 0xfff')
    a(f's_lshl_b32 s89, s2, 6\ns_add_u32 s89, s89, {ML}\nv_cmp_gt_u32 vcc, 8, v1\nv_cndmask_b32 v10, v9, v10, vcc\nv_mov_b32 v15, 0xfffff000')
    ldsdata('mlp_w', [f'ds_read_b64 v[{20+2*w}:{21+2*w}], v11 offset:{64*w}' for w in range(4)], range(20, 28), 28, 4)
    a('v_max3_f32 v28, v20, v22, v24\nv_max_f32 v28, v28, v26\nv_mul_f32 v30, s88, v28\nv_ceil_f32 v30, v30')
    for w in range(4): a(f'v_fma_f32 v{20+2*w}, v{20+2*w}, s88, -v30\nv_exp_f32 v{20+2*w}, v{20+2*w}')
    a('v_mul_f32 v33, v20, v21\nv_fmac_f32 v33, v22, v23\nv_fmac_f32 v33, v24, v25\nv_fmac_f32 v33, v26, v27')
    put_tag(33, 1, 12, 15)
    a('v_or_b32 v32, s90, v28')
    a('buffer_store_dwordx2 v[32:33], v10, s[28:31], s89 offen sc1')
    stamp(4)
    a('L_H23:')
    optags()
    a(f'v_mul_u32_u24 v6, 528, v2\nv_lshl_add_u32 v6, v3, 5, v6')
    a(f's_and_b32 s59, s3, 1\ns_mul_i32 s57, s59, 2112\ns_add_u32 s57, s57, {L_OR}\nv_add_u32 v6, s57, v6')
    a('v_lshrrev_b32 v7, 3, v1\nv_lshlrev_b32 v7, 13, v7\nv_lshl_add_u32 v7, v19, 4, v7')
    a(f's_lshr_b32 s56, s2, 6\ns_lshl1_add_u32 s56, s56, s59\ns_lshl_b32 s56, s56, 16\ns_and_b32 s57, s2, 63\ns_lshl_b32 s57, s57, 7\ns_add_u32 s56, s56, s57\ns_add_u32 s56, s56, {OP}')
    a('v_mov_b32 v15, 0xfffefffe')
    ldswait('or23', L_OR, 1)
    R = 64
    ldsdata('orw', [f'ds_read_b128 v[{R+8*w+4*e}:{R+8*w+4*e+3}], v6 offset:{4224*w+16*e}' for w in range(4) for e in range(2)], range(R, R+32), 20, 0)
    for k in range(0, 8, 2): a(f'v_pk_add_f32 v[{R+k}:{R+k+1}], v[{R+k}:{R+k+1}], v[{R+8+k}:{R+9+k}]\nv_pk_add_f32 v[{R+16+k}:{R+17+k}], v[{R+16+k}:{R+17+k}], v[{R+24+k}:{R+25+k}]')
    for k in range(0, 8, 2): a(f'v_pk_add_f32 v[{R+k}:{R+k+1}], v[{R+k}:{R+k+1}], v[{R+16+k}:{R+17+k}]')
    for k in range(8): a(f'v_add_u32 v{R+k}, 0x10000, v{R+k}')
    for k in range(4): a(f'v_perm_b32 v{20+k}, v{R+2*k+1}, v{R+2*k}, s61')
    for k in range(4): a(f'v_and_or_b32 v{20+k}, v{20+k}, v15, v{28+k}')
    a(f'buffer_store_dwordx4 v[20:23], v7, s[28:31], s56 offen sc1')
    stamp(6)
    finish()
    a('L_exit:\ns_endpgm')
    a.raw(f'''.section .rodata,"a"
.p2align 6
.amdhsa_kernel {KNAME}
  .amdhsa_next_free_vgpr 256
  .amdhsa_next_free_sgpr 102
  .amdhsa_accum_offset 256
  .amdhsa_group_segment_fixed_size 0
  .amdhsa_kernarg_size 96
  .amdhsa_user_sgpr_count 2
  .amdhsa_user_sgpr_kernarg_segment_ptr 1
  .amdhsa_system_sgpr_workgroup_id_x 1
  .amdhsa_float_denorm_mode_32 3
.end_amdhsa_kernel''')
    return a.text()

if __name__ == '__main__':
    out = sys.argv[1]
    kw = eval('dict(' + (sys.argv[2] if len(sys.argv) > 2 else '') + ')')
    open(out, 'w').write(gen(**kw))
```

```python
import sys
sys.path.insert(0, 'work')
from asmlib import Asm

KNAME = 'recurrent_scan__gqa_block_cached__swiglu_ffn__decode_kernel'
MB = 1 << 20
GU = 0
HF = 229376
EP = 245760
SF, OP = 262144, 786432
ML, QF, QP, WSEND = 1310720, 1327104, 1343488, 1474560
STAMPS = 8 * MB
L_K, L_OR, L_X, L_Q = 0, 131072, 147968, 150016
L_MLW, L_H, L_O16, L_F, L_QR, L_GR, L_END = 152192, 152512, 152640, 152768, 153088, 155136, 157184
F0, F1, FM, FT, F3, F3E = 0, 4, 8, 12, 16, 32
OOB = 0x40000000
LOG2E = 0x3fb8aa3b
SCALE = 0x3db504f3
SPIN = 400000
CMIX = 0x9e3779b9
SH12 = (0, 12, 20, 6)

HEADER = open('recurrent_scan__gqa_block_cached__swiglu_ffn__decode.s.ref').read().split('; Override')[0]

def gen(plain='', win=((0,7),(66,6),(84,5)), winL=None, nbr=81, late=(), sample=None, bias=None, pipe=False, slS=0, slO=0, dlS=0, nX=18, nB1=10, nF1=24, shu=2, shg=1, f3at=14, rot=0, lightred=True, f3e=None,
        pref=True, tlbpf=False, stamps=False, sleep=8, abl=()):
    if sample is None: sample = bool(late)
    a0 = Asm()
    cur = ['']
    class A:
        def __call__(self, text, tag=None):
            for t in text.split('\n'):
                if 'sc1' in t and t.startswith('buffer_store') and 'st' in abl and tag is None: continue
                if 'sc1' in t and t.startswith('buffer_load') and ('ld' in abl or cur[0] in abl): continue
                a0(t, tag)
        def __getattr__(self, n): return getattr(a0, n)
        def __setattr__(self, n, v): setattr(a0, n, v)
    a = A()
    PL = {k: ('' if k in plain else ' nt') for k in 'qgkvdo'}
    def sched(sc, i): return [w for (st, w) in sc if st <= i][-1]
    def stamp(k):
        if stamps: a(f's_memrealtime s[{64+2*k}:{65+2*k}]')
    def srd(d, p, size):
        a(f's_mov_b32 s{d}, s{p}\ns_mov_b32 s{d+1}, s{p+1}\ns_mov_b32 s{d+2}, {size}\ns_mov_b32 s{d+3}, 0x20000')
    def allred_row(op, v, steps=(8, 4, 2, 1)):
        for r in steps: a(f'{op}_dpp v{v}, v{v}, v{v} row_ror:{r} row_mask:0xf bank_mask:0xf')
    def allred_xrow(op, v, t):
        a(f'v_mov_b32 v{t}, v{v}\nv_permlane16_swap_b32 v{t}, v{v}\n{op} v{v}, v{v}, v{t}')
        a(f'v_mov_b32 v{t}, v{v}\nv_permlane32_swap_b32 v{t}, v{v}\n{op} v{v}, v{v}, v{t}')
    def rbf(v):
        a(f'v_cvt_pk_bf16_f32 v{v}, v{v}, v{v}\nv_lshlrev_b32 v{v}, 16, v{v}')
    def perms_pair(La, Lb, TB, u):
        for d in range(4):
            a(f'v_perm_b32 v{TB+4*(2*d)+u}, v{Lb+d}, v{La+d}, s60')
            a(f'v_perm_b32 v{TB+4*(2*d+1)+u}, v{Lb+d}, v{La+d}, s61')
    def tree(op2, op3, regs, t):
        regs = list(regs)
        if len(regs) == 2:
            a(f'{op2} v{t}, v{regs[0]}, v{regs[1]}'); return
        a(f'{op3} v{t}, v{regs[0]}, v{regs[1]}, v{regs[2]}')
        regs = regs[3:]
        while len(regs) >= 2:
            a(f'{op3} v{t}, v{t}, v{regs[0]}, v{regs[1]}'); regs = regs[2:]
        if regs: a(f'{op2} v{t}, v{t}, v{regs[0]}')
    def umax(regs, t): tree('v_max_u32', 'v_max3_u32', regs, t)
    def orall(regs, t): tree('v_or_b32', 'v_or3_b32', regs, t)
    def again(lbl): a(f's_sub_u32 s62, s62, 1\ns_cmp_gt_i32 s62, 0\ns_cbranch_scc1 {lbl}')
    def retry(lbl_loop, lbl_done, slp):
        a(f's_cbranch_vccz {lbl_done}')
        if slp: a(f's_sleep {slp}')
        again(lbl_loop)
        a(f'{lbl_done}:')
    def gather(name, loads, clean, tag, mask, tmp, slp, mode, first=True, each=None, pre=None, onfail=None):
        n = len(loads)
        cur[0] = name
        if first:
            for t, _, _ in loads: a(t)
        a(f'L_{name}:')
        tk = []; c0 = clean
        for k, (_, r, c) in enumerate(loads):
            if k == 0 or (first and each): a(f's_waitcnt vmcnt({n-1-k if (first and each) else 0})')
            for d in range(c): a(f'v_xor_b32 v{c0+d}, {tag(k, d)}, v{r+d}')
            if pre: pre(c0, tmp+k); tk.append(tmp+k)
            elif c > 1: orall(range(c0, c0+c), tmp+k); tk.append(tmp+k)
            else: tk.append(c0)
            if each: each(k, c0)
            c0 += c
        if n > 1: orall(tk, tmp+n)
        a(f'v_and_b32 v{tmp+n}, {mask}, v{tmp+n if n > 1 else tk[0]}\nv_cmp_ne_u32 vcc, 0, v{tmp+n}')
        a(f's_branch L_{name}_ok' if abl else f's_cbranch_vccz L_{name}_ok')
        if slp: a(f's_sleep {slp}')
        if onfail: onfail()
        for k, (t, _, _) in enumerate(loads):
            if n > 1 or mode == 'line8':
                a(f'v_and_b32 v{tmp+n}, {mask}, v{tk[k]}')
                if mode == 'line8':
                    for m in ('quad_perm:[1,0,3,2]', 'quad_perm:[2,3,0,1]', 'row_half_mirror'):
                        a(f'v_or_b32_dpp v{tmp+n}, v{tmp+n}, v{tmp+n} {m} row_mask:0xf bank_mask:0xf')
                a(f'v_cmp_ne_u32 vcc, 0, v{tmp+n}\ns_cbranch_vccz L_{name}_s{k}')
            if mode == 'instr': a(t)
            else: a(f's_mov_b64 exec, vcc\n{t}\ns_mov_b64 exec, -1')
            if n > 1 or mode == 'line8': a(f'L_{name}_s{k}:')
        a('s_waitcnt vmcnt(0)')
        again(f'L_{name}')
        a(f'L_{name}_ok:')
    def ldswait(name, addr, slp):
        a(f'v_mov_b32 v12, {addr}\nL_{name}:')
        a(f'ds_read_b32 v11, v12\ns_waitcnt lgkmcnt(0)\nv_cmp_eq_u32 vcc, -1, v11')
        retry(f'L_{name}', f'L_{name}_ok', slp)
    def ldsdata(name, reads, regs, t, slp):
        a(f'L_{name}:')
        for r in reads: a(r)
        a('s_waitcnt lgkmcnt(0)')
        umax(regs, t)
        a(f'v_cmp_eq_u32 vcc, -1, v{t}')
        retry(f'L_{name}', f'L_{name}_ok', slp)
    def get_tag(t):
        a(f'v_mov_b32 v{t}, {L_F}\nds_read_b32 v{t}, v{t} offset:{FT}\ns_waitcnt lgkmcnt(0)\nv_readfirstlane_b32 s96, v{t}')
    def tags(bits, shifts, s0=97):
        for d, sh in enumerate(shifts): a(f's_bfe_u32 s{s0+d}, s96, {(bits << 16) | sh}')
    def put_tag(r, n, bits, vm, s0=97):
        for d in range(n): a(f'v_add_u32 v{r+d}, {1 << (bits-1)}, v{r+d}')
        for d in range(n): a(f'v_and_or_b32 v{r+d}, v{r+d}, v{vm}, s{s0+d}')
    def silu(v, t):
        a(f'v_mul_f32 v{t}, 0xbfb8aa3b, v{v}\nv_exp_f32 v{t}, v{t}\nv_add_f32 v{t}, 1.0, v{t}\nv_rcp_f32 v{t}, v{t}\nv_mul_f32 v{v}, v{v}, v{t}')
    def fold_cols(D, o, rm='0xf'):
        for k in range(4):
            a(f'v_add_f32_dpp v{o+k}, v{D+4*k+1}, v{D+4*k} row_ror:8 row_mask:{rm} bank_mask:0x3')
            a(f'v_add_f32_dpp v{o+((k+2)&3)}, v{D+4*(((k+2)&3)+4)}, v{D+4*(((k+2)&3)+4)+1} row_ror:8 row_mask:{rm} bank_mask:0xc')
    def red4(r):
        a(f'v_permlane32_swap_b32 v{r}, v{r+2}\nv_permlane32_swap_b32 v{r+1}, v{r+3}')
        a(f'v_add_f32 v{r}, v{r}, v{r+2}\nv_add_f32 v{r+1}, v{r+1}, v{r+3}')
        a(f'v_permlane16_swap_b32 v{r}, v{r+1}\nv_add_f32 v{r}, v{r}, v{r+1}')
    def rb_of(d, t):
        a(f's_lshr_b32 {d}, s2, 5\ns_lshl_b32 {d}, {d}, 3\ns_and_b32 {t}, s2, 7\ns_add_u32 {d}, {d}, {t}')
    def gj(g, j, t):
        a(f's_bfe_u32 {g}, s2, 0x20003')
        if j: rb_of(j, t)
    def consts():
        a(f's_mov_b32 s60, 0x05040100\ns_mov_b32 s61, 0x07060302\ns_mov_b32 s62, {SPIN}')
        srd(28, 26, WSEND)
    def finish():
        if stamps:
            stamp(7)
            a('s_waitcnt lgkmcnt(0)')
            a('s_lshl_b32 s52, s2, 3\ns_add_u32 s52, s52, s3\ns_lshl_b32 s52, s52, 7')
            a(f's_add_u32 s54, s26, {STAMPS}\ns_addc_u32 s55, s27, 0')
            a('v_mov_b32 v2, s52\ns_mov_b64 exec, 1')
            for k in range(6):
                a(f'v_mov_b32 v4, s{64+4*k}\nv_mov_b32 v5, s{65+4*k}\nv_mov_b32 v6, s{66+4*k}\nv_mov_b32 v7, s{67+4*k}')
                a(f'global_store_dwordx4 v2, v[4:7], s[54:55] offset:{16*k}\ns_nop 1')
        a('s_endpgm')
    def zstamps():
        if stamps:
            for k in range(68, 88, 2): a(f's_mov_b64 s[{k}:{k+1}], 0')

    a.raw(HEADER.rstrip())
    a.raw(f'; @launch grid=(256,1,1) block=(512,1,1) lds={L_END}')
    a.raw('.amdgcn_target "amdgcn-amd-amdhsa--gfx950"\n.text')
    a.raw(f'.globl {KNAME}\n.p2align 8\n.type {KNAME},@function\n{KNAME}:')
    stamp(0)
    a('s_load_dwordx16 s[4:19], s[0:1], 0\ns_load_dwordx8 s[20:27], s[0:1], 64')
    a('v_lshrrev_b32 v2, 6, v0\nv_and_b32 v1, 63, v0\nv_readfirstlane_b32 s3, v2')
    a('s_cmp_ge_u32 s2, 256\ns_cbranch_scc1 L_exit')
    a('s_cmp_ge_u32 s3, 4\ns_cbranch_scc1 L_S')
    XS = 40
    a('s_setprio 2')
    a('s_cmp_lg_u32 s3, 0\ns_cbranch_scc1 L_H123')
    if pref:
        a(f's_getpc_b64 s[56:57]\nL_pc:\ns_lshr_b32 s58, s2, 3\ns_mulk_i32 s58, 640\nv_and_b32 v2, 7, v1\nv_lshl_add_u32 v2, v2, 7, s58')
        a(f'v_min_u32 v2, L_exit-L_pc, v2\nglobal_load_dword v255, v2, s[56:57]')
    a(f'v_lshlrev_b32 v7, 5, v1\nv_mov_b32 v8, {EP}\ns_waitcnt lgkmcnt(0)')
    a(f'global_load_dwordx4 v[{XS}:{XS+3}], v7, s[4:5]\nglobal_load_dwordx4 v[{XS+4}:{XS+7}], v7, s[4:5] offset:16')
    a('global_load_dword v14, v8, s[26:27] sc1')
    stamp(1)
    a('s_branch L_H0')

    a('L_S:')
    V, TB, PO, O, S, PP, QL, QH, D, X = 128, 96, 64, 48, 32, 24, 64, 80, 64, 32
    n_ld = [0]
    W = [win]
    def pace():
        a.vm_window(sched(W[0], n_ld[0])); n_ld[0] += 1
    a('s_sub_u32 s63, s3, 4')
    a('s_and_b32 s55, s2, 7\ns_lshr_b32 s54, s2, 3')
    a('s_lshl2_add_u32 s53, s55, s63\ns_lshl_b32 s52, s53, 10\ns_add_u32 s52, s52, s54\ns_lshl_b32 s52, s52, 8')
    a('v_lshrrev_b32 v2, 4, v1\nv_and_b32 v3, 15, v1\nv_lshlrev_b32 v4, 4, v3\nv_lshl_add_u32 v6, v2, 16, v4')
    a('s_movk_i32 s57, 0x2000\ns_lshl_b32 s34, s57, 10\ns_mov_b32 s35, 0x20000\ns_waitcnt lgkmcnt(0)\ns_mov_b64 s[32:33], s[10:11]')
    a.vm_reset()
    def s_setup():
        stamp(1)
        a('v_lshlrev_b32 v9, 4, v1')
        a(f's_mul_i32 s58, s63, 4224\ns_add_u32 s58, s58, {L_OR}\nv_add_u32 v10, s58, v9')
        for k in range(4): a(f'v_mov_b32 v{20+k}, -1')
        for k in range(4): a(f'ds_write_b128 v10, v[20:23] offset:{1024*k}')
        a('ds_write_b128 v10, v[20:23] offset:3200')
        zstamps(); consts()
        a(f's_cmp_ge_u32 s63, 2\ns_cselect_b64 s[36:37], s[18:19], s[16:17]\ns_cselect_b32 s58, {shu}, {shg}')
        a(f's_mov_b32 s38, {1024*7168}\ns_mov_b32 s39, 0x20000')
        a('s_add_u32 s58, s58, s54\ns_cmp_ge_u32 s58, 28\ns_cselect_b32 s59, 28, 0\ns_sub_u32 s58, s58, s59\ns_lshl_b32 s58, s58, 8')
        a(f's_and_b32 s59, s63, 1\ns_lshl1_add_u32 s59, s55, s59\ns_mul_i32 s50, s59, {64*7168}\ns_add_u32 s50, s50, s58')
        a(f'v_mul_u32_u24 v7, {8*7168}, v2\nv_add_u32 v7, v7, v4')
        a(f's_lshl_b32 s53, s53, 6\ns_add_u32 s53, s53, {L_X}\nv_lshl_add_u32 v12, v2, 4, s53')
        a(f's_lshl_b32 s59, s59, 7\ns_add_u32 s59, s59, {L_X}\nv_lshl_add_u32 v13, v2, 4, s59')
        a(f's_lshl_b32 s59, s63, 9\ns_add_u32 s59, s59, {L_QR}\nv_lshlrev_b32 v14, 5, v3\nv_lshl_add_u32 v14, v2, 4, v14\nv_add_u32 v14, s59, v14')
        a('s_waitcnt lgkmcnt(0)\ns_barrier')
    for i in range(8):
        pace()
        a(f'buffer_load_dwordx4 v[{V+4*i}:{V+4*i+3}], v6, s[32:35], s52 offen{PL["q"]}', tag=('q', i))
        if i < 7: a('s_add_u32 s52, s52, s57')
        if i == min(sched(win, 0), 8) - 1: s_setup()
    def kv_setup():
        gj('s52', 's53', 's54')
        a('s_lshl2_add_u32 s53, s53, s63\ns_lshl_b32 s54, s52, 10')
        for T in range(4):
            a(f's_add_u32 s56, s53, {rot*T}\ns_and_b32 s56, s56, 255\ns_add_u32 s56, s56, s54\ns_add_u32 s56, s56, {256*T}\ns_lshl_b32 s{88+T}, s56, 13')
        a('s_lshl_b32 s55, s63, 15')
        a('v_lshlrev_b32 v5, 6, v2\nv_xor_b32 v5, v5, v4\nv_lshl_add_u32 v16, v2, 8, v5')
        for k in range(1, 4): a(f'v_xor_b32 v{16+k}, {16*k}, v16')
        srd(40, 6, 32*MB); srd(44, 8, 32*MB)
    kv_setup()
    def tile_ops(Lb, Xr, first):
        ops = [(lambda u=u: perms_pair(Lb+8*u, Lb+8*u+4, TB, u)) for u in range(4)]
        def mf():
            for j in range(8):
                c = '0' if first else f'v[{D+4*j}:{D+4*j+3}]'
                a(f'v_mfma_f32_16x16x32_bf16 v[{D+4*j}:{D+4*j+3}], v[{Xr}:{Xr+3}], v[{TB+4*j}:{TB+4*j+3}], {c}')
        return ops + [mf]
    def pack128(off):
        for k in range(4): a(f'v_mov_b32 v{20+k}, v{D+4*k}')
        for k in range(4): a(f'v_mov_b32_dpp v{20+k}, v{D+16+4*k} quad_perm:[0,1,2,3] row_mask:0x2 bank_mask:0xf')
        a(f's_mov_b32 exec_hi, 0\nds_write_b128 v14, v[20:23] offset:{off}\ns_mov_b32 exec_hi, -1')
    def xwait(name, gu):
        a(f'v_mov_b32 v20, {L_F}\nL_{name}:\nds_read_b32 v21, v20 offset:{F0}\ns_waitcnt lgkmcnt(0)\nv_cmp_eq_u32 vcc, -1, v21')
        retry(f'L_{name}', f'L_{name}_ok', 1)
        a(f'ds_read_b128 v[{X}:{X+3}], v12')
        if gu: a(f'ds_read_b128 v[{X+4}:{X+7}], v13\nds_read_b128 v[{X+8}:{X+11}], v13 offset:64')
        a('s_waitcnt lgkmcnt(0)')
    def kload(i):
        if i % 4 == 0:
            a(f's_add_u32 m0, s55, {i*1024}\ns_add_u32 s56, s{88+(i >> 3)}, {(i & 4)*1024}')
        pace()
        a(f'buffer_load_dwordx4 v{16+(i & 3)}, s[40:43], s56 offen offset:{1024*(i & 3)}{PL["k"]} lds', tag=('k', i))
        if i == nF1: a(f'v_mov_b32 v20, {L_F}\nds_write_b32 v20, v20 offset:{F1}')
    KJ = 16
    def phase1(gu):
        seq = ([('g', i) for i in range(16)] if gu else []) + [('k', i) for i in range(KJ)]
        work = [(None, lambda: xwait('xw%d' % gu, gu))]
        work += [(('q', 7), f) for f in tile_ops(V, X, True)] + [(None, lambda: (pack128(0), stamp(10)))]
        if gu:
            work += [(('g', 7), f) for f in tile_ops(V+32, X+4, True)] + [(('g', 15), f) for f in tile_ops(V+64, X+8, False)]
            work += [(None, lambda: pack128(L_GR-L_QR))]
        for n, (kind, i) in enumerate(seq):
            if kind == 'g':
                pace()
                a(f'buffer_load_dwordx4 v[{V+32+4*i}:{V+32+4*i+3}], v7, s[36:39], s50 offen{PL["g"]}', tag=('g', i))
                if i < 15: a(f's_add_u32 s50, s50, {7168*25 if i == 7 else 7168}')
            else: kload(i)
            if n + 9 < nX: continue
            st = [t for t in a.vm if isinstance(t, tuple)]
            landed = st[:len(st) - sched(W[0], n_ld[0]-1)]
            k = 0
            while work and k < 3 and (work[0][0] is None or work[0][0] in landed):
                work.pop(0)[1](); k += 1
        assert not work
    vm0, n0 = list(a.vm), n_ld[0]
    a('s_cmp_ge_u32 s2, 224\ns_cbranch_scc0 L_gu')
    n_ld[0] = n0 + 16
    if winL: W[0] = winL
    phase1(0)
    W[0] = win
    a('s_branch L_kj')
    a('L_gu:')
    a.vm = list(vm0); n_ld[0] = n0
    phase1(1)
    a('L_kj:')
    a('v_and_b32 v14, 3, v3\nv_lshlrev_b32 v14, 2, v14\nv_lshrrev_b32 v15, 2, v3\nv_add_u32 v14, v14, v15\nv_lshlrev_b32 v14, 8, v14\nv_add_u32 v14, s55, v14')
    a('v_xor_b32 v15, v2, v3')
    for s in range(4):
        a(f'v_xor_b32 v{10+s}, {4*s}, v15\nv_lshl_add_u32 v{10+s}, v{10+s}, 4, v14')
    if bias:
        mask, wsel = bias
        st0 = (list(a.vm), n_ld[0])
        a(f's_and_b32 s56, s2, 7\ns_lshr_b32 s56, {mask}, s56\ns_and_b32 s56, s56, 1\ns_cbranch_scc0 L_b0')
        W[0] = ((0, wsel),)
        for i in range(KJ, 32): kload(i)
        W[0] = win
        a('s_branch L_b1\nL_b0:')
        a.vm, n_ld[0] = list(st0[0]), st0[1]
    for i in range(KJ, 32): kload(i)
    if bias: a('L_b1:')
    a(f'v_and_b32 v8, 7, v1\nv_mul_u32_u24 v14, 272, v8\nv_lshl_add_u32 v14, v2, 4, v14\nv_add_u32 v14, {L_Q}, v14')
    a('v_cmp_gt_u32 vcc, 8, v3\nv_cndmask_b32 v15, 0, -1, vcc\nv_not_b32 v16, v15')
    a(f'v_lshlrev_b32 v17, 3, v8\nv_add_u32 v17, {L_MLW}, v17')
    vn = [0]
    def vload():
        i = vn[0]; vn[0] += 1
        assert i < 32
        if i % 4 == 0: a(f's_add_u32 s56, s{88+(i >> 3)}, {(i & 4)*1024}')
        pace()
        a(f'buffer_load_dwordx4 v[{V+4*i}:{V+4*i+3}], v9, s[44:47], s56 offen offset:{1024*(i & 3)}{PL["v"]}', tag=('v', i))
    for i in range(nB1): vload()
    a.vm_wait(('k', 31))
    stamp(2)
    ldsdata('qw', [f'ds_read_b128 v[{QL+4*s}:{QL+4*s+3}], v14 offset:{64*s}' for s in range(4)], range(QL, QL+16), 18, 1)
    stamp(3)
    units = [(p, hh, ts) for p in range(2) for hh in range(2) for ts in range(2)]
    def kreads(k):
        p, hh, ts = units[k]
        for s in range(4):
            r = TB + 16*(k & 1) + 4*s
            a(f'ds_read_b128 v[{r}:{r+3}], v{10+s} offset:{(2*p+ts)*8192 + hh*4096}')
    kreads(0); kreads(1)
    vload()
    for k in range(16): a(f'v_and_b32 v{QH+k}, v16, v{QL+k}\nv_and_b32 v{QL+k}, v15, v{QL+k}')
    for k in range(8):
        p, hh, ts = units[k]
        a(f's_waitcnt lgkmcnt({4 if k < 7 else 0})')
        d = S + 8*p + 4*hh
        for s in range(4):
            r = TB + 16*(k & 1) + 4*s; q = (QH if ts else QL) + 4*s
            c = '0' if (ts == 0 and s == 0) else f'v[{d}:{d+3}]'
            a(f'v_mfma_f32_16x16x32_bf16 v[{d}:{d+3}], v[{r}:{r+3}], v[{q}:{q+3}], {c}')
        if k + 2 < 8: kreads(k+2)
        if k in (1, 4, 7): vload()
    a(f's_mov_b32 s57, {SCALE}\ns_mov_b32 s58, {LOG2E}')
    for k in range(0, 16, 2):
        r = S + k
        a(f'v_cvt_pk_bf16_f32 v{r}, v{r}, v{r+1}\nv_and_b32 v{r+1}, 0xffff0000, v{r}\nv_lshlrev_b32 v{r}, 16, v{r}')
        a(f'v_mul_f32 v{r}, s57, v{r}\nv_mul_f32 v{r+1}, s57, v{r+1}')
        a(f'v_cvt_pk_bf16_f32 v{r}, v{r}, v{r+1}\nv_and_b32 v{r+1}, 0xffff0000, v{r}\nv_lshlrev_b32 v{r}, 16, v{r}')
    vload()
    tree('v_max_f32', 'v_max3_f32', range(S, S+16), 18)
    allred_row('v_max_f32', 18, (8,)); allred_xrow('v_max_f32', 18, 20)
    for k in range(16): a(f'v_sub_f32 v{S+k}, v{S+k}, v18\nv_mul_f32 v{S+k}, s58, v{S+k}')
    vload()
    for k in range(16): a(f'v_exp_f32 v{S+k}, v{S+k}')
    a(f'v_add_f32 v19, v{S}, v{S+1}')
    for k in range(2, 16): a(f'v_add_f32 v19, v19, v{S+k}')
    allred_row('v_add_f32', 19, (8,)); allred_xrow('v_add_f32', 19, 20)
    a('s_lshl_b32 s59, s63, 6\nv_add_u32 v20, s59, v17\nds_write_b64 v20, v[18:19]')
    vload()
    for k in range(8): a(f'v_cvt_pk_bf16_f32 v{PP+k}, v{S+2*k}, v{S+2*k+1}')
    stamp(11)
    for p in range(2):
        for k in range(4):
            src = PP + 4*p + k
            a(f'v_and_b32 v{PO+16*p+k}, v15, v{src}')
            a(f'v_mov_b32_dpp v{PO+16*p+4+k}, v{src} row_shr:8 row_mask:0xf bank_mask:0xf bound_ctrl:1')
            a(f'v_mov_b32_dpp v{PO+16*p+8+k}, v{src} row_shl:8 row_mask:0xf bank_mask:0xf bound_ctrl:1')
            a(f'v_and_b32 v{PO+16*p+12+k}, v16, v{src}')
    def pv_pair(pr):
        T, u = pr >> 2, pr & 3
        perms_pair(V+8*pr, V+8*pr+4, TB, u)
        if u == 3:
            for half in range(2):
                for q in range(4):
                    c = '0' if (T == 0 and half == 0) else f'v[{O+4*q}:{O+4*q+3}]'
                    j = q + 4*half; b = PO + 8*T + 4*half
                    a(f'v_mfma_f32_16x16x32_bf16 v[{O+4*q}:{O+4*q+3}], v[{TB+4*j}:{TB+4*j+3}], v[{b}:{b+3}], {c}')
    def tail_setup1():
        srd(32, 12, 4096*2048); srd(36, 20, 3584*2048)
        rb_of('s52', 's53')
        a('s_lshr_b32 s53, s2, 1\ns_and_b32 s53, s53, 12\ns_add_u32 s53, s53, s63')
        a(f's_lshl_b32 s57, s53, 7\ns_mul_i32 s48, s52, {56*2048}\ns_add_u32 s48, s48, s57')
        a('s_lshl_b32 s49, s52, 17\ns_add_u32 s49, s49, s57')
        a(f's_lshl_b32 s50, s53, 15\ns_lshl_b32 s51, s52, 7\ns_add_u32 s50, s50, s51\ns_add_u32 s50, s50, {SF}')
        a(f'v_lshrrev_b32 v20, 3, v1\nv_lshlrev_b32 v21, 4, v8\nv_mul_u32_u24 v6, {7*2048}, v20\nv_add_u32 v6, v6, v21')
        a('v_and_b32 v7, 3, v20\nv_lshl_add_u32 v7, v7, 12, v21\nv_and_b32 v20, 4, v20\nv_lshl_add_u32 v7, v20, 14, v7')
    def tail_setup2():
        a('v_and_b32 v10, 6, v1\nv_lshlrev_b32 v10, 12, v10\nv_and_b32 v20, 8, v1\nv_lshl_add_u32 v10, v20, 2, v10\nv_and_b32 v21, 1, v1\nv_lshl_add_u32 v10, v21, 6, v10\nv_lshl_add_u32 v10, v2, 4, v10')
        a(f'v_mov_b32 v21, {OOB}\nv_cmp_gt_u32 vcc, 32, v1\nv_cndmask_b32 v10, v21, v10, vcc')
        a(f'v_and_b32 v21, 1, v1\nv_lshl_add_u32 v11, v2, 1, v21\nv_lshlrev_b32 v11, 4, v11\nv_add_u32 v11, {L_H}, v11')
        a(f'v_mul_u32_u24 v5, 528, v8\nv_lshl_add_u32 v5, v2, 7, v5\nv_lshl_add_u32 v5, v20, 3, v5')
        a(f's_mul_i32 s57, s63, 4224\ns_add_u32 s57, s57, {L_OR}\nv_add_u32 v5, s57, v5')
        a(f's_lshl_b32 s57, s63, 2\ns_add_u32 s57, s57, {L_F+F3}\nv_mov_b32 v13, s57\nv_mov_b32 v12, 0xfffff000')
        get_tag(20); tags(12, SH12)
    sfx = ['']
    def factor():
        ldsdata('mlw' + sfx[0], [f'ds_read_b32 v{S+w}, v17 offset:{64*w}' for w in range(4)], range(S, S+4), 20, 0)
        a(f'v_max3_f32 v20, v{S}, v{S+1}, v{S+2}\nv_max_f32 v20, v20, v{S+3}\nv_mul_f32 v20, s58, v20\nv_ceil_f32 v20, v20')
        a('v_fma_f32 v18, v18, s58, -v20\nv_exp_f32 v18, v18')
    def o_out():
        stamp(5)
        for q in range(4):
            for k in range(4): a(f'v_mul_f32 v{O+4*q+k}, v18, v{O+4*q+k}')
            a(f'ds_write_b128 v5, v[{O+4*q}:{O+4*q+3}] offset:{16*q}')
    donep = [0]
    def pvw(pr):
        pv_pair(pr); donep[0] = pr + 1
        if pr == 3:
            for k in range(4): a(f'v_mov_b32 v{V+28+k}, 0')
        if pr == 15: o_out()
    work = [(None, tail_setup1), (None, tail_setup2)] + [(('v', 2*pr+1), (lambda pr=pr: pvw(pr))) for pr in range(16)]
    work.insert(len(work) - 2, (None, factor))
    seq = [('v', i) for i in range(vn[0], 32)] + [('d', i) for i in range(7)] + [('o', i) for i in range(8)]
    def run_seq(seq, work, f3):
        for kind, i in seq:
            if kind == 'v': vload()
            elif kind == 'd':
                assert donep[0] >= 4
                if i == 0: stamp(4)
                pace()
                a(f'buffer_load_dwordx4 v[{V+4*i}:{V+4*i+3}], v6, s[36:39], s48 offen offset:{2048*(i & 1)}{PL["d"]}', tag=('d', i))
                if i & 1: a('s_add_u32 s48, s48, 4096')
                if i == f3: a('ds_write_b32 v13, v13')
                if i == f3e: a('ds_write_b32 v13, v13 offset:16')
            else:
                assert donep[0] >= 8
                if i & 3: a('s_add_u32 s49, s49, 16384')
                elif i: a('s_sub_u32 s49, s49, 49152')
                pace()
                a(f'buffer_load_dwordx4 v[{V+32+4*i}:{V+32+4*i+3}], v7, s[32:35], s49 offen offset:{2048*(i >> 2)}{PL["o"]}', tag=('o', i))
                if i + 7 == f3: a('ds_write_b32 v13, v13')
                if i + 7 == f3e: a('ds_write_b32 v13, v13 offset:16')
            st = [t for t in a.vm if isinstance(t, tuple)]
            landed = st[:len(st) - sched(W[0], n_ld[0]-1)]
            k = 0
            while work and k < 2 and (work[0][0] is None or work[0][0] in landed):
                work.pop(0)[1](); k += 1
    if late:
        k0 = nbr - n_ld[0]
        run_seq(seq[:k0], work, f3at); seq = seq[k0:]
        a(f'v_mov_b32 v20, {L_F}\nds_read_b32 v20, v20 offset:{FM}\ns_waitcnt lgkmcnt(0)\nv_readfirstlane_b32 s92, v20')
        if stamps: a('s_add_u32 s82, s92, 2\ns_mov_b32 s83, 0')
        st0 = (list(a.vm), n_ld[0], vn[0], donep[0])
        for vi, (thr, wl, f3) in enumerate(late):
            a(f's_cmp_ge_i32 s92, {thr}\ns_cbranch_scc0 L_var{vi}')
            W[0] = wl; sfx[0] = f'v{vi}'; wk = list(work)
            run_seq(seq, wk, f3)
            assert not wk
            a(f's_branch L_varend\nL_var{vi}:')
            a.vm, n_ld[0], vn[0], donep[0] = list(st0[0]), st0[1], st0[2], st0[3]
        W[0] = win; sfx[0] = ''
    run_seq(seq, work, f3at)
    assert not work
    a('L_varend:')
    ldsdata('hw', [f'ds_read_b128 v[{X}:{X+3}], v11'], range(X, X+4), 20, 1)
    a.vm_wait(('d', 6))
    for f in tile_ops(V, X, True): f()
    fold_cols(D, 20)
    for u in range(4):
        a.vm_wait(('o', 2*u+1))
        perms_pair(V+32+8*u, V+32+8*u+4, TB, u)
    stamp(8)
    ldsdata('ow', [f'ds_read_b128 v[{X}:{X+3}], v11 offset:{L_O16-L_H}'], range(X, X+4), 24, 0)
    for j in (0, 6, 1, 7, 2, 4, 3, 5):
        a(f'v_mfma_f32_16x16x32_bf16 v[{D+4*j}:{D+4*j+3}], v[{X}:{X+3}], v[{TB+4*j}:{TB+4*j+3}], 0')
    fold_cols(D, 20, '0x1')
    put_tag(20, 4, 12, 12)
    a('buffer_store_dwordx4 v[20:23], v10, s[28:31], s50 offen sc1')
    stamp(6)
    finish()

    def optags():
        a('v_mov_b32 v20, s96\nv_and_b32 v19, 7, v1\nv_lshlrev_b32 v21, 2, v19\nv_alignbit_b32 v20, v20, v20, v21')
        for d in range(4): a(f'v_alignbit_b32 v{28+d}, v20, v20, {d}\nv_and_b32 v{28+d}, 0x10001, v{28+d}')
    a('L_H0:')
    t = 20
    a('s_barrier')
    zstamps(); consts()
    a('s_waitcnt vmcnt(1)')
    for d in range(8):
        a(f'v_lshlrev_b32 v{t+2*d}, 16, v{XS+d}\nv_and_b32 v{t+2*d+1}, 0xffff0000, v{XS+d}')
    a(f'v_add_f32 v8, v{t}, v{t+1}')
    for k in range(2, 16): a(f'v_add_f32 v8, v8, v{t+k}')
    allred_row('v_add_f32', 8); allred_xrow('v_add_f32', 8, 9)
    a('v_mul_f32 v8, 0x3a800000, v8')
    a(f'v_sub_f32 v9, v{t}, v8\nv_mul_f32 v10, v9, v9')
    for k in range(1, 16): a(f'v_sub_f32 v9, v{t+k}, v8\nv_fmac_f32 v10, v9, v9')
    allred_row('v_add_f32', 10); allred_xrow('v_add_f32', 10, 9)
    a('v_mul_f32 v10, 0x3a800000, v10')
    rbf(8); rbf(10)
    a('v_add_f32 v10, 0x3727c5ac, v10'); rbf(10)
    a('v_sqrt_f32 v10, v10'); rbf(10)
    a('v_rcp_f32 v11, v10\nv_fma_f32 v12, -v10, v11, 1.0\nv_fma_f32 v11, v12, v11, v11')
    for d in range(8):
        r = t + 2*d
        a(f'v_sub_f32 v{r}, v{r}, v8\nv_sub_f32 v{r+1}, v{r+1}, v8')
        a(f'v_cvt_pk_bf16_f32 v{r}, v{r}, v{r+1}\nv_and_b32 v{r+1}, 0xffff0000, v{r}\nv_lshlrev_b32 v{r}, 16, v{r}')
        a(f'v_mul_f32 v{r}, v{r}, v11\nv_mul_f32 v{r+1}, v{r+1}, v11\nv_cvt_pk_bf16_f32 v{XS+d}, v{r}, v{r+1}')
    a(f'v_add_u32 v7, {L_X}, v7\nds_write_b128 v7, v[{XS}:{XS+3}]\nds_write_b128 v7, v[{XS+4}:{XS+7}] offset:16')
    a(f's_waitcnt vmcnt(0)\nv_xor_b32 v14, {0xffffffff ^ CMIX}, v14\nv_mov_b32 v13, {L_F}')
    a(f'ds_write_b32 v13, v14 offset:{FT}\nv_readfirstlane_b32 s96, v14\ns_waitcnt lgkmcnt(0)')
    a(f'ds_write_b32 v13, v13 offset:{F0}')
    stamp(2)
    G, GC, SEL, MLR = 64, 176, 128, 44
    optags()
    rb_of('s48', 's57')
    a(f's_lshl_b32 s54, s48, 2\ns_and_b32 s54, s54, 48\ns_lshr_b32 s57, s2, 6\ns_lshl_b32 s57, s57, 12\ns_add_u32 s54, s54, s57\ns_add_u32 s54, s54, {ML}')
    a('v_lshlrev_b32 v8, 9, v19\nv_lshrrev_b32 v10, 3, v1\nv_lshl_add_u32 v8, v10, 6, v8')
    a(f's_lshr_b32 s97, s96, 16\ns_and_b32 s98, s96, 0xfff\ns_mov_b32 s58, {LOG2E}')
    a('v_and_b32 v10, 1, v1\nv_lshlrev_b32 v10, 4, v10\nv_mov_b32 v11, 0xffff\nv_lshlrev_b32 v10, v10, v11\nv_bfe_u32 v11, v1, 1, 2')
    for d in range(4): a(f'v_cmp_eq_u32 vcc, {d}, v11\nv_cndmask_b32 v{24+d}, 0, v10, vcc')
    a(f's_lshl_b32 s50, s48, 13\ns_add_u32 s50, s50, {OP}\ns_add_u32 s51, s50, 4096')
    a(f'v_lshrrev_b32 v2, 4, v1\nv_lshlrev_b32 v10, 4, v19\nv_lshl_add_u32 v10, v2, 3, v10\nv_add_u32 v10, {L_O16}, v10')
    a(f'v_lshlrev_b32 v9, 4, v1\nv_mov_b32 v14, {L_F+F3}')
    def mlpre(c0, t):
        a(f'v_or_b32 v{t}, v{c0+1}, v{c0+3}\nv_and_b32 v{t}, 0xfff, v{t}\nv_or3_b32 v{t}, v{t}, v{c0}, v{c0+2}')
    mlload = f'buffer_load_dwordx4 v[{MLR}:{MLR+3}], v8, s[28:31], s54 offen sc1'
    if sample:
        a(f'v_lshlrev_b32 v12, 6, v2\nv_add_u32 v12, {L_MLW}, v12\nL_mlw0:')
        a('ds_read_b32 v11, v12\ns_waitcnt lgkmcnt(0)\nv_cmp_eq_u32 vcc, -1, v11')
        retry('L_mlw0', 'L_mlw0_ok', 1)
        a(mlload + '\ns_waitcnt vmcnt(0)')
        for d in range(4): a(f'v_xor_b32 v{40+d}, s{97+(d & 1)}, v{MLR+d}')
        mlpre(40, 22)
        a(f'v_and_b32 v22, 0xffff, v22\nv_cmp_eq_u32 vcc, 0, v22\ns_bcnt1_i32_b64 s92, vcc\nv_mov_b32 v22, s92\nds_write_b32 v13, v22 offset:{FM}')
        stamp(4)
    ldswait('or0', L_OR, 2)
    stamp(3)
    gather('mlg', [(mlload, MLR, 4)], 40, lambda k, d: f's{97+(d & 1)}', '0xffff', 22, 0 if sample else 4, 'lane', pre=mlpre, first=not sample)
    a('s_bitcmp1_b32 s48, 1\ns_cselect_b64 vcc, -1, 0\nv_cndmask_b32 v16, v40, v42, vcc\nv_cndmask_b32 v17, v41, v43, vcc')
    a('v_mul_f32 v16, s58, v16\nv_ceil_f32 v16, v16\nv_mov_b32 v22, v16')
    allred_row('v_max_f32', 22); allred_xrow('v_max_f32', 22, 23)
    a('v_sub_f32 v16, v16, v22\nv_cvt_i32_f32 v16, v16\nv_ldexp_f32 v16, 1.0, v16\nv_mul_f32 v17, v16, v17')
    allred_row('v_add_f32', 17); allred_xrow('v_add_f32', 17, 23)
    a('v_rcp_f32 v17, v17\nv_perm_b32 v16, v16, v16, s61')
    for n in range(8): a(f'v_mov_b32_dpp v{SEL+32+n}, v16 row_newbcast:{n} row_mask:0xf bank_mask:0x3')
    for n in range(8): a(f'v_mov_b32_dpp v{SEL+32+n}, v16 row_newbcast:{8+n} row_mask:0xf bank_mask:0xc')
    for n in range(8):
        for d in range(4): a(f'v_and_b32 v{SEL+4*n+d}, v{SEL+32+n}, v{24+d}')
    stamp(9)
    ldsdata('f3', [f'ds_read_b128 v[40:43], v14 offset:{0 if f3e is None else 16}'], range(40, 44), 22, 1)
    def omfma(n, c0):
        c = '0' if n == 0 else f'v[{S}:{S+3}]'
        a(f'v_mfma_f32_16x16x32_bf16 v[{S}:{S+3}], v[{SEL+4*n}:{SEL+4*n+3}], v[{c0}:{c0+3}], {c}')
    gather('og', [(f'buffer_load_dwordx4 v[{G+4*n}:{G+4*n+3}], v9, s[28:31], s{50+(n >> 2)} offen offset:{1024*(n & 3)} sc1', G+4*n, 4) for n in range(8)],
           GC, lambda k, d: f'v{28+d}', '0x10001', 112, slO, 'line8', each=omfma,
           onfail=(None if f3e is None else lambda: ldsdata('f3l', ['ds_read_b128 v[40:43], v14'], range(40, 44), 22, 1)))
    stamp(8)
    a('s_nop 1')
    for k in range(4): a(f'v_mul_f32 v{S+4+k}, v17, v{S+k}\nv_mul_f32 v{S+k}, v17, v{S+k}')
    for k in range(4): a(f'v_permlane32_swap_b32 v{S+4+k}, v{S+k}')
    for k in range(4): a(f'v_add_f32_dpp v{S+k}, v{S+k}, v{S+4+k} row_ror:8 row_mask:0xf bank_mask:0xf')
    a(f'v_cvt_pk_bf16_f32 v20, v{S}, v{S+1}\nv_cvt_pk_bf16_f32 v21, v{S+2}, v{S+3}')
    a('s_mov_b64 exec, 0x00ff00ff\nds_write_b64 v10, v[20:21]\ns_waitcnt lgkmcnt(0)')
    finish()

    a('L_H123:')
    if tlbpf:
        a('s_cmp_lg_u32 s3, 1\ns_cbranch_scc1 L_notlb')
        a('s_cmp_lt_u32 s2, 224\ns_cbranch_scc1 L_notlb')
        a('s_lshr_b32 s52, s2, 3\ns_and_b32 s52, s52, 3\ns_and_b32 s55, s2, 7\ns_lshl_b32 s53, s55, 15')
        a('s_lshl_b32 s54, s52, 23\ns_add_u32 s54, s54, s53\nv_lshlrev_b32 v3, 21, v1\nv_add_u32 v3, s54, v3')
        a(f's_lshl2_add_u32 s54, s55, s52\ns_mul_i32 s54, s54, {32*7168}\nv_mov_b32 v4, s54')
        a('s_lshl_b32 s54, s52, 21\ns_add_u32 s54, s54, s53\nv_mov_b32 v5, s54\nv_mov_b32 v7, 0')
        a('s_mov_b64 exec, 15\ns_waitcnt lgkmcnt(0)')
        for k, (v, p) in enumerate(((4, 16), (4, 18), (3, 6), (3, 8), (5, 20), (5, 12), (7, 22))):
            a(f'global_load_dword v{240+k}, v{v}, s[{p}:{p+1}]')
        a('s_mov_b64 exec, -1\nL_notlb:')
    if stamps: a('s_mov_b64 s[66:67], 0')
    a('v_mov_b32 v16, -1\nv_mov_b32 v17, -1\nv_mov_b32 v18, -1\nv_mov_b32 v19, -1')
    a(f'v_lshlrev_b32 v13, 4, v1\nv_add_u32 v12, {L_Q}, v13')
    for k in range(7): a(f'ds_write_b128 v12, v[16:19] offset:{1024*k}')
    assert L_Q + 7168 == L_END
    a('s_waitcnt lgkmcnt(0)\ns_barrier')
    zstamps(); consts()
    a(f'v_mov_b32 v9, {OOB}\nv_mov_b32 v15, 0xffffff00\nv_lshrrev_b32 v2, 4, v1\nv_and_b32 v3, 15, v1\nv_and_b32 v14, 7, v1')
    a('s_and_b32 s55, s2, 7\ns_lshr_b32 s54, s2, 3')
    ldswait('f0h', L_F+F0, 4)
    get_tag(11); tags(8, (0, 8, 16, 24))
    a('s_cmp_eq_u32 s3, 2\ns_cbranch_scc1 L_H2')
    a('s_cmp_eq_u32 s3, 3\ns_cbranch_scc1 L_H3')
    L, C = 128, 144
    a(f's_lshl_b32 s59, s54, 12\ns_add_u32 s59, s59, {QP}\ns_lshl_b32 s58, s55, 9\ns_add_u32 s58, s58, s59')
    a(f'v_add_u32 v10, {L_QR}, v13\nv_cmp_gt_u32 vcc, 32, v1\nv_cndmask_b32 v8, v9, v13, vcc')
    def sum_halves(r):
        for k in range(4): a(f'v_mov_b32 v{r+4+k}, v{r+k}')
        for k in range(4): a(f'v_permlane32_swap_b32 v{r+4+k}, v{r+k}')
        for k in range(4): a(f'v_add_f32 v{r+k}, v{r+k}, v{r+4+k}')
    ldsdata('qr', [f'ds_read_b128 v[{L+4*n}:{L+4*n+3}], v10 offset:{1024*n}' for n in range(2)], range(L, L+8), 20, 2)
    for k in range(4): a(f'v_add_f32 v{L+k}, v{L+k}, v{L+4+k}')
    sum_halves(L)
    put_tag(L, 4, 8, 15)
    a(f'buffer_store_dwordx4 v[{L}:{L+3}], v8, s[28:31], s58 offen sc1')
    stamp(2)
    a('s_and_b32 s88, s96, 0xffff\ns_lshr_b32 s89, s96, 16')
    if lightred:
        a('s_cmp_lt_u32 s2, 224\ns_cbranch_scc1 L_qf0')
        a(f's_sub_u32 s53, s2, 224\ns_lshl_b32 s59, s53, 12\ns_add_u32 s59, s59, {QP}')
    else:
        a('s_xor_b32 s53, s54, s2\ns_and_b32 s53, s53, 7\ns_cbranch_scc1 L_qf0\ns_mov_b32 s53, s54')
    a(f's_lshl_b32 s57, s53, 9\ns_add_u32 s57, s57, {QF}\ns_waitcnt vmcnt(0)')
    gather('qp', [(f'buffer_load_dwordx4 v[{L+4*n}:{L+4*n+3}], v13, s[28:31], s59 offen offset:{1024*n} sc1', L+4*n, 4) for n in range(4)],
           C, lambda k, d: f's{97+d}', '0xff', 20, 4, 'instr')
    for k in range(4): a(f'v_add_f32 v{C+k}, v{C+k}, v{C+4+k}\nv_add_f32 v{C+8+k}, v{C+8+k}, v{C+12+k}')
    for k in range(4): a(f'v_add_f32 v{C+k}, v{C+k}, v{C+8+k}')
    sum_halves(C)
    for k in range(4): a(f'v_cvt_pk_bf16_f32 v{20+k}, v{C+k}, v{C+k}\nv_lshlrev_b32 v{20+k}, 16, v{20+k}\nv_or_b32 v{20+k}, s{88+(k & 1)}, v{20+k}')
    a('buffer_store_dwordx4 v[20:23], v8, s[28:31], s57 offen sc1')
    stamp(10)
    a('s_waitcnt vmcnt(0)')
    a('L_qf0:')
    ldswait('f1', L_F+F1, 2)
    stamp(3)
    gj('s52', None, None)
    a(f's_lshl_b32 s52, s52, 12\ns_add_u32 s52, s52, {QF}')
    gather('qf', [(f'buffer_load_dwordx4 v[{L+4*n}:{L+4*n+3}], v13, s[28:31], s52 offen offset:{1024*n} sc1', L+4*n, 4) for n in range(4)],
           C, lambda k, d: f's{88+(d & 1)}', '0xffff', 20, sleep, 'lane')
    a(f'v_lshrrev_b32 v11, 5, v1\nv_lshlrev_b32 v11, 1, v11\nv_add_lshl_u32 v11, v11, v1, 3\nv_add_u32 v11, {L_Q}, v11')
    for n in range(4):
        a(f'v_perm_b32 v{20+2*n}, v{C+4*n+1}, v{C+4*n}, s61\nv_perm_b32 v{21+2*n}, v{C+4*n+3}, v{C+4*n+2}, s61')
        a(f'ds_write_b64 v11, v[{20+2*n}:{21+2*n}] offset:{544*n}')
    stamp(4)
    srd(40, 22, 2048); srd(44, 4, 2048)
    a('s_lshl_b32 s50, s55, 5\ns_add_u32 s50, s50, s54\ns_lshl_b32 s55, s50, 3')
    a(f's_lshr_b32 s51, s50, 2\ns_lshl_b32 s51, s51, 13\ns_and_b32 s50, s50, 3\ns_lshl_b32 s50, s50, 5\ns_add_u32 s50, s50, s51\ns_add_u32 s50, s50, {SF}\ns_add_u32 s51, s50, 4096')
    a('v_lshrrev_b32 v10, 1, v1\nv_lshlrev_b32 v10, 7, v10\nv_and_b32 v12, 1, v1\nv_lshl_add_u32 v10, v12, 4, v10\nv_lshlrev_b32 v12, 1, v2')
    a('buffer_load_ushort v15, v12, s[44:47], s55 offen')
    a('v_cmp_eq_u32 vcc, 0, v3\nv_cndmask_b32 v13, v9, v12, vcc')
    a(f's_xor_b32 s57, s96, {CMIX}\nv_mov_b32 v17, s57\nv_or_b32 v18, s2, v1\nv_mov_b32 v19, {EP}\nv_cmp_eq_u32 vcc, 0, v18\nv_cndmask_b32 v16, v9, v19, vcc')
    tags(12, SH12)
    a('s_waitcnt vmcnt(0)\nv_lshlrev_b32 v15, 16, v15')
    ldswait('o16', L_O16, 1)
    if dlS: a(f's_sleep {dlS}')
    stamp(8)
    sl = [f'buffer_load_dwordx4 v[{36+4*n}:{39+4*n}], v10, s[28:31], s{50+n} offen sc1' for n in range(2)]
    if not pipe:
        gather('sg', [(sl[n], 36+4*n, 4) for n in range(2)], 28, lambda k, d: f's{97+d}', '0xfff', 20, slS, 'lane')
    else:
        a(sl[0] + '\n' + sl[1] + '\ns_mov_b64 s[88:89], -1\ns_mov_b64 s[90:91], -1')
        a('L_sg:')
        a(f's_or_b64 exec, s[88:89], 1\n{sl[0]}\ns_or_b64 exec, s[90:91], 1\n{sl[1]}\ns_mov_b64 exec, -1')
        a(f's_waitcnt vmcnt({2*pipe})')
        for n in range(2):
            for d in range(4): a(f'v_xor_b32 v{28+4*n+d}, s{97+d}, v{36+4*n+d}')
            orall(range(28+4*n, 32+4*n), 20+n)
            a(f'v_and_b32 v{20+n}, 0xfff, v{20+n}\nv_cmp_ne_u32 s[{88+2*n}:{89+2*n}], 0, v{20+n}')
        a('s_or_b64 vcc, s[88:89], s[90:91]\ns_cbranch_scc0 L_sg_ok')
        again('L_sg')
        a('L_sg_ok:')
    stamp(9)
    a('v_pk_add_f32 v[28:29], v[28:29], v[32:33]\nv_pk_add_f32 v[30:31], v[30:31], v[34:35]')
    red4(28); allred_row('v_add_f32', 28, (8, 4, 2))
    rbf(28)
    a('v_mul_f32 v25, 0xbfb8aa3b, v28\nv_exp_f32 v25, v25\nv_add_f32 v25, 1.0, v25\nv_rcp_f32 v25, v25\nv_mul_f32 v24, v28, v25')
    rbf(24)
    a('v_mul_f32_dpp v28, v24, v28 quad_perm:[1,1,3,3] row_mask:0xf bank_mask:0xf'); rbf(28)
    a('v_add_f32 v28, v28, v15\nv_cvt_pk_bf16_f32 v28, v28, v28')
    a('buffer_store_short v28, v13, s[40:43], s55 offen')
    a('buffer_store_dword v17, v16, s[28:31], 0 offen sc1')
    finish()
    a('L_H2:')
    a('s_cmp_ge_u32 s2, 224\ns_cbranch_scc1 L_nogu')
    for sr, sh in ((56, shg), (57, shu)):
        a(f's_add_u32 s{sr}, s54, {sh}\ns_cmp_ge_u32 s{sr}, 28\ns_cselect_b32 s59, 28, 0\ns_sub_u32 s{sr}, s{sr}, s59\ns_lshl_b32 s{sr}, s{sr}, 13')
    a(f's_add_u32 s57, s57, {4096-512}\ns_lshl_b32 s58, s55, 9')
    a('v_mov_b32 v8, s57\nv_mov_b32 v10, s56\nv_cmp_gt_u32 vcc, 32, v1\nv_cndmask_b32 v8, v8, v10, vcc\nv_add_u32 v8, v8, v13')
    a(f'v_and_b32 v10, 32, v1\nv_lshl_add_u32 v10, v10, 4, v13\nv_add_u32 v10, {L_GR}, v10')
    ldsdata('gr', [f'ds_read_b128 v[{L+4*n}:{L+4*n+3}], v10 offset:{512*n}' for n in range(2)], range(L, L+8), 20, 4)
    for k in range(4): a(f'v_add_f32 v{L+k}, v{L+k}, v{L+4+k}')
    put_tag(L, 4, 8, 15)
    assert GU == 0
    a(f'buffer_store_dwordx4 v[{L}:{L+3}], v8, s[28:31], s58 offen sc1')
    stamp(2)
    a('s_branch L_hget')
    a('L_nogu:')
    a('s_cmp_ge_u32 s2, 252\ns_cbranch_scc1 L_hget')
    a(f's_sub_u32 s53, s2, 224\ns_lshl_b32 s56, s53, 13\ns_add_u32 s57, s56, 4096\ns_lshl_b32 s58, s53, 9\ns_add_u32 s58, s58, {HF}')
    a('s_and_b32 s88, s96, 0xffff\ns_lshr_b32 s89, s96, 16\nv_cmp_gt_u32 vcc, 32, v1\nv_cndmask_b32 v8, v9, v13, vcc')
    ldswait('qseen', L_Q, 4)
    C2 = 160
    gather('gug', [(f'buffer_load_dwordx4 v[{L+4*n}:{L+4*n+3}], v13, s[28:31], s{56+(n >> 2)} offen offset:{1024*(n & 3)} sc1', L+4*n, 4) for n in range(8)],
           C2, lambda k, d: f's{97+d}', '0xff', 20, 4, 'instr')
    for b in (C2, C2+16):
        for k in range(4): a(f'v_add_f32 v{b+k}, v{b+k}, v{b+4+k}\nv_add_f32 v{b+8+k}, v{b+8+k}, v{b+12+k}')
        for k in range(4): a(f'v_add_f32 v{b+k}, v{b+k}, v{b+8+k}')
        sum_halves(b)
    for k in range(4):
        rbf(C2+k); rbf(C2+16+k); silu(C2+k, 24); rbf(C2+k)
        a(f'v_mul_f32 v{20+k}, v{C2+k}, v{C2+16+k}'); rbf(20+k)
        a(f'v_or_b32 v{20+k}, s{88+(k & 1)}, v{20+k}')
    a('buffer_store_dwordx4 v[20:23], v8, s[28:31], s58 offen sc1')
    stamp(10)
    a('L_hget:')
    rb_of('s52', 's53')
    a(f's_mul_i32 s52, s52, 224\ns_add_u32 s52, s52, {HF}')
    ldswait('sdone', L_MLW, 4)
    a('v_min_u32 v12, 6, v14\nv_lshrrev_b32 v10, 3, v1\nv_mul_u32_u24 v10, 7, v10\nv_add_lshl_u32 v10, v10, v12, 2')
    a('v_lshlrev_b32 v12, 2, v10\nv_and_b32 v12, 16, v12\nv_bfe_u32 v12, s96, v12, 16')
    gather('hg', [('buffer_load_dword v32, v10, s[28:31], s52 offen sc1', 32, 1)], 20, lambda k, d: 'v12', '0xffff', 22, sleep, 'instr')
    a('v_cmp_ne_u32 vcc, 7, v14\nv_cndmask_b32 v20, 0, v20, vcc')
    a('v_mov_b32_dpp v21, v20 quad_perm:[0,0,2,2] row_mask:0xf bank_mask:0xf\nv_mov_b32_dpp v22, v20 quad_perm:[1,1,3,3] row_mask:0xf bank_mask:0xf')
    a(f'v_perm_b32 v20, v22, v21, s61\nv_and_b32 v10, 62, v1\nv_lshlrev_b32 v10, 1, v10\nv_add_u32 v10, {L_H}, v10\nds_write_b32 v10, v20')
    stamp(4)
    a('s_branch L_H23')
    a('L_H3:')
    a(f'v_lshlrev_b32 v10, 3, v14\nv_add_u32 v11, {L_MLW}, v10\ns_mov_b32 s88, {LOG2E}\ns_lshr_b32 s90, s96, 16\ns_and_b32 s97, s96, 0xfff')
    gj('s52', 's53', 's89')
    a(f's_lshl_b32 s89, s52, 6\ns_add_u32 s89, s89, s53\ns_lshl_b32 s89, s89, 6\ns_add_u32 s89, s89, {ML}\nv_cmp_gt_u32 vcc, 8, v1\nv_cndmask_b32 v10, v9, v10, vcc\nv_mov_b32 v15, 0xfffff000')
    ldsdata('mlp_w', [f'ds_read_b64 v[{20+2*w}:{21+2*w}], v11 offset:{64*w}' for w in range(4)], range(20, 28), 28, 4)
    a('v_max3_f32 v28, v20, v22, v24\nv_max_f32 v28, v28, v26\nv_mul_f32 v30, s88, v28\nv_ceil_f32 v30, v30')
    for w in range(4): a(f'v_fma_f32 v{20+2*w}, v{20+2*w}, s88, -v30\nv_exp_f32 v{20+2*w}, v{20+2*w}')
    a('v_mul_f32 v33, v20, v21\nv_fmac_f32 v33, v22, v23\nv_fmac_f32 v33, v24, v25\nv_fmac_f32 v33, v26, v27')
    put_tag(33, 1, 12, 15)
    a('v_or_b32 v32, s90, v28')
    a('buffer_store_dwordx2 v[32:33], v10, s[28:31], s89 offen sc1')
    stamp(4)
    a('L_H23:')
    optags()
    a(f'v_mul_u32_u24 v6, 528, v2\nv_lshl_add_u32 v6, v3, 5, v6')
    a(f's_and_b32 s59, s3, 1\ns_mul_i32 s57, s59, 2112\ns_add_u32 s57, s57, {L_OR}\nv_add_u32 v6, s57, v6')
    a('v_lshrrev_b32 v7, 3, v1\nv_lshlrev_b32 v7, 13, v7\nv_lshl_add_u32 v7, v19, 4, v7')
    gj('s56', 's57', 's58')
    a(f's_lshl1_add_u32 s56, s56, s59\ns_lshl_b32 s56, s56, 16\ns_lshl_b32 s57, s57, 7\ns_add_u32 s56, s56, s57\ns_add_u32 s56, s56, {OP}')
    a('v_mov_b32 v15, 0xfffefffe')
    ldswait('or23', L_OR, 1)
    R = 64
    ldsdata('orw', [f'ds_read_b128 v[{R+8*w+4*e}:{R+8*w+4*e+3}], v6 offset:{4224*w+16*e}' for w in range(4) for e in range(2)], range(R, R+32), 20, 0)
    for k in range(0, 8, 2): a(f'v_pk_add_f32 v[{R+k}:{R+k+1}], v[{R+k}:{R+k+1}], v[{R+8+k}:{R+9+k}]\nv_pk_add_f32 v[{R+16+k}:{R+17+k}], v[{R+16+k}:{R+17+k}], v[{R+24+k}:{R+25+k}]')
    for k in range(0, 8, 2): a(f'v_pk_add_f32 v[{R+k}:{R+k+1}], v[{R+k}:{R+k+1}], v[{R+16+k}:{R+17+k}]')
    for k in range(8): a(f'v_add_u32 v{R+k}, 0x10000, v{R+k}')
    for k in range(4): a(f'v_perm_b32 v{20+k}, v{R+2*k+1}, v{R+2*k}, s61')
    for k in range(4): a(f'v_and_or_b32 v{20+k}, v{20+k}, v15, v{28+k}')
    a(f'buffer_store_dwordx4 v[20:23], v7, s[28:31], s56 offen sc1')
    stamp(6)
    finish()
    a('L_exit:\ns_endpgm')
    a.raw(f'''.section .rodata,"a"
.p2align 6
.amdhsa_kernel {KNAME}
  .amdhsa_next_free_vgpr 256
  .amdhsa_next_free_sgpr 102
  .amdhsa_accum_offset 256
  .amdhsa_group_segment_fixed_size 0
  .amdhsa_kernarg_size 96
  .amdhsa_user_sgpr_count 2
  .amdhsa_user_sgpr_kernarg_segment_ptr 1
  .amdhsa_system_sgpr_workgroup_id_x 1
  .amdhsa_float_denorm_mode_32 3
.end_amdhsa_kernel''')
    return a.text()

if __name__ == '__main__':
    out = sys.argv[1]
    kw = eval('dict(' + (sys.argv[2] if len(sys.argv) > 2 else '') + ')')
    open(out, 'w').write(gen(**kw))
```

```python
import sys
sys.path.insert(0, 'work')
from asmlib import Asm

KNAME = 'recurrent_scan__gqa_block_cached__swiglu_ffn__decode_kernel'
MB = 1 << 20
GU = 0
HF = 229376
EP = 245760
SF, OP = 262144, 786432
ML, QF, QP, WSEND = 1310720, 1327104, 1343488, 1474560
STAMPS = 8 * MB
L_K, L_OR, L_X, L_Q = 0, 131072, 147968, 150016
L_MLW, L_H, L_O16, L_F, L_QR, L_GR, L_END = 152192, 152512, 152640, 152768, 153088, 155136, 157184
F0, F1, FM, FT, F3, F3E = 0, 4, 8, 12, 16, 32
OOB = 0x40000000
LOG2E = 0x3fb8aa3b
SCALE = 0x3db504f3
SPIN = 400000
CMIX = 0x9e3779b9
SH12 = (0, 12, 20, 6)

HEADER = open('recurrent_scan__gqa_block_cached__swiglu_ffn__decode.s.ref').read().split('; Override')[0]

def gen(plain='', win=((0,7),(66,6),(84,5)), winL=None, nbr=81, late=(), sample=None, bias=None, pipe=False, slS=0, slO=0, dlS=0, nX=18, nB1=10, nF1=24, shu=2, shg=1, f3at=14, rot=0, lightred=True, f3e=None,
        pref=True, tlbpf=False, stamps=False, sleep=8, abl=()):
    if sample is None: sample = bool(late)
    a0 = Asm()
    cur = ['']
    class A:
        def __call__(self, text, tag=None):
            for t in text.split('\n'):
                if 'sc1' in t and t.startswith('buffer_store') and 'st' in abl and tag is None: continue
                if 'sc1' in t and t.startswith('buffer_load') and ('ld' in abl or cur[0] in abl): continue
                a0(t, tag)
        def __getattr__(self, n): return getattr(a0, n)
        def __setattr__(self, n, v): setattr(a0, n, v)
    a = A()
    PL = {k: ('' if k in plain else ' nt') for k in 'qgkvdo'}
    def sched(sc, i): return [w for (st, w) in sc if st <= i][-1]
    def stamp(k):
        if stamps: a(f's_memrealtime s[{64+2*k}:{65+2*k}]')
    def srd(d, p, size):
        a(f's_mov_b32 s{d}, s{p}\ns_mov_b32 s{d+1}, s{p+1}\ns_mov_b32 s{d+2}, {size}\ns_mov_b32 s{d+3}, 0x20000')
    def allred_row(op, v, steps=(8, 4, 2, 1)):
        for r in steps: a(f'{op}_dpp v{v}, v{v}, v{v} row_ror:{r} row_mask:0xf bank_mask:0xf')
    def allred_xrow(op, v, t):
        a(f'v_mov_b32 v{t}, v{v}\nv_permlane16_swap_b32 v{t}, v{v}\n{op} v{v}, v{v}, v{t}')
        a(f'v_mov_b32 v{t}, v{v}\nv_permlane32_swap_b32 v{t}, v{v}\n{op} v{v}, v{v}, v{t}')
    def rbf(v):
        a(f'v_cvt_pk_bf16_f32 v{v}, v{v}, v{v}\nv_lshlrev_b32 v{v}, 16, v{v}')
    def perms_pair(La, Lb, TB, u):
        for d in range(4):
            a(f'v_perm_b32 v{TB+4*(2*d)+u}, v{Lb+d}, v{La+d}, s60')
            a(f'v_perm_b32 v{TB+4*(2*d+1)+u}, v{Lb+d}, v{La+d}, s61')
    def tree(op2, op3, regs, t):
        regs = list(regs)
        if len(regs) == 2:
            a(f'{op2} v{t}, v{regs[0]}, v{regs[1]}'); return
        a(f'{op3} v{t}, v{regs[0]}, v{regs[1]}, v{regs[2]}')
        regs = regs[3:]
        while len(regs) >= 2:
            a(f'{op3} v{t}, v{t}, v{regs[0]}, v{regs[1]}'); regs = regs[2:]
        if regs: a(f'{op2} v{t}, v{t}, v{regs[0]}')
    def umax(regs, t): tree('v_max_u32', 'v_max3_u32', regs, t)
    def orall(regs, t): tree('v_or_b32', 'v_or3_b32', regs, t)
    def again(lbl): a(f's_sub_u32 s62, s62, 1\ns_cmp_gt_i32 s62, 0\ns_cbranch_scc1 {lbl}')
    def retry(lbl_loop, lbl_done, slp):
        a(f's_cbranch_vccz {lbl_done}')
        if slp: a(f's_sleep {slp}')
        again(lbl_loop)
        a(f'{lbl_done}:')
    def gather(name, loads, clean, tag, mask, tmp, slp, mode, first=True, each=None, pre=None, onfail=None):
        n = len(loads)
        cur[0] = name
        if first:
            for t, _, _ in loads: a(t)
        a(f'L_{name}:')
        tk = []; c0 = clean
        for k, (_, r, c) in enumerate(loads):
            if k == 0 or (first and each): a(f's_waitcnt vmcnt({n-1-k if (first and each) else 0})')
            for d in range(c): a(f'v_xor_b32 v{c0+d}, {tag(k, d)}, v{r+d}')
            if pre: pre(c0, tmp+k); tk.append(tmp+k)
            elif c > 1: orall(range(c0, c0+c), tmp+k); tk.append(tmp+k)
            else: tk.append(c0)
            if each: each(k, c0)
            c0 += c
        if n > 1: orall(tk, tmp+n)
        a(f'v_and_b32 v{tmp+n}, {mask}, v{tmp+n if n > 1 else tk[0]}\nv_cmp_ne_u32 vcc, 0, v{tmp+n}')
        a(f's_branch L_{name}_ok' if abl else f's_cbranch_vccz L_{name}_ok')
        if slp: a(f's_sleep {slp}')
        if onfail: onfail()
        for k, (t, _, _) in enumerate(loads):
            if n > 1 or mode == 'line8':
                a(f'v_and_b32 v{tmp+n}, {mask}, v{tk[k]}')
                if mode == 'line8':
                    for m in ('quad_perm:[1,0,3,2]', 'quad_perm:[2,3,0,1]', 'row_half_mirror'):
                        a(f'v_or_b32_dpp v{tmp+n}, v{tmp+n}, v{tmp+n} {m} row_mask:0xf bank_mask:0xf')
                a(f'v_cmp_ne_u32 vcc, 0, v{tmp+n}\ns_cbranch_vccz L_{name}_s{k}')
            if mode == 'instr': a(t)
            else: a(f's_mov_b64 exec, vcc\n{t}\ns_mov_b64 exec, -1')
            if n > 1 or mode == 'line8': a(f'L_{name}_s{k}:')
        a('s_waitcnt vmcnt(0)')
        again(f'L_{name}')
        a(f'L_{name}_ok:')
    def ldswait(name, addr, slp):
        a(f'v_mov_b32 v12, {addr}\nL_{name}:')
        a(f'ds_read_b32 v11, v12\ns_waitcnt lgkmcnt(0)\nv_cmp_eq_u32 vcc, -1, v11')
        retry(f'L_{name}', f'L_{name}_ok', slp)
    def ldsdata(name, reads, regs, t, slp):
        a(f'L_{name}:')
        for r in reads: a(r)
        a('s_waitcnt lgkmcnt(0)')
        umax(regs, t)
        a(f'v_cmp_eq_u32 vcc, -1, v{t}')
        retry(f'L_{name}', f'L_{name}_ok', slp)
    def get_tag(t):
        a(f'v_mov_b32 v{t}, {L_F}\nds_read_b32 v{t}, v{t} offset:{FT}\ns_waitcnt lgkmcnt(0)\nv_readfirstlane_b32 s96, v{t}')
    def tags(bits, shifts, s0=97):
        for d, sh in enumerate(shifts): a(f's_bfe_u32 s{s0+d}, s96, {(bits << 16) | sh}')
    def put_tag(r, n, bits, vm, s0=97):
        for d in range(n): a(f'v_add_u32 v{r+d}, {1 << (bits-1)}, v{r+d}')
        for d in range(n): a(f'v_and_or_b32 v{r+d}, v{r+d}, v{vm}, s{s0+d}')
    def silu(v, t):
        a(f'v_mul_f32 v{t}, 0xbfb8aa3b, v{v}\nv_exp_f32 v{t}, v{t}\nv_add_f32 v{t}, 1.0, v{t}\nv_rcp_f32 v{t}, v{t}\nv_mul_f32 v{v}, v{v}, v{t}')
    def fold_cols(D, o, rm='0xf'):
        for k in range(4):
            a(f'v_add_f32_dpp v{o+k}, v{D+4*k+1}, v{D+4*k} row_ror:8 row_mask:{rm} bank_mask:0x3')
            a(f'v_add_f32_dpp v{o+((k+2)&3)}, v{D+4*(((k+2)&3)+4)}, v{D+4*(((k+2)&3)+4)+1} row_ror:8 row_mask:{rm} bank_mask:0xc')
    def red4(r):
        a(f'v_permlane32_swap_b32 v{r}, v{r+2}\nv_permlane32_swap_b32 v{r+1}, v{r+3}')
        a(f'v_add_f32 v{r}, v{r}, v{r+2}\nv_add_f32 v{r+1}, v{r+1}, v{r+3}')
        a(f'v_permlane16_swap_b32 v{r}, v{r+1}\nv_add_f32 v{r}, v{r}, v{r+1}')
    def rb_of(d, t):
        a(f's_lshr_b32 {d}, s2, 5\ns_lshl_b32 {d}, {d}, 3\ns_and_b32 {t}, s2, 7\ns_add_u32 {d}, {d}, {t}')
    def gj(g, j, t):
        a(f's_bfe_u32 {g}, s2, 0x20003')
        if j: rb_of(j, t)
    def consts():
        a(f's_mov_b32 s60, 0x05040100\ns_mov_b32 s61, 0x07060302\ns_mov_b32 s62, {SPIN}')
        srd(28, 26, WSEND)
    def finish():
        if stamps:
            stamp(7)
            a('s_waitcnt lgkmcnt(0)')
            a('s_lshl_b32 s52, s2, 3\ns_add_u32 s52, s52, s3\ns_lshl_b32 s52, s52, 7')
            a(f's_add_u32 s54, s26, {STAMPS}\ns_addc_u32 s55, s27, 0')
            a('v_mov_b32 v2, s52\ns_mov_b64 exec, 1')
            for k in range(6):
                a(f'v_mov_b32 v4, s{64+4*k}\nv_mov_b32 v5, s{65+4*k}\nv_mov_b32 v6, s{66+4*k}\nv_mov_b32 v7, s{67+4*k}')
                a(f'global_store_dwordx4 v2, v[4:7], s[54:55] offset:{16*k}\ns_nop 1')
        a('s_endpgm')
    def zstamps():
        if stamps:
            for k in range(68, 88, 2): a(f's_mov_b64 s[{k}:{k+1}], 0')

    a.raw(HEADER.rstrip())
    a.raw(f'; @launch grid=(256,1,1) block=(512,1,1) lds={L_END}')
    a.raw('.amdgcn_target "amdgcn-amd-amdhsa--gfx950"\n.text')
    a.raw(f'.globl {KNAME}\n.p2align 8\n.type {KNAME},@function\n{KNAME}:')
    stamp(0)
    a('s_load_dwordx16 s[4:19], s[0:1], 0\ns_load_dwordx8 s[20:27], s[0:1], 64')
    a('v_lshrrev_b32 v2, 6, v0\nv_and_b32 v1, 63, v0\nv_readfirstlane_b32 s3, v2')
    a('s_cmp_ge_u32 s2, 256\ns_cbranch_scc1 L_exit')
    a('s_cmp_ge_u32 s3, 4\ns_cbranch_scc1 L_S')
    XS = 40
    a('s_setprio 2')
    a('s_cmp_lg_u32 s3, 0\ns_cbranch_scc1 L_H123')
    if pref:
        a(f's_getpc_b64 s[56:57]\nL_pc:\ns_lshr_b32 s58, s2, 3\ns_mulk_i32 s58, 1024\nv_and_b32 v2, 7, v1\nv_lshl_add_u32 v2, v2, 7, s58')
        a(f'v_min_u32 v2, L_exit-L_pc, v2\nglobal_load_dword v255, v2, s[56:57]')
    a(f'v_lshlrev_b32 v7, 5, v1\nv_mov_b32 v8, {EP}\ns_waitcnt lgkmcnt(0)')
    a(f'global_load_dwordx4 v[{XS}:{XS+3}], v7, s[4:5]\nglobal_load_dwordx4 v[{XS+4}:{XS+7}], v7, s[4:5] offset:16')
    a('global_load_dword v14, v8, s[26:27] sc1')
    stamp(1)
    a('s_branch L_H0')

    a('L_S:')
    V, TB, PO, O, S, PP, QL, QH, D, X = 128, 96, 64, 48, 32, 24, 64, 80, 64, 32
    n_ld = [0]
    W = [win]
    def pace():
        a.vm_window(sched(W[0], n_ld[0])); n_ld[0] += 1
    a('s_sub_u32 s63, s3, 4')
    a('s_and_b32 s55, s2, 7\ns_lshr_b32 s54, s2, 3')
    a('s_lshl2_add_u32 s53, s55, s63\ns_lshl_b32 s52, s53, 10\ns_add_u32 s52, s52, s54\ns_lshl_b32 s52, s52, 8')
    a('v_lshrrev_b32 v2, 4, v1\nv_and_b32 v3, 15, v1\nv_lshlrev_b32 v4, 4, v3\nv_lshl_add_u32 v6, v2, 16, v4')
    a('s_movk_i32 s57, 0x2000\ns_lshl_b32 s34, s57, 10\ns_mov_b32 s35, 0x20000\ns_waitcnt lgkmcnt(0)\ns_mov_b64 s[32:33], s[10:11]')
    a.vm_reset()
    def s_setup():
        stamp(1)
        a('v_lshlrev_b32 v9, 4, v1')
        a(f's_mul_i32 s58, s63, 4224\ns_add_u32 s58, s58, {L_OR}\nv_add_u32 v10, s58, v9')
        for k in range(4): a(f'v_mov_b32 v{20+k}, -1')
        for k in range(4): a(f'ds_write_b128 v10, v[20:23] offset:{1024*k}')
        a('ds_write_b128 v10, v[20:23] offset:3200')
        zstamps(); consts()
        a(f's_cmp_ge_u32 s63, 2\ns_cselect_b64 s[36:37], s[18:19], s[16:17]\ns_cselect_b32 s58, {shu}, {shg}')
        a(f's_mov_b32 s38, {1024*7168}\ns_mov_b32 s39, 0x20000')
        a('s_add_u32 s58, s58, s54\ns_cmp_ge_u32 s58, 28\ns_cselect_b32 s59, 28, 0\ns_sub_u32 s58, s58, s59\ns_lshl_b32 s58, s58, 8')
        a(f's_and_b32 s59, s63, 1\ns_lshl1_add_u32 s59, s55, s59\ns_mul_i32 s50, s59, {64*7168}\ns_add_u32 s50, s50, s58')
        a(f'v_mul_u32_u24 v7, {8*7168}, v2\nv_add_u32 v7, v7, v4')
        a(f's_lshl_b32 s53, s53, 6\ns_add_u32 s53, s53, {L_X}\nv_lshl_add_u32 v12, v2, 4, s53')
        a(f's_lshl_b32 s59, s59, 7\ns_add_u32 s59, s59, {L_X}\nv_lshl_add_u32 v13, v2, 4, s59')
        a(f's_lshl_b32 s59, s63, 9\ns_add_u32 s59, s59, {L_QR}\nv_lshlrev_b32 v14, 5, v3\nv_lshl_add_u32 v14, v2, 4, v14\nv_add_u32 v14, s59, v14')
        a('s_waitcnt lgkmcnt(0)\ns_barrier')
    for i in range(8):
        pace()
        a(f'buffer_load_dwordx4 v[{V+4*i}:{V+4*i+3}], v6, s[32:35], s52 offen{PL["q"]}', tag=('q', i))
        if i < 7: a('s_add_u32 s52, s52, s57')
        if i == min(sched(win, 0), 8) - 1: s_setup()
    def kv_setup():
        gj('s52', 's53', 's54')
        a('s_lshl2_add_u32 s53, s53, s63\ns_lshl_b32 s54, s52, 10')
        for T in range(4):
            a(f's_add_u32 s56, s53, {rot*T}\ns_and_b32 s56, s56, 255\ns_add_u32 s56, s56, s54\ns_add_u32 s56, s56, {256*T}\ns_lshl_b32 s{88+T}, s56, 13')
        a('s_lshl_b32 s55, s63, 15')
        a('v_lshlrev_b32 v5, 6, v2\nv_xor_b32 v5, v5, v4\nv_lshl_add_u32 v16, v2, 8, v5')
        for k in range(1, 4): a(f'v_xor_b32 v{16+k}, {16*k}, v16')
        srd(40, 6, 32*MB); srd(44, 8, 32*MB)
    kv_setup()
    def tile_ops(Lb, Xr, first):
        ops = [(lambda u=u: perms_pair(Lb+8*u, Lb+8*u+4, TB, u)) for u in range(4)]
        def mf():
            for j in range(8):
                c = '0' if first else f'v[{D+4*j}:{D+4*j+3}]'
                a(f'v_mfma_f32_16x16x32_bf16 v[{D+4*j}:{D+4*j+3}], v[{Xr}:{Xr+3}], v[{TB+4*j}:{TB+4*j+3}], {c}')
        return ops + [mf]
    def pack128(off):
        for k in range(4): a(f'v_mov_b32 v{20+k}, v{D+4*k}')
        for k in range(4): a(f'v_mov_b32_dpp v{20+k}, v{D+16+4*k} quad_perm:[0,1,2,3] row_mask:0x2 bank_mask:0xf')
        a(f's_mov_b32 exec_hi, 0\nds_write_b128 v14, v[20:23] offset:{off}\ns_mov_b32 exec_hi, -1')
    def xwait(name, gu):
        a(f'v_mov_b32 v20, {L_F}\nL_{name}:\nds_read_b32 v21, v20 offset:{F0}\ns_waitcnt lgkmcnt(0)\nv_cmp_eq_u32 vcc, -1, v21')
        retry(f'L_{name}', f'L_{name}_ok', 1)
        a(f'ds_read_b128 v[{X}:{X+3}], v12')
        if gu: a(f'ds_read_b128 v[{X+4}:{X+7}], v13\nds_read_b128 v[{X+8}:{X+11}], v13 offset:64')
        a('s_waitcnt lgkmcnt(0)')
    def kload(i):
        if i % 4 == 0:
            a(f's_add_u32 m0, s55, {i*1024}\ns_add_u32 s56, s{88+(i >> 3)}, {(i & 4)*1024}')
        pace()
        a(f'buffer_load_dwordx4 v{16+(i & 3)}, s[40:43], s56 offen offset:{1024*(i & 3)}{PL["k"]} lds', tag=('k', i))
        if i == nF1: a(f'v_mov_b32 v20, {L_F}\nds_write_b32 v20, v20 offset:{F1}')
    KJ = 16
    def phase1(gu):
        seq = ([('g', i) for i in range(16)] if gu else []) + [('k', i) for i in range(KJ)]
        work = [(None, lambda: xwait('xw%d' % gu, gu))]
        work += [(('q', 7), f) for f in tile_ops(V, X, True)] + [(None, lambda: (pack128(0), stamp(10)))]
        if gu:
            work += [(('g', 7), f) for f in tile_ops(V+32, X+4, True)] + [(('g', 15), f) for f in tile_ops(V+64, X+8, False)]
            work += [(None, lambda: pack128(L_GR-L_QR))]
        for n, (kind, i) in enumerate(seq):
            if kind == 'g':
                pace()
                a(f'buffer_load_dwordx4 v[{V+32+4*i}:{V+32+4*i+3}], v7, s[36:39], s50 offen{PL["g"]}', tag=('g', i))
                if i < 15: a(f's_add_u32 s50, s50, {7168*25 if i == 7 else 7168}')
            else: kload(i)
            if n + 9 < nX: continue
            st = [t for t in a.vm if isinstance(t, tuple)]
            landed = st[:len(st) - sched(W[0], n_ld[0]-1)]
            k = 0
            while work and k < 3 and (work[0][0] is None or work[0][0] in landed):
                work.pop(0)[1](); k += 1
        assert not work
    vm0, n0 = list(a.vm), n_ld[0]
    a('s_cmp_ge_u32 s2, 224\ns_cbranch_scc0 L_gu')
    n_ld[0] = n0 + 16
    if winL: W[0] = winL
    phase1(0)
    W[0] = win
    a('s_branch L_kj')
    a('L_gu:')
    a.vm = list(vm0); n_ld[0] = n0
    phase1(1)
    a('L_kj:')
    a('v_and_b32 v14, 3, v3\nv_lshlrev_b32 v14, 2, v14\nv_lshrrev_b32 v15, 2, v3\nv_add_u32 v14, v14, v15\nv_lshlrev_b32 v14, 8, v14\nv_add_u32 v14, s55, v14')
    a('v_xor_b32 v15, v2, v3')
    for s in range(4):
        a(f'v_xor_b32 v{10+s}, {4*s}, v15\nv_lshl_add_u32 v{10+s}, v{10+s}, 4, v14')
    if bias:
        mask, wsel = bias
        st0 = (list(a.vm), n_ld[0])
        a(f's_and_b32 s56, s2, 7\ns_lshr_b32 s56, {mask}, s56\ns_and_b32 s56, s56, 1\ns_cbranch_scc0 L_b0')
        W[0] = ((0, wsel),)
        for i in range(KJ, 32): kload(i)
        W[0] = win
        a('s_branch L_b1\nL_b0:')
        a.vm, n_ld[0] = list(st0[0]), st0[1]
    for i in range(KJ, 32): kload(i)
    if bias: a('L_b1:')
    a(f'v_and_b32 v8, 7, v1\nv_mul_u32_u24 v14, 272, v8\nv_lshl_add_u32 v14, v2, 4, v14\nv_add_u32 v14, {L_Q}, v14')
    a('v_cmp_gt_u32 vcc, 8, v3\nv_cndmask_b32 v15, 0, -1, vcc\nv_not_b32 v16, v15')
    a(f'v_lshlrev_b32 v17, 3, v8\nv_add_u32 v17, {L_MLW}, v17')
    vn = [0]
    def vload():
        i = vn[0]; vn[0] += 1
        assert i < 32
        if i % 4 == 0: a(f's_add_u32 s56, s{88+(i >> 3)}, {(i & 4)*1024}')
        pace()
        a(f'buffer_load_dwordx4 v[{V+4*i}:{V+4*i+3}], v9, s[44:47], s56 offen offset:{1024*(i & 3)}{PL["v"]}', tag=('v', i))
    for i in range(nB1): vload()
    a.vm_wait(('k', 31))
    stamp(2)
    ldsdata('qw', [f'ds_read_b128 v[{QL+4*s}:{QL+4*s+3}], v14 offset:{64*s}' for s in range(4)], range(QL, QL+16), 18, 1)
    stamp(3)
    units = [(p, hh, ts) for p in range(2) for hh in range(2) for ts in range(2)]
    def kreads(k):
        p, hh, ts = units[k]
        for s in range(4):
            r = TB + 16*(k & 1) + 4*s
            a(f'ds_read_b128 v[{r}:{r+3}], v{10+s} offset:{(2*p+ts)*8192 + hh*4096}')
    kreads(0); kreads(1)
    vload()
    for k in range(16): a(f'v_and_b32 v{QH+k}, v16, v{QL+k}\nv_and_b32 v{QL+k}, v15, v{QL+k}')
    for k in range(8):
        p, hh, ts = units[k]
        a(f's_waitcnt lgkmcnt({4 if k < 7 else 0})')
        d = S + 8*p + 4*hh
        for s in range(4):
            r = TB + 16*(k & 1) + 4*s; q = (QH if ts else QL) + 4*s
            c = '0' if (ts == 0 and s == 0) else f'v[{d}:{d+3}]'
            a(f'v_mfma_f32_16x16x32_bf16 v[{d}:{d+3}], v[{r}:{r+3}], v[{q}:{q+3}], {c}')
        if k + 2 < 8: kreads(k+2)
        if k in (1, 4, 7): vload()
    a(f's_mov_b32 s57, {SCALE}\ns_mov_b32 s58, {LOG2E}')
    for k in range(0, 16, 2):
        r = S + k
        a(f'v_cvt_pk_bf16_f32 v{r}, v{r}, v{r+1}\nv_and_b32 v{r+1}, 0xffff0000, v{r}\nv_lshlrev_b32 v{r}, 16, v{r}')
        a(f'v_mul_f32 v{r}, s57, v{r}\nv_mul_f32 v{r+1}, s57, v{r+1}')
        a(f'v_cvt_pk_bf16_f32 v{r}, v{r}, v{r+1}\nv_and_b32 v{r+1}, 0xffff0000, v{r}\nv_lshlrev_b32 v{r}, 16, v{r}')
    vload()
    tree('v_max_f32', 'v_max3_f32', range(S, S+16), 18)
    allred_row('v_max_f32', 18, (8,)); allred_xrow('v_max_f32', 18, 20)
    for k in range(16): a(f'v_sub_f32 v{S+k}, v{S+k}, v18\nv_mul_f32 v{S+k}, s58, v{S+k}')
    vload()
    for k in range(16): a(f'v_exp_f32 v{S+k}, v{S+k}')
    a(f'v_add_f32 v19, v{S}, v{S+1}')
    for k in range(2, 16): a(f'v_add_f32 v19, v19, v{S+k}')
    allred_row('v_add_f32', 19, (8,)); allred_xrow('v_add_f32', 19, 20)
    a('s_lshl_b32 s59, s63, 6\nv_add_u32 v20, s59, v17\nds_write_b64 v20, v[18:19]')
    vload()
    for k in range(8): a(f'v_cvt_pk_bf16_f32 v{PP+k}, v{S+2*k}, v{S+2*k+1}')
    stamp(11)
    for p in range(2):
        for k in range(4):
            src = PP + 4*p + k
            a(f'v_and_b32 v{PO+16*p+k}, v15, v{src}')
            a(f'v_mov_b32_dpp v{PO+16*p+4+k}, v{src} row_shr:8 row_mask:0xf bank_mask:0xf bound_ctrl:1')
            a(f'v_mov_b32_dpp v{PO+16*p+8+k}, v{src} row_shl:8 row_mask:0xf bank_mask:0xf bound_ctrl:1')
            a(f'v_and_b32 v{PO+16*p+12+k}, v16, v{src}')
    def pv_pair(pr):
        T, u = pr >> 2, pr & 3
        perms_pair(V+8*pr, V+8*pr+4, TB, u)
        if u == 3:
            for half in range(2):
                for q in range(4):
                    c = '0' if (T == 0 and half == 0) else f'v[{O+4*q}:{O+4*q+3}]'
                    j = q + 4*half; b = PO + 8*T + 4*half
                    a(f'v_mfma_f32_16x16x32_bf16 v[{O+4*q}:{O+4*q+3}], v[{TB+4*j}:{TB+4*j+3}], v[{b}:{b+3}], {c}')
    def tail_setup1():
        srd(32, 12, 4096*2048); srd(36, 20, 3584*2048)
        rb_of('s52', 's53')
        a('s_lshr_b32 s53, s2, 1\ns_and_b32 s53, s53, 12\ns_add_u32 s53, s53, s63')
        a(f's_lshl_b32 s57, s53, 7\ns_mul_i32 s48, s52, {56*2048}\ns_add_u32 s48, s48, s57')
        a('s_lshl_b32 s49, s52, 17\ns_add_u32 s49, s49, s57')
        a(f's_lshl_b32 s50, s53, 15\ns_lshl_b32 s51, s52, 7\ns_add_u32 s50, s50, s51\ns_add_u32 s50, s50, {SF}')
        a(f'v_lshrrev_b32 v20, 3, v1\nv_lshlrev_b32 v21, 4, v8\nv_mul_u32_u24 v6, {7*2048}, v20\nv_add_u32 v6, v6, v21')
        a('v_and_b32 v7, 3, v20\nv_lshl_add_u32 v7, v7, 12, v21\nv_and_b32 v20, 4, v20\nv_lshl_add_u32 v7, v20, 14, v7')
    def tail_setup2():
        a('v_and_b32 v10, 6, v1\nv_lshlrev_b32 v10, 12, v10\nv_and_b32 v20, 8, v1\nv_lshl_add_u32 v10, v20, 2, v10\nv_and_b32 v21, 1, v1\nv_lshl_add_u32 v10, v21, 6, v10\nv_lshl_add_u32 v10, v2, 4, v10')
        a(f'v_mov_b32 v21, {OOB}\nv_cmp_gt_u32 vcc, 32, v1\nv_cndmask_b32 v10, v21, v10, vcc')
        a(f'v_and_b32 v21, 1, v1\nv_lshl_add_u32 v11, v2, 1, v21\nv_lshlrev_b32 v11, 4, v11\nv_add_u32 v11, {L_H}, v11')
        a(f'v_mul_u32_u24 v5, 528, v8\nv_lshl_add_u32 v5, v2, 7, v5\nv_lshl_add_u32 v5, v20, 3, v5')
        a(f's_mul_i32 s57, s63, 4224\ns_add_u32 s57, s57, {L_OR}\nv_add_u32 v5, s57, v5')
        a(f's_lshl_b32 s57, s63, 2\ns_add_u32 s57, s57, {L_F+F3}\nv_mov_b32 v13, s57\nv_mov_b32 v12, 0xfffff000')
        get_tag(20); tags(12, SH12)
    sfx = ['']
    def factor():
        ldsdata('mlw' + sfx[0], [f'ds_read_b32 v{S+w}, v17 offset:{64*w}' for w in range(4)], range(S, S+4), 20, 0)
        a(f'v_max3_f32 v20, v{S}, v{S+1}, v{S+2}\nv_max_f32 v20, v20, v{S+3}\nv_mul_f32 v20, s58, v20\nv_ceil_f32 v20, v20')
        a('v_fma_f32 v18, v18, s58, -v20\nv_exp_f32 v18, v18')
    def o_out():
        stamp(5)
        for q in range(4):
            for k in range(4): a(f'v_mul_f32 v{O+4*q+k}, v18, v{O+4*q+k}')
            a(f'ds_write_b128 v5, v[{O+4*q}:{O+4*q+3}] offset:{16*q}')
    donep = [0]
    def pvw(pr):
        pv_pair(pr); donep[0] = pr + 1
        if pr == 3:
            for k in range(4): a(f'v_mov_b32 v{V+28+k}, 0')
        if pr == 15: o_out()
    work = [(None, tail_setup1), (None, tail_setup2)] + [(('v', 2*pr+1), (lambda pr=pr: pvw(pr))) for pr in range(16)]
    work.insert(len(work) - 2, (None, factor))
    seq = [('v', i) for i in range(vn[0], 32)] + [('d', i) for i in range(7)] + [('o', i) for i in range(8)]
    def run_seq(seq, work, f3):
        for kind, i in seq:
            if kind == 'v': vload()
            elif kind == 'd':
                assert donep[0] >= 4
                if i == 0: stamp(4)
                pace()
                a(f'buffer_load_dwordx4 v[{V+4*i}:{V+4*i+3}], v6, s[36:39], s48 offen offset:{2048*(i & 1)}{PL["d"]}', tag=('d', i))
                if i & 1: a('s_add_u32 s48, s48, 4096')
                if i == f3: a('ds_write_b32 v13, v13')
                if i == f3e: a('ds_write_b32 v13, v13 offset:16')
            else:
                assert donep[0] >= 8
                if i & 3: a('s_add_u32 s49, s49, 16384')
                elif i: a('s_sub_u32 s49, s49, 49152')
                pace()
                a(f'buffer_load_dwordx4 v[{V+32+4*i}:{V+32+4*i+3}], v7, s[32:35], s49 offen offset:{2048*(i >> 2)}{PL["o"]}', tag=('o', i))
                if i + 7 == f3: a('ds_write_b32 v13, v13')
                if i + 7 == f3e: a('ds_write_b32 v13, v13 offset:16')
            st = [t for t in a.vm if isinstance(t, tuple)]
            landed = st[:len(st) - sched(W[0], n_ld[0]-1)]
            k = 0
            while work and k < 2 and (work[0][0] is None or work[0][0] in landed):
                work.pop(0)[1](); k += 1
    if late:
        k0 = nbr - n_ld[0]
        run_seq(seq[:k0], work, f3at); seq = seq[k0:]
        a(f'v_mov_b32 v20, {L_F}\nds_read_b32 v20, v20 offset:{FM}\ns_waitcnt lgkmcnt(0)\nv_readfirstlane_b32 s92, v20')
        if stamps: a('s_add_u32 s82, s92, 2\ns_mov_b32 s83, 0')
        st0 = (list(a.vm), n_ld[0], vn[0], donep[0])
        for vi, (thr, wl, f3) in enumerate(late):
            a(f's_cmp_ge_i32 s92, {thr}\ns_cbranch_scc0 L_var{vi}')
            W[0] = wl; sfx[0] = f'v{vi}'; wk = list(work)
            run_seq(seq, wk, f3)
            assert not wk
            a(f's_branch L_varend\nL_var{vi}:')
            a.vm, n_ld[0], vn[0], donep[0] = list(st0[0]), st0[1], st0[2], st0[3]
        W[0] = win; sfx[0] = ''
    run_seq(seq, work, f3at)
    assert not work
    a('L_varend:')
    ldsdata('hw', [f'ds_read_b128 v[{X}:{X+3}], v11'], range(X, X+4), 20, 1)
    a.vm_wait(('d', 6))
    for f in tile_ops(V, X, True): f()
    fold_cols(D, 20)
    for u in range(4):
        a.vm_wait(('o', 2*u+1))
        perms_pair(V+32+8*u, V+32+8*u+4, TB, u)
    stamp(8)
    ldsdata('ow', [f'ds_read_b128 v[{X}:{X+3}], v11 offset:{L_O16-L_H}'], range(X, X+4), 24, 0)
    for j in (0, 6, 1, 7, 2, 4, 3, 5):
        a(f'v_mfma_f32_16x16x32_bf16 v[{D+4*j}:{D+4*j+3}], v[{X}:{X+3}], v[{TB+4*j}:{TB+4*j+3}], 0')
    fold_cols(D, 20, '0x1')
    put_tag(20, 4, 12, 12)
    a('buffer_store_dwordx4 v[20:23], v10, s[28:31], s50 offen sc1')
    stamp(6)
    finish()

    def optags():
        a('v_mov_b32 v20, s96\nv_and_b32 v19, 7, v1\nv_lshlrev_b32 v21, 2, v19\nv_alignbit_b32 v20, v20, v20, v21')
        for d in range(4): a(f'v_alignbit_b32 v{28+d}, v20, v20, {d}\nv_and_b32 v{28+d}, 0x10001, v{28+d}')
    a('L_H0:')
    t = 20
    a('s_barrier')
    zstamps(); consts()
    a('s_waitcnt vmcnt(1)')
    for d in range(8):
        a(f'v_lshlrev_b32 v{t+2*d}, 16, v{XS+d}\nv_and_b32 v{t+2*d+1}, 0xffff0000, v{XS+d}')
    a(f'v_add_f32 v8, v{t}, v{t+1}')
    for k in range(2, 16): a(f'v_add_f32 v8, v8, v{t+k}')
    allred_row('v_add_f32', 8); allred_xrow('v_add_f32', 8, 9)
    a('v_mul_f32 v8, 0x3a800000, v8')
    a(f'v_sub_f32 v9, v{t}, v8\nv_mul_f32 v10, v9, v9')
    for k in range(1, 16): a(f'v_sub_f32 v9, v{t+k}, v8\nv_fmac_f32 v10, v9, v9')
    allred_row('v_add_f32', 10); allred_xrow('v_add_f32', 10, 9)
    a('v_mul_f32 v10, 0x3a800000, v10')
    rbf(8); rbf(10)
    a('v_add_f32 v10, 0x3727c5ac, v10'); rbf(10)
    a('v_sqrt_f32 v10, v10'); rbf(10)
    a('v_rcp_f32 v11, v10\nv_fma_f32 v12, -v10, v11, 1.0\nv_fma_f32 v11, v12, v11, v11')
    for d in range(8):
        r = t + 2*d
        a(f'v_sub_f32 v{r}, v{r}, v8\nv_sub_f32 v{r+1}, v{r+1}, v8')
        a(f'v_cvt_pk_bf16_f32 v{r}, v{r}, v{r+1}\nv_and_b32 v{r+1}, 0xffff0000, v{r}\nv_lshlrev_b32 v{r}, 16, v{r}')
        a(f'v_mul_f32 v{r}, v{r}, v11\nv_mul_f32 v{r+1}, v{r+1}, v11\nv_cvt_pk_bf16_f32 v{XS+d}, v{r}, v{r+1}')
    a(f'v_add_u32 v7, {L_X}, v7\nds_write_b128 v7, v[{XS}:{XS+3}]\nds_write_b128 v7, v[{XS+4}:{XS+7}] offset:16')
    a(f's_waitcnt vmcnt(0)\nv_xor_b32 v14, {0xffffffff ^ CMIX}, v14\nv_mov_b32 v13, {L_F}')
    a(f'ds_write_b32 v13, v14 offset:{FT}\nv_readfirstlane_b32 s96, v14\ns_waitcnt lgkmcnt(0)')
    a(f'ds_write_b32 v13, v13 offset:{F0}')
    stamp(2)
    G, GC, SEL, MLR = 64, 176, 128, 44
    optags()
    rb_of('s48', 's57')
    a(f's_lshl_b32 s54, s48, 2\ns_and_b32 s54, s54, 48\ns_lshr_b32 s57, s2, 6\ns_lshl_b32 s57, s57, 12\ns_add_u32 s54, s54, s57\ns_add_u32 s54, s54, {ML}')
    a('v_lshlrev_b32 v8, 9, v19\nv_lshrrev_b32 v10, 3, v1\nv_lshl_add_u32 v8, v10, 6, v8')
    a(f's_lshr_b32 s97, s96, 16\ns_and_b32 s98, s96, 0xfff\ns_mov_b32 s58, {LOG2E}')
    a('v_and_b32 v10, 1, v1\nv_lshlrev_b32 v10, 4, v10\nv_mov_b32 v11, 0xffff\nv_lshlrev_b32 v10, v10, v11\nv_bfe_u32 v11, v1, 1, 2')
    for d in range(4): a(f'v_cmp_eq_u32 vcc, {d}, v11\nv_cndmask_b32 v{24+d}, 0, v10, vcc')
    a(f's_lshl_b32 s50, s48, 13\ns_add_u32 s50, s50, {OP}\ns_add_u32 s51, s50, 4096')
    a(f'v_lshrrev_b32 v2, 4, v1\nv_lshlrev_b32 v10, 4, v19\nv_lshl_add_u32 v10, v2, 3, v10\nv_add_u32 v10, {L_O16}, v10')
    a(f'v_lshlrev_b32 v9, 4, v1\nv_mov_b32 v14, {L_F+F3}')
    def mlpre(c0, t):
        a(f'v_or_b32 v{t}, v{c0+1}, v{c0+3}\nv_and_b32 v{t}, 0xfff, v{t}\nv_or3_b32 v{t}, v{t}, v{c0}, v{c0+2}')
    mlload = f'buffer_load_dwordx4 v[{MLR}:{MLR+3}], v8, s[28:31], s54 offen sc1'
    if sample:
        a(f'v_lshlrev_b32 v12, 6, v2\nv_add_u32 v12, {L_MLW}, v12\nL_mlw0:')
        a('ds_read_b32 v11, v12\ns_waitcnt lgkmcnt(0)\nv_cmp_eq_u32 vcc, -1, v11')
        retry('L_mlw0', 'L_mlw0_ok', 1)
        a(mlload + '\ns_waitcnt vmcnt(0)')
        for d in range(4): a(f'v_xor_b32 v{40+d}, s{97+(d & 1)}, v{MLR+d}')
        mlpre(40, 22)
        a(f'v_and_b32 v22, 0xffff, v22\nv_cmp_eq_u32 vcc, 0, v22\ns_bcnt1_i32_b64 s92, vcc\nv_mov_b32 v22, s92\nds_write_b32 v13, v22 offset:{FM}')
        stamp(4)
    ldswait('or0', L_OR, 2)
    stamp(3)
    gather('mlg', [(mlload, MLR, 4)], 40, lambda k, d: f's{97+(d & 1)}', '0xffff', 22, 0 if sample else 4, 'lane', pre=mlpre, first=not sample)
    a('s_bitcmp1_b32 s48, 1\ns_cselect_b64 vcc, -1, 0\nv_cndmask_b32 v16, v40, v42, vcc\nv_cndmask_b32 v17, v41, v43, vcc')
    a('v_mul_f32 v16, s58, v16\nv_ceil_f32 v16, v16\nv_mov_b32 v22, v16')
    allred_row('v_max_f32', 22); allred_xrow('v_max_f32', 22, 23)
    a('v_sub_f32 v16, v16, v22\nv_cvt_i32_f32 v16, v16\nv_ldexp_f32 v16, 1.0, v16\nv_mul_f32 v17, v16, v17')
    allred_row('v_add_f32', 17); allred_xrow('v_add_f32', 17, 23)
    a('v_rcp_f32 v17, v17\nv_perm_b32 v16, v16, v16, s61')
    for n in range(8): a(f'v_mov_b32_dpp v{SEL+32+n}, v16 row_newbcast:{n} row_mask:0xf bank_mask:0x3')
    for n in range(8): a(f'v_mov_b32_dpp v{SEL+32+n}, v16 row_newbcast:{8+n} row_mask:0xf bank_mask:0xc')
    for n in range(8):
        for d in range(4): a(f'v_and_b32 v{SEL+4*n+d}, v{SEL+32+n}, v{24+d}')
    stamp(9)
    ldsdata('f3', [f'ds_read_b128 v[40:43], v14 offset:{0 if f3e is None else 16}'], range(40, 44), 22, 1)
    def omfma(n, c0):
        c = '0' if n == 0 else f'v[{S}:{S+3}]'
        a(f'v_mfma_f32_16x16x32_bf16 v[{S}:{S+3}], v[{SEL+4*n}:{SEL+4*n+3}], v[{c0}:{c0+3}], {c}')
    gather('og', [(f'buffer_load_dwordx4 v[{G+4*n}:{G+4*n+3}], v9, s[28:31], s{50+(n >> 2)} offen offset:{1024*(n & 3)} sc1', G+4*n, 4) for n in range(8)],
           GC, lambda k, d: f'v{28+d}', '0x10001', 112, slO, 'line8', each=omfma,
           onfail=(None if f3e is None else lambda: ldsdata('f3l', ['ds_read_b128 v[40:43], v14'], range(40, 44), 22, 1)))
    stamp(8)
    a('s_nop 1')
    for k in range(4): a(f'v_mul_f32 v{S+4+k}, v17, v{S+k}\nv_mul_f32 v{S+k}, v17, v{S+k}')
    for k in range(4): a(f'v_permlane32_swap_b32 v{S+4+k}, v{S+k}')
    for k in range(4): a(f'v_add_f32_dpp v{S+k}, v{S+k}, v{S+4+k} row_ror:8 row_mask:0xf bank_mask:0xf')
    a(f'v_cvt_pk_bf16_f32 v20, v{S}, v{S+1}\nv_cvt_pk_bf16_f32 v21, v{S+2}, v{S+3}')
    a('s_mov_b64 exec, 0x00ff00ff\nds_write_b64 v10, v[20:21]\ns_waitcnt lgkmcnt(0)')
    finish()

    a('L_H123:')
    if tlbpf:
        a('s_cmp_lg_u32 s3, 1\ns_cbranch_scc1 L_notlb')
        a('s_cmp_lt_u32 s2, 224\ns_cbranch_scc1 L_notlb')
        a('s_lshr_b32 s52, s2, 3\ns_and_b32 s52, s52, 3\ns_and_b32 s55, s2, 7\ns_lshl_b32 s53, s55, 15')
        a('s_lshl_b32 s54, s52, 23\ns_add_u32 s54, s54, s53\nv_lshlrev_b32 v3, 21, v1\nv_add_u32 v3, s54, v3')
        a(f's_lshl2_add_u32 s54, s55, s52\ns_mul_i32 s54, s54, {32*7168}\nv_mov_b32 v4, s54')
        a('s_lshl_b32 s54, s52, 21\ns_add_u32 s54, s54, s53\nv_mov_b32 v5, s54\nv_mov_b32 v7, 0')
        a('s_mov_b64 exec, 15\ns_waitcnt lgkmcnt(0)')
        for k, (v, p) in enumerate(((4, 16), (4, 18), (3, 6), (3, 8), (5, 20), (5, 12), (7, 22))):
            a(f'global_load_dword v{240+k}, v{v}, s[{p}:{p+1}]')
        a('s_mov_b64 exec, -1\nL_notlb:')
    if stamps: a('s_mov_b64 s[66:67], 0')
    a('v_mov_b32 v16, -1\nv_mov_b32 v17, -1\nv_mov_b32 v18, -1\nv_mov_b32 v19, -1')
    a(f'v_lshlrev_b32 v13, 4, v1\nv_add_u32 v12, {L_Q}, v13')
    for k in range(7): a(f'ds_write_b128 v12, v[16:19] offset:{1024*k}')
    assert L_Q + 7168 == L_END
    a('s_waitcnt lgkmcnt(0)\ns_barrier')
    zstamps(); consts()
    a(f'v_mov_b32 v9, {OOB}\nv_mov_b32 v15, 0xffffff00\nv_lshrrev_b32 v2, 4, v1\nv_and_b32 v3, 15, v1\nv_and_b32 v14, 7, v1')
    a('s_and_b32 s55, s2, 7\ns_lshr_b32 s54, s2, 3')
    ldswait('f0h', L_F+F0, 4)
    get_tag(11); tags(8, (0, 8, 16, 24))
    a('s_cmp_eq_u32 s3, 2\ns_cbranch_scc1 L_H2')
    a('s_cmp_eq_u32 s3, 3\ns_cbranch_scc1 L_H3')
    L, C = 128, 144
    a(f's_lshl_b32 s59, s54, 12\ns_add_u32 s59, s59, {QP}\ns_lshl_b32 s58, s55, 9\ns_add_u32 s58, s58, s59')
    a(f'v_add_u32 v10, {L_QR}, v13\nv_cmp_gt_u32 vcc, 32, v1\nv_cndmask_b32 v8, v9, v13, vcc')
    def sum_halves(r):
        for k in range(4): a(f'v_mov_b32 v{r+4+k}, v{r+k}')
        for k in range(4): a(f'v_permlane32_swap_b32 v{r+4+k}, v{r+k}')
        for k in range(4): a(f'v_add_f32 v{r+k}, v{r+k}, v{r+4+k}')
    ldsdata('qr', [f'ds_read_b128 v[{L+4*n}:{L+4*n+3}], v10 offset:{1024*n}' for n in range(2)], range(L, L+8), 20, 2)
    for k in range(4): a(f'v_add_f32 v{L+k}, v{L+k}, v{L+4+k}')
    sum_halves(L)
    put_tag(L, 4, 8, 15)
    a(f'buffer_store_dwordx4 v[{L}:{L+3}], v8, s[28:31], s58 offen sc1')
    stamp(2)
    a('s_and_b32 s88, s96, 0xffff\ns_lshr_b32 s89, s96, 16')
    if lightred:
        a('s_cmp_lt_u32 s2, 224\ns_cbranch_scc1 L_qf0')
        a(f's_sub_u32 s53, s2, 224\ns_lshl_b32 s59, s53, 12\ns_add_u32 s59, s59, {QP}')
    else:
        a('s_xor_b32 s53, s54, s2\ns_and_b32 s53, s53, 7\ns_cbranch_scc1 L_qf0\ns_mov_b32 s53, s54')
    a(f's_lshl_b32 s57, s53, 9\ns_add_u32 s57, s57, {QF}\ns_waitcnt vmcnt(0)')
    gather('qp', [(f'buffer_load_dwordx4 v[{L+4*n}:{L+4*n+3}], v13, s[28:31], s59 offen offset:{1024*n} sc1', L+4*n, 4) for n in range(4)],
           C, lambda k, d: f's{97+d}', '0xff', 20, 4, 'instr')
    for k in range(4): a(f'v_add_f32 v{C+k}, v{C+k}, v{C+4+k}\nv_add_f32 v{C+8+k}, v{C+8+k}, v{C+12+k}')
    for k in range(4): a(f'v_add_f32 v{C+k}, v{C+k}, v{C+8+k}')
    sum_halves(C)
    for k in range(4): a(f'v_cvt_pk_bf16_f32 v{20+k}, v{C+k}, v{C+k}\nv_lshlrev_b32 v{20+k}, 16, v{20+k}\nv_or_b32 v{20+k}, s{88+(k & 1)}, v{20+k}')
    a('buffer_store_dwordx4 v[20:23], v8, s[28:31], s57 offen sc1')
    stamp(10)
    a('s_waitcnt vmcnt(0)')
    a('L_qf0:')
    ldswait('f1', L_F+F1, 2)
    stamp(3)
    gj('s52', None, None)
    a(f's_lshl_b32 s52, s52, 12\ns_add_u32 s52, s52, {QF}')
    gather('qf', [(f'buffer_load_dwordx4 v[{L+4*n}:{L+4*n+3}], v13, s[28:31], s52 offen offset:{1024*n} sc1', L+4*n, 4) for n in range(4)],
           C, lambda k, d: f's{88+(d & 1)}', '0xffff', 20, sleep, 'lane')
    a(f'v_lshrrev_b32 v11, 5, v1\nv_lshlrev_b32 v11, 1, v11\nv_add_lshl_u32 v11, v11, v1, 3\nv_add_u32 v11, {L_Q}, v11')
    for n in range(4):
        a(f'v_perm_b32 v{20+2*n}, v{C+4*n+1}, v{C+4*n}, s61\nv_perm_b32 v{21+2*n}, v{C+4*n+3}, v{C+4*n+2}, s61')
        a(f'ds_write_b64 v11, v[{20+2*n}:{21+2*n}] offset:{544*n}')
    stamp(4)
    srd(40, 22, 2048); srd(44, 4, 2048)
    a('s_lshl_b32 s50, s55, 5\ns_add_u32 s50, s50, s54\ns_lshl_b32 s55, s50, 3')
    a(f's_lshr_b32 s51, s50, 2\ns_lshl_b32 s51, s51, 13\ns_and_b32 s50, s50, 3\ns_lshl_b32 s50, s50, 5\ns_add_u32 s50, s50, s51\ns_add_u32 s50, s50, {SF}\ns_add_u32 s51, s50, 4096')
    a('v_lshrrev_b32 v10, 1, v1\nv_lshlrev_b32 v10, 7, v10\nv_and_b32 v12, 1, v1\nv_lshl_add_u32 v10, v12, 4, v10\nv_lshlrev_b32 v12, 1, v2')
    a('buffer_load_ushort v15, v12, s[44:47], s55 offen')
    a('v_cmp_eq_u32 vcc, 0, v3\nv_cndmask_b32 v13, v9, v12, vcc')
    a(f's_xor_b32 s57, s96, {CMIX}\nv_mov_b32 v17, s57\nv_or_b32 v18, s2, v1\nv_mov_b32 v19, {EP}\nv_cmp_eq_u32 vcc, 0, v18\nv_cndmask_b32 v16, v9, v19, vcc')
    tags(12, SH12)
    a('s_waitcnt vmcnt(0)\nv_lshlrev_b32 v15, 16, v15')
    ldswait('o16', L_O16, 1)
    if dlS: a(f's_sleep {dlS}')
    stamp(8)
    sl = [f'buffer_load_dwordx4 v[{36+4*n}:{39+4*n}], v10, s[28:31], s{50+n} offen sc1' for n in range(2)]
    if not pipe:
        gather('sg', [(sl[n], 36+4*n, 4) for n in range(2)], 28, lambda k, d: f's{97+d}', '0xfff', 20, slS, 'lane')
    else:
        a(sl[0] + '\n' + sl[1] + '\ns_mov_b64 s[88:89], -1\ns_mov_b64 s[90:91], -1')
        a('L_sg:')
        a(f's_or_b64 exec, s[88:89], 1\n{sl[0]}\ns_or_b64 exec, s[90:91], 1\n{sl[1]}\ns_mov_b64 exec, -1')
        a(f's_waitcnt vmcnt({2*pipe})')
        for n in range(2):
            for d in range(4): a(f'v_xor_b32 v{28+4*n+d}, s{97+d}, v{36+4*n+d}')
            orall(range(28+4*n, 32+4*n), 20+n)
            a(f'v_and_b32 v{20+n}, 0xfff, v{20+n}\nv_cmp_ne_u32 s[{88+2*n}:{89+2*n}], 0, v{20+n}')
        a('s_or_b64 vcc, s[88:89], s[90:91]\ns_cbranch_scc0 L_sg_ok')
        again('L_sg')
        a('L_sg_ok:')
    stamp(9)
    a('v_pk_add_f32 v[28:29], v[28:29], v[32:33]\nv_pk_add_f32 v[30:31], v[30:31], v[34:35]')
    red4(28); allred_row('v_add_f32', 28, (8, 4, 2))
    rbf(28)
    a('v_mul_f32 v25, 0xbfb8aa3b, v28\nv_exp_f32 v25, v25\nv_add_f32 v25, 1.0, v25\nv_rcp_f32 v25, v25\nv_mul_f32 v24, v28, v25')
    rbf(24)
    a('v_mul_f32_dpp v28, v24, v28 quad_perm:[1,1,3,3] row_mask:0xf bank_mask:0xf'); rbf(28)
    a('v_add_f32 v28, v28, v15\nv_cvt_pk_bf16_f32 v28, v28, v28')
    a('buffer_store_short v28, v13, s[40:43], s55 offen')
    a('buffer_store_dword v17, v16, s[28:31], 0 offen sc1')
    finish()
    a('L_H2:')
    a('s_cmp_ge_u32 s2, 224\ns_cbranch_scc1 L_nogu')
    for sr, sh in ((56, shg), (57, shu)):
        a(f's_add_u32 s{sr}, s54, {sh}\ns_cmp_ge_u32 s{sr}, 28\ns_cselect_b32 s59, 28, 0\ns_sub_u32 s{sr}, s{sr}, s59\ns_lshl_b32 s{sr}, s{sr}, 13')
    a(f's_add_u32 s57, s57, {4096-512}\ns_lshl_b32 s58, s55, 9')
    a('v_mov_b32 v8, s57\nv_mov_b32 v10, s56\nv_cmp_gt_u32 vcc, 32, v1\nv_cndmask_b32 v8, v8, v10, vcc\nv_add_u32 v8, v8, v13')
    a(f'v_and_b32 v10, 32, v1\nv_lshl_add_u32 v10, v10, 4, v13\nv_add_u32 v10, {L_GR}, v10')
    ldsdata('gr', [f'ds_read_b128 v[{L+4*n}:{L+4*n+3}], v10 offset:{512*n}' for n in range(2)], range(L, L+8), 20, 4)
    for k in range(4): a(f'v_add_f32 v{L+k}, v{L+k}, v{L+4+k}')
    put_tag(L, 4, 8, 15)
    assert GU == 0
    a(f'buffer_store_dwordx4 v[{L}:{L+3}], v8, s[28:31], s58 offen sc1')
    stamp(2)
    a('s_branch L_hget')
    a('L_nogu:')
    a('s_cmp_ge_u32 s2, 252\ns_cbranch_scc1 L_hget')
    a(f's_sub_u32 s53, s2, 224\ns_lshl_b32 s56, s53, 13\ns_add_u32 s57, s56, 4096\ns_lshl_b32 s58, s53, 9\ns_add_u32 s58, s58, {HF}')
    a('s_and_b32 s88, s96, 0xffff\ns_lshr_b32 s89, s96, 16\nv_cmp_gt_u32 vcc, 32, v1\nv_cndmask_b32 v8, v9, v13, vcc')
    ldswait('qseen', L_Q, 4)
    C2 = 160
    gather('gug', [(f'buffer_load_dwordx4 v[{L+4*n}:{L+4*n+3}], v13, s[28:31], s{56+(n >> 2)} offen offset:{1024*(n & 3)} sc1', L+4*n, 4) for n in range(8)],
           C2, lambda k, d: f's{97+d}', '0xff', 20, 4, 'instr')
    for b in (C2, C2+16):
        for k in range(4): a(f'v_add_f32 v{b+k}, v{b+k}, v{b+4+k}\nv_add_f32 v{b+8+k}, v{b+8+k}, v{b+12+k}')
        for k in range(4): a(f'v_add_f32 v{b+k}, v{b+k}, v{b+8+k}')
        sum_halves(b)
    for k in range(4):
        rbf(C2+k); rbf(C2+16+k); silu(C2+k, 24); rbf(C2+k)
        a(f'v_mul_f32 v{20+k}, v{C2+k}, v{C2+16+k}'); rbf(20+k)
        a(f'v_or_b32 v{20+k}, s{88+(k & 1)}, v{20+k}')
    a('buffer_store_dwordx4 v[20:23], v8, s[28:31], s58 offen sc1')
    stamp(10)
    a('L_hget:')
    rb_of('s52', 's53')
    a(f's_mul_i32 s52, s52, 224\ns_add_u32 s52, s52, {HF}')
    ldswait('sdone', L_MLW, 4)
    a('v_min_u32 v12, 6, v14\nv_lshrrev_b32 v10, 3, v1\nv_mul_u32_u24 v10, 7, v10\nv_add_lshl_u32 v10, v10, v12, 2')
    a('v_lshlrev_b32 v12, 2, v10\nv_and_b32 v12, 16, v12\nv_bfe_u32 v12, s96, v12, 16')
    gather('hg', [('buffer_load_dword v32, v10, s[28:31], s52 offen sc1', 32, 1)], 20, lambda k, d: 'v12', '0xffff', 22, sleep, 'instr')
    a('v_cmp_ne_u32 vcc, 7, v14\nv_cndmask_b32 v20, 0, v20, vcc')
    a('v_mov_b32_dpp v21, v20 quad_perm:[0,0,2,2] row_mask:0xf bank_mask:0xf\nv_mov_b32_dpp v22, v20 quad_perm:[1,1,3,3] row_mask:0xf bank_mask:0xf')
    a(f'v_perm_b32 v20, v22, v21, s61\nv_and_b32 v10, 62, v1\nv_lshlrev_b32 v10, 1, v10\nv_add_u32 v10, {L_H}, v10\nds_write_b32 v10, v20')
    stamp(4)
    a('s_branch L_H23')
    a('L_H3:')
    a(f'v_lshlrev_b32 v10, 3, v14\nv_add_u32 v11, {L_MLW}, v10\ns_mov_b32 s88, {LOG2E}\ns_lshr_b32 s90, s96, 16\ns_and_b32 s97, s96, 0xfff')
    gj('s52', 's53', 's89')
    a(f's_lshl_b32 s89, s52, 6\ns_add_u32 s89, s89, s53\ns_lshl_b32 s89, s89, 6\ns_add_u32 s89, s89, {ML}\nv_cmp_gt_u32 vcc, 8, v1\nv_cndmask_b32 v10, v9, v10, vcc\nv_mov_b32 v15, 0xfffff000')
    ldsdata('mlp_w', [f'ds_read_b64 v[{20+2*w}:{21+2*w}], v11 offset:{64*w}' for w in range(4)], range(20, 28), 28, 4)
    a('v_max3_f32 v28, v20, v22, v24\nv_max_f32 v28, v28, v26\nv_mul_f32 v30, s88, v28\nv_ceil_f32 v30, v30')
    for w in range(4): a(f'v_fma_f32 v{20+2*w}, v{20+2*w}, s88, -v30\nv_exp_f32 v{20+2*w}, v{20+2*w}')
    a('v_mul_f32 v33, v20, v21\nv_fmac_f32 v33, v22, v23\nv_fmac_f32 v33, v24, v25\nv_fmac_f32 v33, v26, v27')
    put_tag(33, 1, 12, 15)
    a('v_or_b32 v32, s90, v28')
    a('buffer_store_dwordx2 v[32:33], v10, s[28:31], s89 offen sc1')
    stamp(4)
    a('L_H23:')
    optags()
    a(f'v_mul_u32_u24 v6, 528, v2\nv_lshl_add_u32 v6, v3, 5, v6')
    a(f's_and_b32 s59, s3, 1\ns_mul_i32 s57, s59, 2112\ns_add_u32 s57, s57, {L_OR}\nv_add_u32 v6, s57, v6')
    a('v_lshrrev_b32 v7, 3, v1\nv_lshlrev_b32 v7, 13, v7\nv_lshl_add_u32 v7, v19, 4, v7')
    gj('s56', 's57', 's58')
    a(f's_lshl1_add_u32 s56, s56, s59\ns_lshl_b32 s56, s56, 16\ns_lshl_b32 s57, s57, 7\ns_add_u32 s56, s56, s57\ns_add_u32 s56, s56, {OP}')
    a('v_mov_b32 v15, 0xfffefffe')
    ldswait('or23', L_OR, 1)
    R = 64
    ldsdata('orw', [f'ds_read_b128 v[{R+8*w+4*e}:{R+8*w+4*e+3}], v6 offset:{4224*w+16*e}' for w in range(4) for e in range(2)], range(R, R+32), 20, 0)
    for k in range(0, 8, 2): a(f'v_pk_add_f32 v[{R+k}:{R+k+1}], v[{R+k}:{R+k+1}], v[{R+8+k}:{R+9+k}]\nv_pk_add_f32 v[{R+16+k}:{R+17+k}], v[{R+16+k}:{R+17+k}], v[{R+24+k}:{R+25+k}]')
    for k in range(0, 8, 2): a(f'v_pk_add_f32 v[{R+k}:{R+k+1}], v[{R+k}:{R+k+1}], v[{R+16+k}:{R+17+k}]')
    for k in range(8): a(f'v_add_u32 v{R+k}, 0x10000, v{R+k}')
    for k in range(4): a(f'v_perm_b32 v{20+k}, v{R+2*k+1}, v{R+2*k}, s61')
    for k in range(4): a(f'v_and_or_b32 v{20+k}, v{20+k}, v15, v{28+k}')
    a(f'buffer_store_dwordx4 v[20:23], v7, s[28:31], s56 offen sc1')
    stamp(6)
    finish()
    a('L_exit:\ns_endpgm')
    a.raw(f'''.section .rodata,"a"
.p2align 6
.amdhsa_kernel {KNAME}
  .amdhsa_next_free_vgpr 256
  .amdhsa_next_free_sgpr 102
  .amdhsa_accum_offset 256
  .amdhsa_group_segment_fixed_size 0
  .amdhsa_kernarg_size 96
  .amdhsa_user_sgpr_count 2
  .amdhsa_user_sgpr_kernarg_segment_ptr 1
  .amdhsa_system_sgpr_workgroup_id_x 1
  .amdhsa_float_denorm_mode_32 3
.end_amdhsa_kernel''')
    return a.text()

if __name__ == '__main__':
    out = sys.argv[1]
    kw = eval('dict(' + (sys.argv[2] if len(sys.argv) > 2 else '') + ')')
    open(out, 'w').write(gen(**kw))
```

```python
import sys
sys.path.insert(0, 'work')
from asmlib import Asm

KNAME = 'recurrent_scan__gqa_block_cached__swiglu_ffn__decode_kernel'
MB = 1 << 20
GU = 0
HF = 229376
EP = 245760
XC = 249856
SF, OP = 262144, 786432
ML, QF, QP, OG, WSEND = 1310720, 1327104, 1343488, 1474560, 1605632
STAMPS = 8 * MB
L_K, L_OR, L_X, L_Q = 0, 131072, 147968, 150016
L_MLW, L_H, L_O16, L_F, L_QR, L_GR, L_END = 152192, 152448, 152704, 152960, 153088, 155136, 157184
F0, F1, FM, FT, F3, F3E = 0, 4, 8, 12, 16, 32
OOB = 0x40000000
LOG2E = 0x3fb8aa3b
SCALE = 0x3db504f3
SPIN = 400000
CMIX = 0x9e3779b9
SH12 = (0, 12, 20, 6)

HEADER = open('recurrent_scan__gqa_block_cached__swiglu_ffn__decode.s.ref').read().split('; Override')[0]

def gen(plain='', win=((0,7),(66,6),(88,4)), winL=((0,7),), nB1L=10, nF1L=31, defer=5, mlgate='f3', pipe=False, slS=0, slO=0, dlS=0, slF=0, local='so', oppol='', sfpol='', clean=False, outpol='', mO='union', mS='union', nX=18, nB1=10, nF1=24, shu=2, shg=1, f3at=14, rot=0, kv='slab', lightred=True, f3e=None,
        pref=True, tlbpf=False, stamps=False, sleep=8, abl=()):
    a0 = Asm()
    cur = ['']
    class A:
        def __call__(self, text, tag=None):
            for t in text.split('\n'):
                if 'sc1' in t and t.startswith('buffer_store') and 'st' in abl and tag is None: continue
                if 'sc1' in t and t.startswith('buffer_load') and ('ld' in abl or cur[0] in abl): continue
                a0(t, tag)
        def __getattr__(self, n): return getattr(a0, n)
        def __setattr__(self, n, v): setattr(a0, n, v)
    a = A()
    PL = {k: ('' if k in plain else ' nt') for k in 'qgkvdo'}
    def sched(sc, i): return [w for (st, w) in sc if st <= i][-1]
    def stamp(k):
        if stamps: a(f's_memrealtime s[{64+2*k}:{65+2*k}]')
    def srd(d, p, size):
        a(f's_mov_b32 s{d}, s{p}\ns_mov_b32 s{d+1}, s{p+1}\ns_mov_b32 s{d+2}, {size}\ns_mov_b32 s{d+3}, 0x20000')
    def allred_row(op, v, steps=(8, 4, 2, 1)):
        for r in steps: a(f'{op}_dpp v{v}, v{v}, v{v} row_ror:{r} row_mask:0xf bank_mask:0xf')
    def allred_xrow(op, v, t):
        a(f'v_mov_b32 v{t}, v{v}\nv_permlane16_swap_b32 v{t}, v{v}\n{op} v{v}, v{v}, v{t}')
        a(f'v_mov_b32 v{t}, v{v}\nv_permlane32_swap_b32 v{t}, v{v}\n{op} v{v}, v{v}, v{t}')
    def rbf(v):
        a(f'v_cvt_pk_bf16_f32 v{v}, v{v}, v{v}\nv_lshlrev_b32 v{v}, 16, v{v}')
    def perms_pair(La, Lb, TB, u):
        for d in range(4):
            a(f'v_perm_b32 v{TB+4*(2*d)+u}, v{Lb+d}, v{La+d}, s60')
            a(f'v_perm_b32 v{TB+4*(2*d+1)+u}, v{Lb+d}, v{La+d}, s61')
    def tree(op2, op3, regs, t):
        regs = list(regs)
        if len(regs) == 2:
            a(f'{op2} v{t}, v{regs[0]}, v{regs[1]}'); return
        a(f'{op3} v{t}, v{regs[0]}, v{regs[1]}, v{regs[2]}')
        regs = regs[3:]
        while len(regs) >= 2:
            a(f'{op3} v{t}, v{t}, v{regs[0]}, v{regs[1]}'); regs = regs[2:]
        if regs: a(f'{op2} v{t}, v{t}, v{regs[0]}')
    def umax(regs, t): tree('v_max_u32', 'v_max3_u32', regs, t)
    def orall(regs, t): tree('v_or_b32', 'v_or3_b32', regs, t)
    def again(lbl): a(f's_sub_u32 s62, s62, 1\ns_cmp_gt_i32 s62, 0\ns_cbranch_scc1 {lbl}')
    def retry(lbl_loop, lbl_done, slp):
        a(f's_cbranch_vccz {lbl_done}')
        if slp: a(f's_sleep {slp}')
        again(lbl_loop)
        a(f'{lbl_done}:')
    def gather(name, loads, clean, tag, mask, tmp, slp, mode, first=True, each=None, pre=None, onfail=None):
        n = len(loads)
        cur[0] = name
        if first:
            for t, _, _ in loads: a(t)
        a(f'L_{name}:')
        tk = []; c0 = clean
        for k, (_, r, c) in enumerate(loads):
            if k == 0 or (first and each): a(f's_waitcnt vmcnt({n-1-k if (first and each) else 0})')
            for d in range(c): a(f'v_xor_b32 v{c0+d}, {tag(k, d)}, v{r+d}')
            if pre: pre(c0, tmp+k); tk.append(tmp+k)
            elif c > 1: orall(range(c0, c0+c), tmp+k); tk.append(tmp+k)
            else: tk.append(c0)
            if each: each(k, c0)
            c0 += c
        if n > 1: orall(tk, tmp+n)
        a(f'v_and_b32 v{tmp+n}, {mask}, v{tmp+n if n > 1 else tk[0]}\nv_cmp_ne_u32 vcc, 0, v{tmp+n}')
        a(f's_branch L_{name}_ok' if abl else f's_cbranch_vccz L_{name}_ok')
        if slp: a(f's_sleep {slp}')
        if onfail: onfail()
        if mode == 'all':
            for t, _, _ in loads: a(t)
            again(f'L_{name}')
            a(f's_waitcnt vmcnt(0)\nL_{name}_ok:')
            return
        if mode == 'union':
            a('s_mov_b64 exec, vcc')
            for t, _, _ in loads: a(t)
            a('s_mov_b64 exec, -1')
        for k, (t, _, _) in enumerate(loads if mode != 'union' else ()):
            if n > 1 or mode == 'line8':
                a(f'v_and_b32 v{tmp+n}, {mask}, v{tk[k]}')
                if mode == 'line8':
                    for m in ('quad_perm:[1,0,3,2]', 'quad_perm:[2,3,0,1]', 'row_half_mirror'):
                        a(f'v_or_b32_dpp v{tmp+n}, v{tmp+n}, v{tmp+n} {m} row_mask:0xf bank_mask:0xf')
                a(f'v_cmp_ne_u32 vcc, 0, v{tmp+n}\ns_cbranch_vccz L_{name}_s{k}')
            if mode == 'instr': a(t)
            else: a(f's_mov_b64 exec, vcc\n{t}\ns_mov_b64 exec, -1')
            if n > 1 or mode == 'line8': a(f'L_{name}_s{k}:')
        a('s_waitcnt vmcnt(0)')
        again(f'L_{name}')
        a(f'L_{name}_ok:')
    def ldswait(name, addr, slp):
        a(f'v_mov_b32 v12, {addr}\nL_{name}:')
        a(f'ds_read_b32 v11, v12\ns_waitcnt lgkmcnt(0)\nv_cmp_eq_u32 vcc, -1, v11')
        retry(f'L_{name}', f'L_{name}_ok', slp)
    def ldsdata(name, reads, regs, t, slp):
        a(f'L_{name}:')
        for r in reads: a(r)
        a('s_waitcnt lgkmcnt(0)')
        umax(regs, t)
        a(f'v_cmp_eq_u32 vcc, -1, v{t}')
        retry(f'L_{name}', f'L_{name}_ok', slp)
    def get_tag(t):
        a(f'v_mov_b32 v{t}, {L_F}\nds_read_b32 v{t}, v{t} offset:{FT}\ns_waitcnt lgkmcnt(0)\nv_readfirstlane_b32 s96, v{t}')
    def tags(bits, shifts, s0=97):
        for d, sh in enumerate(shifts): a(f's_bfe_u32 s{s0+d}, s96, {(bits << 16) | sh}')
    def put_tag(r, n, bits, vm, s0=97):
        for d in range(n): a(f'v_add_u32 v{r+d}, {1 << (bits-1)}, v{r+d}')
        for d in range(n): a(f'v_and_or_b32 v{r+d}, v{r+d}, v{vm}, s{s0+d}')
    def silu(v, t):
        a(f'v_mul_f32 v{t}, 0xbfb8aa3b, v{v}\nv_exp_f32 v{t}, v{t}\nv_add_f32 v{t}, 1.0, v{t}\nv_rcp_f32 v{t}, v{t}\nv_mul_f32 v{v}, v{v}, v{t}')
    def fold_cols(D, o, rm='0xf'):
        for k in range(4):
            a(f'v_add_f32_dpp v{o+k}, v{D+4*k+1}, v{D+4*k} row_ror:8 row_mask:{rm} bank_mask:0x3')
            a(f'v_add_f32_dpp v{o+((k+2)&3)}, v{D+4*(((k+2)&3)+4)}, v{D+4*(((k+2)&3)+4)+1} row_ror:8 row_mask:{rm} bank_mask:0xc')
    def red4(r):
        a(f'v_permlane32_swap_b32 v{r}, v{r+2}\nv_permlane32_swap_b32 v{r+1}, v{r+3}')
        a(f'v_add_f32 v{r}, v{r}, v{r+2}\nv_add_f32 v{r+1}, v{r+1}, v{r+3}')
        a(f'v_permlane16_swap_b32 v{r}, v{r+1}\nv_add_f32 v{r}, v{r}, v{r+1}')
    def rb_of(d, t):
        a(f's_lshr_b32 {d}, s2, 5\ns_lshl_b32 {d}, {d}, 3\ns_and_b32 {t}, s2, 7\ns_add_u32 {d}, {d}, {t}')
    def gj(g, j, t):
        a(f's_bfe_u32 {g}, s2, 0x20003')
        if j: rb_of(j, t)
    def consts():
        a(f's_mov_b32 s60, 0x05040100\ns_mov_b32 s61, 0x07060302\ns_mov_b32 s62, {SPIN}')
        srd(28, 26, WSEND)
    def finish():
        if stamps:
            stamp(7)
            a('s_waitcnt lgkmcnt(0)')
            a('s_lshl_b32 s52, s2, 3\ns_add_u32 s52, s52, s3\ns_lshl_b32 s52, s52, 7')
            a(f's_add_u32 s54, s26, {STAMPS}\ns_addc_u32 s55, s27, 0')
            a('v_mov_b32 v2, s52\ns_mov_b64 exec, 1')
            for k in range(6):
                a(f'v_mov_b32 v4, s{64+4*k}\nv_mov_b32 v5, s{65+4*k}\nv_mov_b32 v6, s{66+4*k}\nv_mov_b32 v7, s{67+4*k}')
                a(f'global_store_dwordx4 v2, v[4:7], s[54:55] offset:{16*k}\ns_nop 1')
        a('s_endpgm')
    def zstamps():
        if stamps:
            for k in range(68, 88, 2): a(f's_mov_b64 s[{k}:{k+1}], 0')

    a.raw(HEADER.rstrip())
    a.raw(f'; @launch grid=(256,1,1) block=(512,1,1) lds={L_END}')
    a.raw('.amdgcn_target "amdgcn-amd-amdhsa--gfx950"\n.text')
    a.raw(f'.globl {KNAME}\n.p2align 8\n.type {KNAME},@function\n{KNAME}:')
    stamp(0)
    a('s_load_dwordx16 s[4:19], s[0:1], 0\ns_load_dwordx8 s[20:27], s[0:1], 64')
    a('v_lshrrev_b32 v2, 6, v0\nv_and_b32 v1, 63, v0\nv_readfirstlane_b32 s3, v2')
    a('s_cmp_ge_u32 s2, 256\ns_cbranch_scc1 L_exit')
    a('s_cmp_ge_u32 s3, 4\ns_cbranch_scc1 L_S')
    XS = 40
    a('s_setprio 2')
    a('s_cmp_lg_u32 s3, 0\ns_cbranch_scc1 L_H123')
    if pref:
        a(f's_getpc_b64 s[56:57]\nL_pc:\ns_lshr_b32 s58, s2, 3\ns_mulk_i32 s58, 1024\nv_and_b32 v2, 7, v1\nv_lshl_add_u32 v2, v2, 7, s58')
        a(f'v_min_u32 v2, L_exit-L_pc, v2\nglobal_load_dword v255, v2, s[56:57]')
    a(f'v_lshlrev_b32 v7, 5, v1\nv_mov_b32 v8, {EP}\ns_waitcnt lgkmcnt(0)')
    a(f'global_load_dwordx4 v[{XS}:{XS+3}], v7, s[4:5]\nglobal_load_dwordx4 v[{XS+4}:{XS+7}], v7, s[4:5] offset:16')
    a('global_load_dword v14, v8, s[26:27] sc1')
    stamp(1)
    a('s_branch L_H0')

    a('L_S:')
    V, TB, PO, O, S, PP, QL, QH, D, X = 128, 96, 64, 48, 32, 24, 64, 80, 64, 32
    n_ld = [0]
    W = [win]; nF = [nF1]
    def pace():
        a.vm_window(sched(W[0], n_ld[0])); n_ld[0] += 1
    a('s_sub_u32 s63, s3, 4')
    a('s_and_b32 s55, s2, 7\ns_lshr_b32 s54, s2, 3')
    a('s_lshl2_add_u32 s53, s55, s63\ns_lshl_b32 s52, s53, 10\ns_add_u32 s52, s52, s54\ns_lshl_b32 s52, s52, 8')
    a('v_lshrrev_b32 v2, 4, v1\nv_and_b32 v3, 15, v1\nv_lshlrev_b32 v4, 4, v3\nv_lshl_add_u32 v6, v2, 16, v4')
    a('s_movk_i32 s57, 0x2000\ns_lshl_b32 s34, s57, 10\ns_mov_b32 s35, 0x20000\ns_waitcnt lgkmcnt(0)\ns_mov_b64 s[32:33], s[10:11]')
    a.vm_reset()
    def s_setup():
        stamp(1)
        a('v_lshlrev_b32 v9, 4, v1')
        a(f's_mul_i32 s58, s63, 4224\ns_add_u32 s58, s58, {L_OR}\nv_add_u32 v10, s58, v9')
        for k in range(4): a(f'v_mov_b32 v{20+k}, -1')
        for k in range(4): a(f'ds_write_b128 v10, v[20:23] offset:{1024*k}')
        a('ds_write_b128 v10, v[20:23] offset:3200')
        zstamps(); consts()
        a(f's_cmp_ge_u32 s63, 2\ns_cselect_b64 s[36:37], s[18:19], s[16:17]\ns_cselect_b32 s58, {shu}, {shg}')
        a(f's_mov_b32 s38, {1024*7168}\ns_mov_b32 s39, 0x20000')
        a('s_add_u32 s58, s58, s54\ns_cmp_ge_u32 s58, 28\ns_cselect_b32 s59, 28, 0\ns_sub_u32 s58, s58, s59\ns_lshl_b32 s58, s58, 8')
        a(f's_and_b32 s59, s63, 1\ns_lshl1_add_u32 s59, s55, s59\ns_mul_i32 s50, s59, {64*7168}\ns_add_u32 s50, s50, s58')
        a(f'v_mul_u32_u24 v7, {8*7168}, v2\nv_add_u32 v7, v7, v4')
        a(f's_lshl_b32 s53, s53, 6\ns_add_u32 s53, s53, {L_X}\nv_lshl_add_u32 v12, v2, 4, s53')
        a(f's_lshl_b32 s59, s59, 7\ns_add_u32 s59, s59, {L_X}\nv_lshl_add_u32 v13, v2, 4, s59')
        a(f's_lshl_b32 s59, s63, 9\ns_add_u32 s59, s59, {L_QR}\nv_lshlrev_b32 v14, 5, v3\nv_lshl_add_u32 v14, v2, 4, v14\nv_add_u32 v14, s59, v14')
        a('s_waitcnt lgkmcnt(0)\ns_barrier')
    for i in range(8):
        pace()
        a(f'buffer_load_dwordx4 v[{V+4*i}:{V+4*i+3}], v6, s[32:35], s52 offen{PL["q"]}', tag=('q', i))
        if i < 7: a('s_add_u32 s52, s52, s57')
        if i == min(sched(win, 0), 8) - 1: s_setup()
    def kv_setup():
        gj('s52', 's53', 's54')
        if kv != 'slab':
            for T in range(4):
                a(f's_mul_i32 s56, s53, {4*kv}\ns_add_u32 s56, s56, s63\ns_add_u32 s56, s56, {4*(T % kv) + (T // kv)*256*kv}\ns_lshl_b32 s54, s52, 10\ns_add_u32 s56, s56, s54\ns_lshl_b32 s{88+T}, s56, 13')
        a('s_lshl2_add_u32 s53, s53, s63\ns_lshl_b32 s54, s52, 10')
        for T in range(4 if kv == 'slab' else 0):
            a(f's_add_u32 s56, s53, {rot*T}\ns_and_b32 s56, s56, 255\ns_add_u32 s56, s56, s54\ns_add_u32 s56, s56, {256*T}\ns_lshl_b32 s{88+T}, s56, 13')
        a('s_lshl_b32 s55, s63, 15')
        a('v_lshlrev_b32 v5, 6, v2\nv_xor_b32 v5, v5, v4\nv_lshl_add_u32 v16, v2, 8, v5')
        for k in range(1, 4): a(f'v_xor_b32 v{16+k}, {16*k}, v16')
        srd(40, 6, 32*MB); srd(44, 8, 32*MB)
    kv_setup()
    def tile_ops(Lb, Xr, first):
        ops = [(lambda u=u: perms_pair(Lb+8*u, Lb+8*u+4, TB, u)) for u in range(4)]
        def mf():
            for j in range(8):
                c = '0' if first else f'v[{D+4*j}:{D+4*j+3}]'
                a(f'v_mfma_f32_16x16x32_bf16 v[{D+4*j}:{D+4*j+3}], v[{Xr}:{Xr+3}], v[{TB+4*j}:{TB+4*j+3}], {c}')
        return ops + [mf]
    def pack128(off):
        for k in range(4): a(f'v_mov_b32 v{20+k}, v{D+4*k}')
        for k in range(4): a(f'v_mov_b32_dpp v{20+k}, v{D+16+4*k} quad_perm:[0,1,2,3] row_mask:0x2 bank_mask:0xf')
        a(f's_mov_b32 exec_hi, 0\nds_write_b128 v14, v[20:23] offset:{off}\ns_mov_b32 exec_hi, -1')
    def xwait(name, gu):
        a(f'v_mov_b32 v20, {L_F}\nL_{name}:\nds_read_b32 v21, v20 offset:{F0}\ns_waitcnt lgkmcnt(0)\nv_cmp_eq_u32 vcc, -1, v21')
        retry(f'L_{name}', f'L_{name}_ok', 1)
        a(f'ds_read_b128 v[{X}:{X+3}], v12')
        if gu: a(f'ds_read_b128 v[{X+4}:{X+7}], v13\nds_read_b128 v[{X+8}:{X+11}], v13 offset:64')
        a('s_waitcnt lgkmcnt(0)')
    def kload(i):
        if i % 4 == 0:
            a(f's_add_u32 m0, s55, {i*1024}\ns_add_u32 s56, s{88+(i >> 3)}, {(i & 4)*1024}')
        pace()
        a(f'buffer_load_dwordx4 v{16+(i & 3)}, s[40:43], s56 offen offset:{1024*(i & 3)}{PL["k"]} lds', tag=('k', i))
        if i == nF[0]: a(f'v_mov_b32 v20, {L_F}\nds_write_b32 v20, v20 offset:{F1}')
    KJ = 16
    def phase1(gu):
        seq = ([('g', i) for i in range(16)] if gu else []) + [('k', i) for i in range(KJ)]
        work = [(None, lambda: xwait('xw%d' % gu, gu))]
        work += [(('q', 7), f) for f in tile_ops(V, X, True)] + [(None, lambda: (pack128(0), stamp(10)))]
        if gu:
            work += [(('g', 7), f) for f in tile_ops(V+32, X+4, True)] + [(('g', 15), f) for f in tile_ops(V+64, X+8, False)]
            work += [(None, lambda: pack128(L_GR-L_QR))]
        for n, (kind, i) in enumerate(seq):
            if kind == 'g':
                pace()
                a(f'buffer_load_dwordx4 v[{V+32+4*i}:{V+32+4*i+3}], v7, s[36:39], s50 offen{PL["g"]}', tag=('g', i))
                if i < 15: a(f's_add_u32 s50, s50, {7168*25 if i == 7 else 7168}')
            else: kload(i)
            if n + 9 < nX: continue
            st = [t for t in a.vm if isinstance(t, tuple)]
            landed = st[:len(st) - sched(W[0], n_ld[0]-1)]
            k = 0
            while work and k < 3 and (work[0][0] is None or work[0][0] in landed):
                work.pop(0)[1](); k += 1
        assert not work
    def rest(sfx, nB1):
        a('v_and_b32 v14, 3, v3\nv_lshlrev_b32 v14, 2, v14\nv_lshrrev_b32 v15, 2, v3\nv_add_u32 v14, v14, v15\nv_lshlrev_b32 v14, 8, v14\nv_add_u32 v14, s55, v14')
        a('v_xor_b32 v15, v2, v3')
        for s in range(4):
            a(f'v_xor_b32 v{10+s}, {4*s}, v15\nv_lshl_add_u32 v{10+s}, v{10+s}, 4, v14')
        for i in range(KJ, 32): kload(i)
        a(f'v_and_b32 v8, 7, v1\nv_mul_u32_u24 v14, 272, v8\nv_lshl_add_u32 v14, v2, 4, v14\nv_add_u32 v14, {L_Q}, v14')
        a('v_cmp_gt_u32 vcc, 8, v3\nv_cndmask_b32 v15, 0, -1, vcc\nv_not_b32 v16, v15')
        a(f'v_lshlrev_b32 v17, 3, v8\nv_add_u32 v17, {L_MLW}, v17')
        vn = [0]
        def vload():
            if vn[0] == 32: return
            i = vn[0]; vn[0] += 1
            if i % 4 == 0: a(f's_add_u32 s56, s{88+(i >> 3)}, {(i & 4)*1024}')
            pace()
            a(f'buffer_load_dwordx4 v[{V+4*i}:{V+4*i+3}], v9, s[44:47], s56 offen offset:{1024*(i & 3)}{PL["v"]}', tag=('v', i))
        for i in range(nB1): vload()
        a.vm_wait(('k', 31))
        stamp(2)
        ldsdata('qw' + sfx, [f'ds_read_b128 v[{QL+4*s}:{QL+4*s+3}], v14 offset:{64*s}' for s in range(4)], range(QL, QL+16), 18, 1)
        stamp(3)
        units = [(p, hh, ts) for p in range(2) for hh in range(2) for ts in range(2)]
        def kreads(k):
            p, hh, ts = units[k]
            for s in range(4):
                r = TB + 16*(k & 1) + 4*s
                a(f'ds_read_b128 v[{r}:{r+3}], v{10+s} offset:{(2*p+ts)*8192 + hh*4096}')
        kreads(0); kreads(1)
        vload()
        for k in range(16): a(f'v_and_b32 v{QH+k}, v16, v{QL+k}\nv_and_b32 v{QL+k}, v15, v{QL+k}')
        for k in range(8):
            p, hh, ts = units[k]
            a(f's_waitcnt lgkmcnt({4 if k < 7 else 0})')
            d = S + 8*p + 4*hh
            for s in range(4):
                r = TB + 16*(k & 1) + 4*s; q = (QH if ts else QL) + 4*s
                c = '0' if (ts == 0 and s == 0) else f'v[{d}:{d+3}]'
                a(f'v_mfma_f32_16x16x32_bf16 v[{d}:{d+3}], v[{r}:{r+3}], v[{q}:{q+3}], {c}')
            if k + 2 < 8: kreads(k+2)
            if k in (1, 4, 7): vload()
        a(f's_mov_b32 s57, {SCALE}\ns_mov_b32 s58, {LOG2E}')
        for k in range(0, 16, 2):
            r = S + k
            a(f'v_cvt_pk_bf16_f32 v{r}, v{r}, v{r+1}\nv_and_b32 v{r+1}, 0xffff0000, v{r}\nv_lshlrev_b32 v{r}, 16, v{r}')
            a(f'v_mul_f32 v{r}, s57, v{r}\nv_mul_f32 v{r+1}, s57, v{r+1}')
            a(f'v_cvt_pk_bf16_f32 v{r}, v{r}, v{r+1}\nv_and_b32 v{r+1}, 0xffff0000, v{r}\nv_lshlrev_b32 v{r}, 16, v{r}')
        vload()
        tree('v_max_f32', 'v_max3_f32', range(S, S+16), 18)
        allred_row('v_max_f32', 18, (8,)); allred_xrow('v_max_f32', 18, 20)
        for k in range(16): a(f'v_sub_f32 v{S+k}, v{S+k}, v18\nv_mul_f32 v{S+k}, s58, v{S+k}')
        vload()
        for k in range(16): a(f'v_exp_f32 v{S+k}, v{S+k}')
        a(f'v_add_f32 v19, v{S}, v{S+1}')
        for k in range(2, 16): a(f'v_add_f32 v19, v19, v{S+k}')
        allred_row('v_add_f32', 19, (8,)); allred_xrow('v_add_f32', 19, 20)
        a('s_lshl_b32 s59, s63, 6\nv_add_u32 v20, s59, v17\nds_write_b64 v20, v[18:19]')
        vload()
        for k in range(8): a(f'v_cvt_pk_bf16_f32 v{PP+k}, v{S+2*k}, v{S+2*k+1}')
        stamp(11)
        for p in range(2):
            for k in range(4):
                src = PP + 4*p + k
                a(f'v_and_b32 v{PO+16*p+k}, v15, v{src}')
                a(f'v_mov_b32_dpp v{PO+16*p+4+k}, v{src} row_shr:8 row_mask:0xf bank_mask:0xf bound_ctrl:1')
                a(f'v_mov_b32_dpp v{PO+16*p+8+k}, v{src} row_shl:8 row_mask:0xf bank_mask:0xf bound_ctrl:1')
                a(f'v_and_b32 v{PO+16*p+12+k}, v16, v{src}')
        def pv_pair(pr):
            T, u = pr >> 2, pr & 3
            perms_pair(V+8*pr, V+8*pr+4, TB, u)
            if u == 3:
                for half in range(2):
                    for q in range(4):
                        c = '0' if (T == 0 and half == 0) else f'v[{O+4*q}:{O+4*q+3}]'
                        j = q + 4*half; b = PO + 8*T + 4*half
                        a(f'v_mfma_f32_16x16x32_bf16 v[{O+4*q}:{O+4*q+3}], v[{TB+4*j}:{TB+4*j+3}], v[{b}:{b+3}], {c}')
        def tail_setup1():
            srd(32, 12, 4096*2048); srd(36, 20, 3584*2048)
            a('s_lshr_b32 s52, s2, 3\ns_and_b32 s59, s63, 1\ns_lshl1_add_u32 s52, s52, s59')
            a('s_and_b32 s53, s2, 7\ns_lshr_b32 s57, s63, 1\ns_lshl1_add_u32 s53, s53, s57')
            a(f's_lshl_b32 s57, s53, 7\ns_mul_i32 s48, s52, {56*2048}\ns_add_u32 s48, s48, s57')
            a('s_lshl_b32 s49, s52, 17\ns_add_u32 s49, s49, s57')
            a(f's_lshl_b32 s50, s53, 15\ns_lshl_b32 s51, s52, 7\ns_add_u32 s50, s50, s51\ns_add_u32 s50, s50, {SF}')
            a(f'v_lshrrev_b32 v20, 3, v1\nv_lshlrev_b32 v21, 4, v8\nv_mul_u32_u24 v6, {7*2048}, v20\nv_add_u32 v6, v6, v21')
            a('v_and_b32 v7, 3, v20\nv_lshl_add_u32 v7, v7, 12, v21\nv_and_b32 v20, 4, v20\nv_lshl_add_u32 v7, v20, 14, v7')
        def tail_setup2():
            a('v_and_b32 v10, 6, v1\nv_lshlrev_b32 v10, 12, v10\nv_and_b32 v20, 8, v1\nv_lshl_add_u32 v10, v20, 2, v10\nv_and_b32 v21, 1, v1\nv_lshl_add_u32 v10, v21, 6, v10\nv_lshl_add_u32 v10, v2, 4, v10')
            a(f'v_mov_b32 v21, {OOB}\nv_cmp_gt_u32 vcc, 32, v1\nv_cndmask_b32 v10, v21, v10, vcc')
            a(f'v_and_b32 v21, 1, v1\nv_lshl_add_u32 v11, v2, 1, v21\nv_lshlrev_b32 v11, 4, v11\ns_lshl_b32 s59, s59, 7\ns_add_u32 s59, s59, {L_H}\nv_add_u32 v11, s59, v11')
            a(f'v_mul_u32_u24 v5, 528, v8\nv_lshl_add_u32 v5, v2, 7, v5\nv_lshl_add_u32 v5, v20, 3, v5')
            a(f's_mul_i32 s57, s63, 4224\ns_add_u32 s57, s57, {L_OR}\nv_add_u32 v5, s57, v5')
            a(f's_lshl_b32 s57, s63, 2\ns_add_u32 s57, s57, {L_F+F3}\nv_mov_b32 v13, s57\nv_mov_b32 v12, 0xfffff000')
            get_tag(20); tags(12, SH12)
        def factor():
            ldsdata('mlw' + sfx, [f'ds_read_b32 v{S+w}, v17 offset:{64*w}' for w in range(4)], range(S, S+4), 20, 0)
            a(f'v_max3_f32 v20, v{S}, v{S+1}, v{S+2}\nv_max_f32 v20, v20, v{S+3}\nv_mul_f32 v20, s58, v20\nv_ceil_f32 v20, v20')
            a('v_fma_f32 v18, v18, s58, -v20\nv_exp_f32 v18, v18')
        def o_out():
            stamp(5)
            for q in range(4):
                for k in range(4): a(f'v_mul_f32 v{O+4*q+k}, v18, v{O+4*q+k}')
                a(f'ds_write_b128 v5, v[{O+4*q}:{O+4*q+3}] offset:{16*q}')
        donep = [0]
        def pvw(pr):
            pv_pair(pr); donep[0] = pr + 1
            if pr == 3:
                for k in range(4): a(f'v_mov_b32 v{V+28+k}, 0')
            if pr == 15: o_out()
        work = [(None, tail_setup1), (None, tail_setup2)] + [(('v', 2*pr+1), (lambda pr=pr: pvw(pr))) for pr in range(16)]
        work.insert(len(work) - 2, (None, factor))
        seq = [('v', i) for i in range(vn[0], 32)] + [('d', i) for i in range(7)] + [('o', i) for i in range(8)]
        def force(n):
            while donep[0] < n:
                t, f = work.pop(0)
                if t: a.vm_wait(t)
                f()
        def run_seq(seq, work, f3):
            for kind, i in seq:
                if kind == 'v': vload()
                elif kind == 'd':
                    force(4)
                    if i == 0: stamp(4)
                    pace()
                    a(f'buffer_load_dwordx4 v[{V+4*i}:{V+4*i+3}], v6, s[36:39], s48 offen offset:{2048*(i & 1)}{PL["d"]}', tag=('d', i))
                    if i & 1: a('s_add_u32 s48, s48, 4096')
                    if i == f3: a('ds_write_b32 v13, v13')
                else:
                    force(8)
                    if i & 3: a('s_add_u32 s49, s49, 16384')
                    elif i: a('s_sub_u32 s49, s49, 49152')
                    pace()
                    a(f'buffer_load_dwordx4 v[{V+32+4*i}:{V+32+4*i+3}], v7, s[32:35], s49 offen offset:{2048*(i >> 2)}{PL["o"]}', tag=('o', i))
                    if i + 7 == f3: a('ds_write_b32 v13, v13')
                st = [t for t in a.vm if isinstance(t, tuple)]
                landed = st[:len(st) - sched(W[0], n_ld[0]-1)]
                k = 0
                while work and k < 2 and (work[0][0] is None or work[0][0] in landed):
                    work.pop(0)[1](); k += 1
        if sfx and defer:
            run_seq(seq[:-defer], work, 14 - defer)
            force(16)
            a(f'v_mov_b32 v24, {L_F+F3E}')
            ldsdata('rdone', ['ds_read_b128 v[20:23], v24'], range(20, 24), 25, 1)
            W[0] = ((0, 15),)
            run_seq(seq[-defer:], work, None)
        else:
            run_seq(seq, work, f3at)
            force(16)
    vm0, n0 = list(a.vm), n_ld[0]
    a('s_cmp_ge_u32 s2, 224\ns_cbranch_scc1 L_light')
    phase1(1)
    rest('', nB1)
    a('L_varend:')
    a(f'v_mov_b32 v24, {L_F}')
    ldsdata('hw', [f'ds_read_b128 v[{X}:{X+3}], v11', f'ds_read_b32 v{X+4}, v24 offset:{FM}'], range(X, X+5), 20, 1)
    a(f'v_readfirstlane_b32 s92, v{X+4}')
    a.vm_wait(('d', 6))
    for f in tile_ops(V, X, True): f()
    fold_cols(D, 20)
    for u in range(4):
        a.vm_wait(('o', 2*u+1))
        perms_pair(V+32+8*u, V+32+8*u+4, TB, u)
    stamp(8)
    ldsdata('ow', [f'ds_read_b128 v[{X}:{X+3}], v11 offset:{L_O16-L_H}'], range(X, X+4), 24, 0)
    for j in (0, 6, 1, 7, 2, 4, 3, 5):
        a(f'v_mfma_f32_16x16x32_bf16 v[{D+4*j}:{D+4*j+3}], v[{X}:{X+3}], v[{TB+4*j}:{TB+4*j+3}], 0')
    fold_cols(D, 20, '0x1')
    a('s_cmp_eq_u32 s92, 1')
    put_tag(20, 4, 12, 12)
    if 's' in local:
        a('s_cbranch_scc0 L_sfar\nbuffer_store_dwordx4 v[20:23], v10, s[28:31], s50 offen' + sfpol)
        stamp(6)
        finish()
        a('L_sfar:')
    a('buffer_store_dwordx4 v[20:23], v10, s[28:31], s50 offen sc1')
    stamp(6)
    finish()

    a('L_light:')
    a.vm = list(vm0); n_ld[0] = n0; W[0] = winL; nF[0] = nF1L
    phase1(0)
    rest('L', nB1L)
    a('s_branch L_varend')

    def optags():
        a('v_mov_b32 v20, s96\nv_and_b32 v19, 7, v1\nv_lshlrev_b32 v21, 2, v19\nv_alignbit_b32 v20, v20, v20, v21')
        for d in range(4): a(f'v_alignbit_b32 v{28+d}, v20, v20, {d}\nv_and_b32 v{28+d}, 0x10001, v{28+d}')
    a('L_H0:')
    t = 20
    a('s_barrier')
    zstamps(); consts()
    a('s_waitcnt vmcnt(1)')
    for d in range(8):
        a(f'v_lshlrev_b32 v{t+2*d}, 16, v{XS+d}\nv_and_b32 v{t+2*d+1}, 0xffff0000, v{XS+d}')
    a(f'v_add_f32 v8, v{t}, v{t+1}')
    for k in range(2, 16): a(f'v_add_f32 v8, v8, v{t+k}')
    allred_row('v_add_f32', 8); allred_xrow('v_add_f32', 8, 9)
    a('v_mul_f32 v8, 0x3a800000, v8')
    a(f'v_sub_f32 v9, v{t}, v8\nv_mul_f32 v10, v9, v9')
    for k in range(1, 16): a(f'v_sub_f32 v9, v{t+k}, v8\nv_fmac_f32 v10, v9, v9')
    allred_row('v_add_f32', 10); allred_xrow('v_add_f32', 10, 9)
    a('v_mul_f32 v10, 0x3a800000, v10')
    rbf(8); rbf(10)
    a('v_add_f32 v10, 0x3727c5ac, v10'); rbf(10)
    a('v_sqrt_f32 v10, v10'); rbf(10)
    a('v_rcp_f32 v11, v10\nv_fma_f32 v12, -v10, v11, 1.0\nv_fma_f32 v11, v12, v11, v11')
    for d in range(8):
        r = t + 2*d
        a(f'v_sub_f32 v{r}, v{r}, v8\nv_sub_f32 v{r+1}, v{r+1}, v8')
        a(f'v_cvt_pk_bf16_f32 v{r}, v{r}, v{r+1}\nv_and_b32 v{r+1}, 0xffff0000, v{r}\nv_lshlrev_b32 v{r}, 16, v{r}')
        a(f'v_mul_f32 v{r}, v{r}, v11\nv_mul_f32 v{r+1}, v{r+1}, v11\nv_cvt_pk_bf16_f32 v{XS+d}, v{r}, v{r+1}')
    a(f'v_add_u32 v7, {L_X}, v7\nds_write_b128 v7, v[{XS}:{XS+3}]\nds_write_b128 v7, v[{XS+4}:{XS+7}] offset:16')
    a(f's_waitcnt vmcnt(0)\nv_xor_b32 v14, {0xffffffff ^ CMIX}, v14\nv_mov_b32 v13, {L_F}')
    a(f'ds_write_b32 v13, v14 offset:{FT}\nv_readfirstlane_b32 s96, v14\ns_waitcnt lgkmcnt(0)')
    a(f'ds_write_b32 v13, v13 offset:{F0}')
    stamp(2)
    a(f's_getreg_b32 s52, hwreg(HW_REG_XCC_ID, 0, 4)\ns_xor_b32 s53, s96, 0x5a5a5a50\ns_and_b32 s53, s53, -16\ns_or_b32 s53, s53, s52')
    a(f's_and_b32 s54, s2, 7\ns_lshl_b32 s54, s54, 8\ns_and_b32 s55, s2, -8\ns_add_u32 s54, s54, s55\ns_add_u32 s54, s54, {XC}')
    a(f'v_mov_b32 v15, s53\nv_mov_b32 v9, {OOB}\nv_cmp_ne_u32 vcc, 0, v1\nv_cndmask_b32 v9, 0, v9, vcc')
    a('buffer_store_dwordx2 v[14:15], v9, s[28:31], s54 offen sc1')
    a('v_and_b32 v18, 7, v1')
    a(f's_mul_i32 s52, s55, 56\ns_add_u32 s52, s52, {HF}')
    ldswait('sdone', L_MLW, 4)
    a('v_min_u32 v12, 6, v18\nv_lshrrev_b32 v10, 3, v1\nv_mul_u32_u24 v10, 7, v10\nv_add_lshl_u32 v10, v10, v12, 2')
    a('v_lshlrev_b32 v12, 2, v10\nv_and_b32 v12, 16, v12\nv_bfe_u32 v12, s96, v12, 16')
    gather('hg', [(f'buffer_load_dword v{32+n}, v10, s[28:31], s52 offen offset:{224*n} sc1', 32+n, 1) for n in range(2)], 20, lambda k, d: 'v12', '0xffff', 22, sleep, 'instr')
    a(f'v_cmp_ne_u32 vcc, 7, v18\nv_and_b32 v10, 62, v1\nv_lshlrev_b32 v10, 1, v10\nv_add_u32 v10, {L_H}, v10')
    for n in range(2):
        a(f'v_cndmask_b32 v{20+n}, 0, v{20+n}, vcc')
        a(f'v_mov_b32_dpp v22, v{20+n} quad_perm:[0,0,2,2] row_mask:0xf bank_mask:0xf\nv_mov_b32_dpp v23, v{20+n} quad_perm:[1,1,3,3] row_mask:0xf bank_mask:0xf')
        a(f'v_perm_b32 v{20+n}, v23, v22, s61\nds_write_b32 v10, v{20+n} offset:{128*n}')
    stamp(4)
    a('s_cmp_ge_u32 s2, 224\ns_cbranch_scc1 L_ofin\nL_H0b:')
    a(f's_and_b32 s50, s2, -8\ns_lshl_b32 s50, s50, 9\ns_add_u32 s50, s50, {OG}')
    tags(12, SH12)
    a(f'v_and_b32 v10, 31, v1\nv_lshlrev_b32 v10, 3, v10\nv_lshrrev_b32 v8, 5, v1\nv_lshl_add_u32 v10, v8, 2, v10\nv_add_u32 v10, {L_O16}, v10')
    a(f'v_lshlrev_b32 v8, 4, v1\nv_mov_b32 v16, {L_F+F3}')
    ldsdata('f3', ['ds_read_b128 v[40:43], v16'], range(40, 44), 22, 2)
    stamp(3)
    gather('og', [(f'buffer_load_dwordx4 v[{64+4*n}:{67+4*n}], v8, s[28:31], s50 offen offset:{1024*n} sc1', 64+4*n, 4) for n in range(4)],
           40, lambda k, d: f's{97+d}', '0xfff', 22, slF, mO)
    for k in (0, 2): a(f'v_pk_add_f32 v[{40+k}:{41+k}], v[{40+k}:{41+k}], v[{44+k}:{45+k}]\nv_pk_add_f32 v[{48+k}:{49+k}], v[{48+k}:{49+k}], v[{52+k}:{53+k}]')
    for k in (0, 2): a(f'v_pk_add_f32 v[{40+k}:{41+k}], v[{40+k}:{41+k}], v[{48+k}:{49+k}]')
    a('v_permlane32_swap_b32 v40, v42\nv_permlane32_swap_b32 v41, v43\nv_pk_add_f32 v[40:41], v[40:41], v[42:43]')
    a('v_cvt_pk_bf16_f32 v20, v40, v41\nds_write_b32 v10, v20')
    stamp(8)
    a('s_waitcnt lgkmcnt(0)')
    finish()

    a('L_H123:')
    if tlbpf:
        a('s_cmp_lg_u32 s3, 1\ns_cbranch_scc1 L_notlb')
        a('s_cmp_lt_u32 s2, 224\ns_cbranch_scc1 L_notlb')
        a('s_lshr_b32 s52, s2, 3\ns_and_b32 s52, s52, 3\ns_and_b32 s55, s2, 7\ns_lshl_b32 s53, s55, 15')
        a('s_lshl_b32 s54, s52, 23\ns_add_u32 s54, s54, s53\nv_lshlrev_b32 v3, 21, v1\nv_add_u32 v3, s54, v3')
        a(f's_lshl2_add_u32 s54, s55, s52\ns_mul_i32 s54, s54, {32*7168}\nv_mov_b32 v4, s54')
        a('s_lshl_b32 s54, s52, 21\ns_add_u32 s54, s54, s53\nv_mov_b32 v5, s54\nv_mov_b32 v7, 0')
        a('s_mov_b64 exec, 15\ns_waitcnt lgkmcnt(0)')
        for k, (v, p) in enumerate(((4, 16), (4, 18), (3, 6), (3, 8), (5, 20), (5, 12), (7, 22))):
            a(f'global_load_dword v{240+k}, v{v}, s[{p}:{p+1}]')
        a('s_mov_b64 exec, -1\nL_notlb:')
    if stamps: a('s_mov_b64 s[66:67], 0')
    a('v_mov_b32 v16, -1\nv_mov_b32 v17, -1\nv_mov_b32 v18, -1\nv_mov_b32 v19, -1')
    a(f'v_lshlrev_b32 v13, 4, v1\nv_add_u32 v12, {L_Q}, v13')
    for k in range(7): a(f'ds_write_b128 v12, v[16:19] offset:{1024*k}')
    assert L_Q + 7168 == L_END
    a('s_waitcnt lgkmcnt(0)\ns_barrier')
    zstamps(); consts()
    a(f'v_mov_b32 v9, {OOB}\nv_mov_b32 v15, 0xffffff00\nv_lshrrev_b32 v2, 4, v1\nv_and_b32 v3, 15, v1\nv_and_b32 v14, 7, v1')
    a('s_and_b32 s55, s2, 7\ns_lshr_b32 s54, s2, 3')
    ldswait('f0h', L_F+F0, 4)
    get_tag(11); tags(8, (0, 8, 16, 24))
    a('s_cmp_eq_u32 s3, 2\ns_cbranch_scc1 L_H2')
    a('s_cmp_eq_u32 s3, 3\ns_cbranch_scc1 L_H3')
    L, C = 128, 144
    a(f's_lshl_b32 s59, s54, 12\ns_add_u32 s59, s59, {QP}\ns_lshl_b32 s58, s55, 9\ns_add_u32 s58, s58, s59')
    a(f'v_add_u32 v10, {L_QR}, v13\nv_cmp_gt_u32 vcc, 32, v1\nv_cndmask_b32 v8, v9, v13, vcc')
    def sum_halves(r):
        for k in range(4): a(f'v_mov_b32 v{r+4+k}, v{r+k}')
        for k in range(4): a(f'v_permlane32_swap_b32 v{r+4+k}, v{r+k}')
        for k in range(4): a(f'v_add_f32 v{r+k}, v{r+k}, v{r+4+k}')
    ldsdata('qr', [f'ds_read_b128 v[{L+4*n}:{L+4*n+3}], v10 offset:{1024*n}' for n in range(2)], range(L, L+8), 20, 2)
    for k in range(4): a(f'v_add_f32 v{L+k}, v{L+k}, v{L+4+k}')
    sum_halves(L)
    put_tag(L, 4, 8, 15)
    a(f'buffer_store_dwordx4 v[{L}:{L+3}], v8, s[28:31], s58 offen sc1')
    stamp(2)
    a('s_and_b32 s88, s96, 0xffff\ns_lshr_b32 s89, s96, 16')
    if lightred:
        a('s_cmp_lt_u32 s2, 224\ns_cbranch_scc1 L_qf0')
        a(f's_sub_u32 s53, s2, 224\ns_lshl_b32 s59, s53, 12\ns_add_u32 s59, s59, {QP}')
    else:
        a('s_xor_b32 s53, s54, s2\ns_and_b32 s53, s53, 7\ns_cbranch_scc1 L_qf0\ns_mov_b32 s53, s54')
    a(f's_lshl_b32 s57, s53, 9\ns_add_u32 s57, s57, {QF}\ns_waitcnt vmcnt(0)')
    gather('qp', [(f'buffer_load_dwordx4 v[{L+4*n}:{L+4*n+3}], v13, s[28:31], s59 offen offset:{1024*n} sc1', L+4*n, 4) for n in range(4)],
           C, lambda k, d: f's{97+d}', '0xff', 20, 4, 'instr')
    for k in range(4): a(f'v_add_f32 v{C+k}, v{C+k}, v{C+4+k}\nv_add_f32 v{C+8+k}, v{C+8+k}, v{C+12+k}')
    for k in range(4): a(f'v_add_f32 v{C+k}, v{C+k}, v{C+8+k}')
    sum_halves(C)
    for k in range(4): a(f'v_cvt_pk_bf16_f32 v{20+k}, v{C+k}, v{C+k}\nv_lshlrev_b32 v{20+k}, 16, v{20+k}\nv_or_b32 v{20+k}, s{88+(k & 1)}, v{20+k}')
    a('buffer_store_dwordx4 v[20:23], v8, s[28:31], s57 offen sc1')
    stamp(10)
    a('s_waitcnt vmcnt(0)')
    a('L_qf0:')
    ldswait('f1', L_F+F1, 2)
    stamp(3)
    gj('s52', None, None)
    a(f's_lshl_b32 s52, s52, 12\ns_add_u32 s52, s52, {QF}')
    gather('qf', [(f'buffer_load_dwordx4 v[{L+4*n}:{L+4*n+3}], v13, s[28:31], s52 offen offset:{1024*n} sc1', L+4*n, 4) for n in range(4)],
           C, lambda k, d: f's{88+(d & 1)}', '0xffff', 20, sleep, 'lane')
    a(f'v_lshrrev_b32 v11, 5, v1\nv_lshlrev_b32 v11, 1, v11\nv_add_lshl_u32 v11, v11, v1, 3\nv_add_u32 v11, {L_Q}, v11')
    for n in range(4):
        a(f'v_perm_b32 v{20+2*n}, v{C+4*n+1}, v{C+4*n}, s61\nv_perm_b32 v{21+2*n}, v{C+4*n+3}, v{C+4*n+2}, s61')
        a(f'ds_write_b64 v11, v[{20+2*n}:{21+2*n}] offset:{544*n}')
    stamp(4)
    a('s_cmp_ge_u32 s2, 224\ns_cbranch_scc1 L_ofin\nL_H1b:')
    srd(40, 22, 2048); srd(44, 4, 2048)
    a('s_lshl_b32 s50, s55, 5\ns_add_u32 s50, s50, s54\ns_lshl_b32 s55, s50, 3')
    a(f's_lshr_b32 s51, s50, 2\ns_lshl_b32 s51, s51, 13\ns_and_b32 s50, s50, 3\ns_lshl_b32 s50, s50, 5\ns_add_u32 s50, s50, s51\ns_add_u32 s50, s50, {SF}\ns_add_u32 s51, s50, 4096')
    a('v_lshrrev_b32 v10, 1, v1\nv_lshlrev_b32 v10, 7, v10\nv_and_b32 v12, 1, v1\nv_lshl_add_u32 v10, v12, 4, v10\nv_lshlrev_b32 v12, 1, v2')
    a('buffer_load_ushort v15, v12, s[44:47], s55 offen')
    a('v_cmp_eq_u32 vcc, 0, v3\nv_cndmask_b32 v13, v9, v12, vcc')
    a(f's_xor_b32 s57, s96, {CMIX}\nv_mov_b32 v17, s57\nv_or_b32 v18, s2, v1\nv_mov_b32 v19, {EP}\nv_cmp_eq_u32 vcc, 0, v18\nv_cndmask_b32 v16, v9, v19, vcc')
    tags(12, SH12)
    a('s_waitcnt vmcnt(0)\nv_lshlrev_b32 v15, 16, v15')
    ldswait('o16', L_O16, 1)
    if dlS: a(f's_sleep {dlS}')
    stamp(8)
    sl = [f'buffer_load_dwordx4 v[{36+4*n}:{39+4*n}], v10, s[28:31], s{50+n} offen sc1' for n in range(2)]
    if not pipe:
        gather('sg', [(sl[n], 36+4*n, 4) for n in range(2)], 28, lambda k, d: f's{97+d}', '0xfff', 20, slS, mS)
    else:
        a(sl[0] + '\n' + sl[1] + '\ns_mov_b64 s[88:89], -1\ns_mov_b64 s[90:91], -1')
        a('L_sg:')
        a(f's_or_b64 exec, s[88:89], 1\n{sl[0]}\ns_or_b64 exec, s[90:91], 1\n{sl[1]}\ns_mov_b64 exec, -1')
        a(f's_waitcnt vmcnt({2*pipe})')
        for n in range(2):
            for d in range(4): a(f'v_xor_b32 v{28+4*n+d}, s{97+d}, v{36+4*n+d}')
            orall(range(28+4*n, 32+4*n), 20+n)
            a(f'v_and_b32 v{20+n}, 0xfff, v{20+n}\nv_cmp_ne_u32 s[{88+2*n}:{89+2*n}], 0, v{20+n}')
        a('s_or_b64 vcc, s[88:89], s[90:91]\ns_cbranch_scc0 L_sg_ok')
        again('L_sg')
        a('L_sg_ok:')
    stamp(9)
    a('v_pk_add_f32 v[28:29], v[28:29], v[32:33]\nv_pk_add_f32 v[30:31], v[30:31], v[34:35]')
    red4(28); allred_row('v_add_f32', 28, (8, 4, 2))
    rbf(28)
    a('v_mul_f32 v25, 0xbfb8aa3b, v28\nv_exp_f32 v25, v25\nv_add_f32 v25, 1.0, v25\nv_rcp_f32 v25, v25\nv_mul_f32 v24, v28, v25')
    rbf(24)
    a('v_mul_f32_dpp v28, v24, v28 quad_perm:[1,1,3,3] row_mask:0xf bank_mask:0xf'); rbf(28)
    a('v_add_f32 v28, v28, v15\nv_cvt_pk_bf16_f32 v28, v28, v28')
    a('buffer_store_short v28, v13, s[40:43], s55 offen' + outpol)
    a('buffer_store_dword v17, v16, s[28:31], 0 offen sc1')
    finish()
    a('L_H2:')
    a('s_cmp_ge_u32 s2, 224\ns_cbranch_scc1 L_nogu')
    for sr, sh in ((56, shg), (57, shu)):
        a(f's_add_u32 s{sr}, s54, {sh}\ns_cmp_ge_u32 s{sr}, 28\ns_cselect_b32 s59, 28, 0\ns_sub_u32 s{sr}, s{sr}, s59\ns_lshl_b32 s{sr}, s{sr}, 13')
    a(f's_add_u32 s57, s57, {4096-512}\ns_lshl_b32 s58, s55, 9')
    a('v_mov_b32 v8, s57\nv_mov_b32 v10, s56\nv_cmp_gt_u32 vcc, 32, v1\nv_cndmask_b32 v8, v8, v10, vcc\nv_add_u32 v8, v8, v13')
    a(f'v_and_b32 v10, 32, v1\nv_lshl_add_u32 v10, v10, 4, v13\nv_add_u32 v10, {L_GR}, v10')
    ldsdata('gr', [f'ds_read_b128 v[{L+4*n}:{L+4*n+3}], v10 offset:{512*n}' for n in range(2)], range(L, L+8), 20, 4)
    for k in range(4): a(f'v_add_f32 v{L+k}, v{L+k}, v{L+4+k}')
    put_tag(L, 4, 8, 15)
    assert GU == 0
    a(f'buffer_store_dwordx4 v[{L}:{L+3}], v8, s[28:31], s58 offen sc1')
    stamp(2)
    a('s_branch L_hget')
    a('L_nogu:')
    a('s_cmp_ge_u32 s2, 252\ns_cbranch_scc1 L_hget')
    a(f's_sub_u32 s53, s2, 224\ns_lshl_b32 s56, s53, 13\ns_add_u32 s57, s56, 4096\ns_lshl_b32 s58, s53, 9\ns_add_u32 s58, s58, {HF}')
    a('s_and_b32 s88, s96, 0xffff\ns_lshr_b32 s89, s96, 16\nv_cmp_gt_u32 vcc, 32, v1\nv_cndmask_b32 v8, v9, v13, vcc')
    ldswait('qseen', L_Q, 4)
    C2 = 160
    gather('gug', [(f'buffer_load_dwordx4 v[{L+4*n}:{L+4*n+3}], v13, s[28:31], s{56+(n >> 2)} offen offset:{1024*(n & 3)} sc1', L+4*n, 4) for n in range(8)],
           C2, lambda k, d: f's{97+d}', '0xff', 20, 4, 'instr')
    for b in (C2, C2+16):
        for k in range(4): a(f'v_add_f32 v{b+k}, v{b+k}, v{b+4+k}\nv_add_f32 v{b+8+k}, v{b+8+k}, v{b+12+k}')
        for k in range(4): a(f'v_add_f32 v{b+k}, v{b+k}, v{b+8+k}')
        sum_halves(b)
    for k in range(4):
        rbf(C2+k); rbf(C2+16+k); silu(C2+k, 24); rbf(C2+k)
        a(f'v_mul_f32 v{20+k}, v{C2+k}, v{C2+16+k}'); rbf(20+k)
        a(f'v_or_b32 v{20+k}, s{88+(k & 1)}, v{20+k}')
    a('buffer_store_dwordx4 v[20:23], v8, s[28:31], s58 offen sc1')
    stamp(10)
    a('L_hget:')
    a('s_branch L_H23')
    a('L_H3:')
    a(f's_getreg_b32 s52, hwreg(HW_REG_XCC_ID, 0, 4)\ns_xor_b32 s53, s96, 0x5a5a5a50\ns_and_b32 s53, s53, -16')
    a(f's_lshl_b32 s56, s55, 8\ns_add_u32 s56, s56, {XC}\nv_and_b32 v10, 31, v1\nv_lshlrev_b32 v10, 3, v10')
    ldswait('qseen3', L_Q, 4)
    gather('xc', [('buffer_load_dwordx2 v[32:33], v10, s[28:31], s56 offen sc1', 32, 2)], 20, lambda k, d: ('s96', 's53')[d], '-1', 22, sleep, 'instr',
           pre=lambda c0, t: a(f'v_and_b32 v{t}, -16, v{c0+1}\nv_or_b32 v{t}, v{t}, v{c0}'))
    a(f'v_cmp_ne_u32 vcc, s52, v21\ns_cmp_eq_u64 vcc, 0\ns_cselect_b32 s52, 1, 0\nv_mov_b32 v10, {L_F}\nv_mov_b32 v11, s52\nds_write_b32 v10, v11 offset:{FM}')
    a(f'v_lshlrev_b32 v10, 3, v14\nv_add_u32 v11, {L_MLW}, v10\ns_mov_b32 s88, {LOG2E}\ns_lshr_b32 s90, s96, 16\ns_and_b32 s97, s96, 0xfff')
    gj('s52', 's53', 's89')
    a(f's_lshl_b32 s89, s52, 6\ns_add_u32 s89, s89, s53\ns_lshl_b32 s89, s89, 6\ns_add_u32 s89, s89, {ML}\nv_cmp_gt_u32 vcc, 8, v1\nv_cndmask_b32 v10, v9, v10, vcc\nv_mov_b32 v15, 0xfffff000')
    ldsdata('mlp_w', [f'ds_read_b64 v[{20+2*w}:{21+2*w}], v11 offset:{64*w}' for w in range(4)], range(20, 28), 28, 4)
    a('v_max3_f32 v28, v20, v22, v24\nv_max_f32 v28, v28, v26\nv_mul_f32 v30, s88, v28\nv_ceil_f32 v30, v30')
    for w in range(4): a(f'v_fma_f32 v{20+2*w}, v{20+2*w}, s88, -v30\nv_exp_f32 v{20+2*w}, v{20+2*w}')
    a('v_mul_f32 v33, v20, v21\nv_fmac_f32 v33, v22, v23\nv_fmac_f32 v33, v24, v25\nv_fmac_f32 v33, v26, v27')
    put_tag(33, 1, 12, 15)
    a('v_or_b32 v32, s90, v28')
    a('buffer_store_dwordx2 v[32:33], v10, s[28:31], s89 offen sc1')
    stamp(4)
    a('L_H23:')
    optags()
    a(f'v_mul_u32_u24 v6, 528, v2\nv_lshl_add_u32 v6, v3, 5, v6')
    a(f's_and_b32 s59, s3, 1\ns_mul_i32 s57, s59, 2112\ns_add_u32 s57, s57, {L_OR}\nv_add_u32 v6, s57, v6')
    a(f's_and_b32 s52, s54, 3\ns_lshl2_add_u32 s57, s55, s52\ns_lshl1_add_u32 s57, s57, s59\ns_lshl_b32 s57, s57, 13')
    a(f's_lshr_b32 s56, s54, 2\ns_lshl_b32 s56, s56, 7\ns_add_u32 s56, s56, s57\ns_add_u32 s56, s56, {OP}')
    a('v_lshrrev_b32 v7, 3, v1\nv_lshlrev_b32 v7, 10, v7\nv_lshl_add_u32 v7, v19, 4, v7')
    ldswait('fm', L_F+FM, 4)
    a('v_readfirstlane_b32 s92, v11')
    a('v_mov_b32 v15, 0xfffefffe')
    R = 64
    for w in range(4):
        r = R + (8 if w else 0)
        ldsdata(f'orw{w}', [f'ds_read_b128 v[{r+4*e}:{r+4*e+3}], v6 offset:{4224*w+16*e}' for e in range(2)], range(r, r+8), 20, 0 if w else 1)
        if w:
            for k in range(0, 8, 2): a(f'v_pk_add_f32 v[{R+k}:{R+k+1}], v[{R+k}:{R+k+1}], v[{R+8+k}:{R+9+k}]')
    for k in range(8): a(f'v_add_u32 v{R+k}, 0x10000, v{R+k}')
    for k in range(4): a(f'v_perm_b32 v{20+k}, v{R+2*k+1}, v{R+2*k}, s61')
    for k in range(4): a(f'v_and_or_b32 v{20+k}, v{20+k}, v15, v{28+k}')
    if 'o' in local:
        a('s_cmp_eq_u32 s92, 1\ns_cbranch_scc0 L_ofar\nbuffer_store_dwordx4 v[20:23], v7, s[28:31], s56 offen' + oppol + '\ns_branch L_odone\nL_ofar:')
    a('buffer_store_dwordx4 v[20:23], v7, s[28:31], s56 offen sc1\nL_odone:')
    stamp(6)
    a('s_cmp_ge_u32 s2, 224\ns_cbranch_scc1 L_ofin')
    finish()
    a('L_ofin:')
    MR, MC, SEL, G, GC, DD = 32, 36, 40, 64, 80, 96
    optags()
    a('s_and_b32 s88, s2, 7\ns_bfe_u32 s89, s2, 0x20003')
    a(f's_lshl_b32 s57, s89, 12\ns_lshl_b32 s53, s3, 4\ns_add_u32 s57, s57, s53\ns_add_u32 s57, s57, {ML}')
    a('v_add_u32 v7, s88, v19\nv_and_b32 v7, 7, v7\nv_and_b32 v8, 56, v1\nv_add_lshl_u32 v7, v7, v8, 6')
    a(f's_lshr_b32 s90, s96, 16\ns_and_b32 s91, s96, 0xfff\ns_mov_b32 s58, {LOG2E}')
    a('v_and_b32 v10, 1, v1\nv_lshlrev_b32 v10, 4, v10\nv_mov_b32 v11, 0xffff\nv_lshlrev_b32 v10, v10, v11\nv_bfe_u32 v11, v1, 1, 2')
    for d in range(4): a(f'v_cmp_eq_u32 vcc, {d}, v11\nv_cndmask_b32 v{24+d}, 0, v10, vcc')
    a(f's_lshl2_add_u32 s48, s88, s89\ns_lshl2_add_u32 s48, s48, s3\ns_lshl_b32 s48, s48, 12\ns_add_u32 s48, s48, {OP}')
    a(f's_lshl2_add_u32 s56, s89, s3\ns_lshl_b32 s56, s56, 13\ns_lshl_b32 s53, s88, 9\ns_add_u32 s56, s56, s53\ns_add_u32 s56, s56, {OG}')
    a('v_and_b32 v10, 8, v1\nv_lshlrev_b32 v10, 9, v10\nv_and_b32 v11, 32, v1\nv_lshl_add_u32 v10, v11, 3, v10\nv_lshl_add_u32 v10, v19, 5, v10\nv_and_b32 v11, 16, v1\nv_add_u32 v10, v10, v11')
    a(f'v_lshlrev_b32 v8, 4, v1\nv_mov_b32 v14, {L_F+F3}\nv_mov_b32 v18, 0xfffff000')
    tags(12, SH12)
    if mlgate == 'or': ldswait('orl', L_OR, 4)
    else: ldsdata('f3m', ['ds_read_b128 v[56:59], v14'], range(56, 60), 22, 4)
    def mlpre(c0, t):
        a(f'v_or_b32 v{t}, v{c0+1}, v{c0+3}\nv_and_b32 v{t}, 0xfff, v{t}\nv_or3_b32 v{t}, v{t}, v{c0}, v{c0+2}')
    gather('mlg', [(f'buffer_load_dwordx4 v[{MR}:{MR+3}], v7, s[28:31], s57 offen sc1', MR, 4)], MC, lambda k, d: f's{90+(d & 1)}', '0xffff', 22, 4, 'lane', pre=mlpre)
    for e in range(2):
        m, l = MC + 2*e, MC + 2*e + 1
        a(f'v_mul_f32 v{m}, s58, v{m}\nv_ceil_f32 v{m}, v{m}\nv_mov_b32 v22, v{m}')
        allred_row('v_max_f32', 22); allred_xrow('v_max_f32', 22, 23)
        a(f'v_sub_f32 v{m}, v{m}, v22\nv_cvt_i32_f32 v{m}, v{m}\nv_ldexp_f32 v{m}, 1.0, v{m}\nv_mul_f32 v{l}, v{m}, v{l}')
        allred_row('v_add_f32', l); allred_xrow('v_add_f32', l, 23)
        a(f'v_perm_b32 v{m}, v{m}, v{m}, s61')
        a(f'v_mov_b32_dpp v22, v{m} row_newbcast:0 row_mask:0xf bank_mask:0x3\nv_mov_b32_dpp v22, v{m} row_newbcast:8 row_mask:0xf bank_mask:0xc')
        for d in range(4): a(f'v_and_b32 v{SEL+4*e+d}, v22, v{24+d}')
    a(f'v_mov_b32_dpp v{MC+1}, v{MC+3} quad_perm:[0,1,2,3] row_mask:0xf bank_mask:0xc\nv_rcp_f32 v17, v{MC+1}')
    stamp(9)
    ldsdata('f3o', ['ds_read_b128 v[56:59], v14'], range(56, 60), 22, 2)
    if stamps: a('s_cmp_lt_u32 s3, 2\ns_cbranch_scc1 L_ns1'); stamp(3); a('L_ns1:')
    def omfma(n, c0):
        a(f'v_mfma_f32_16x16x32_bf16 v[{DD+4*n}:{DD+4*n+3}], v[{SEL+4*(n >> 1)}:{SEL+4*(n >> 1)+3}], v[{c0}:{c0+3}], 0')
    gather('ol', [(f'buffer_load_dwordx4 v[{G+4*n}:{G+4*n+3}], v8, s[28:31], s48 offen offset:{1024*n} sc1', G+4*n, 4) for n in range(4)],
           GC, lambda k, d: f'v{28+d}', '0x10001', 48, slO, 'all', each=omfma)
    stamp(8)
    for k in range(4): a(f'v_permlane32_swap_b32 v{DD+k}, v{DD+4+k}')
    for k in range(4): a(f'v_permlane32_swap_b32 v{DD+8+k}, v{DD+12+k}')
    for k in range(4): a(f'v_add_f32_dpp v{20+k}, v{DD+4+k}, v{DD+k} row_ror:8 row_mask:0xf bank_mask:0x3')
    for k in range(4): a(f'v_add_f32_dpp v{20+k}, v{DD+8+k}, v{DD+12+k} row_ror:8 row_mask:0xf bank_mask:0xc')
    for k in range(4): a(f'v_mul_f32 v{20+k}, v17, v{20+k}')
    put_tag(20, 4, 12, 18)
    a('buffer_store_dwordx4 v[20:23], v10, s[28:31], s56 offen sc1')
    if clean:
        for n in range(4): a(f'buffer_store_dwordx4 v[{G+4*n}:{G+4*n+3}], v8, s[28:31], s48 offen offset:{1024*n} sc1')
    a(f's_lshl_b32 s53, s3, 2\nv_add_u32 v14, s53, v14\nds_write_b32 v14, v14 offset:{F3E-F3}')
    stamp(11)
    a('s_cmp_eq_u32 s3, 0\ns_cbranch_scc1 L_H0b')
    a('s_cmp_eq_u32 s3, 1\ns_cbranch_scc1 L_H1b')
    a('s_waitcnt lgkmcnt(0)')
    finish()
    a('L_exit:\ns_endpgm')
    a.raw(f'''.section .rodata,"a"
.p2align 6
.amdhsa_kernel {KNAME}
  .amdhsa_next_free_vgpr 256
  .amdhsa_next_free_sgpr 102
  .amdhsa_accum_offset 256
  .amdhsa_group_segment_fixed_size 0
  .amdhsa_kernarg_size 96
  .amdhsa_user_sgpr_count 2
  .amdhsa_user_sgpr_kernarg_segment_ptr 1
  .amdhsa_system_sgpr_workgroup_id_x 1
  .amdhsa_float_denorm_mode_32 3
.end_amdhsa_kernel''')
    return a.text()

if __name__ == '__main__':
    out = sys.argv[1]
    kw = eval('dict(' + (sys.argv[2] if len(sys.argv) > 2 else '') + ')')
    open(out, 'w').write(gen(**kw))
```

```python
import sys
sys.path.insert(0, 'work')
from asmlib import Asm

KNAME = 'recurrent_scan__gqa_block_cached__swiglu_ffn__decode_kernel'
MB = 1 << 20
GU = 0
HF = 229376
EP = 245760
XC = 249856
SF, OP = 262144, 786432
ML, QF, QP, OG, WSEND = 1310720, 1327104, 1343488, 1474560, 1605632
STAMPS = 8 * MB
L_K, L_OR, L_X, L_Q = 0, 131072, 147968, 150016
L_MLW, L_H, L_O16, L_F, L_QR, L_GR, L_END = 152192, 152448, 152704, 152960, 153088, 155136, 157184
F0, F1, FM, FT, F3, F3E, FO, F4 = 0, 4, 8, 12, 16, 32, 48, 56
OOB = 0x40000000
LOG2E = 0x3fb8aa3b
SCALE = 0x3db504f3
SPIN = 400000
CMIX = 0x9e3779b9
SH12 = (0, 12, 20, 6)

HEADER = open('recurrent_scan__gqa_block_cached__swiglu_ffn__decode.s.ref').read().split('; Override')[0]

def gen(plain='', win=((0,6),), winL=((0,6),(50,7)), nB1L=14, nF1L=31, defer=3, hold=(4,7,1), bias=None, ormode=1, noretry=(), nXC=12, xctries=5, mlgate='f3', pipe=False, slS=0, slO=0, dlS=0, slF=0, local='soqg', oppol='', sfpol='', clean=False, outpol='', mO='union', mS='union', nX=18, nB1=10, nF1=28, og16=True, slH=1, shu=2, shg=1, f3at=14, rot=0, kv='slab', grot=0, lightred=True, f3e=None,
        pref=True, tlbpf=False, stamps=False, sleep=8, abl=()):
    a0 = Asm()
    cur = ['']
    class A:
        def __call__(self, text, tag=None):
            for t in text.split('\n'):
                if 'sc1' in t and t.startswith('buffer_store') and 'st' in abl and tag is None: continue
                if 'sc1' in t and t.startswith('buffer_load') and ('ld' in abl or cur[0] in abl): continue
                if 'nowork' in abl and t.startswith(('v_perm', 'v_mfma', 'v_cvt_pk', 'v_exp', 'v_mul_f32', 'v_sub_f32', 'v_add_f32', 'v_mov_b32_dpp', 'v_max3_f32')): continue
                if 'nolds' in abl and t.startswith('s_cbranch_vccz'): t = t.replace('s_cbranch_vccz', 's_branch')
                if 'nobar' in abl and t.startswith('s_barrier'): continue
                if 'nohelp' in abl and t.startswith('s_setprio 2'): t = 's_endpgm'
                a0(t, tag)
        def __getattr__(self, n): return getattr(a0, n)
        def __setattr__(self, n, v): setattr(a0, n, v)
    a = A()
    PL = {k: ('' if k in plain else ' nt') for k in 'qgkvdo'}
    def sched(sc, i): return [w for (st, w) in sc if st <= i][-1]
    def stamp(k):
        if stamps: a(f's_memrealtime s[{64+2*k}:{65+2*k}]')
    def srd(d, p, size):
        a(f's_mov_b32 s{d}, s{p}\ns_mov_b32 s{d+1}, s{p+1}\ns_mov_b32 s{d+2}, {size}\ns_mov_b32 s{d+3}, 0x20000')
    def allred_row(op, v, steps=(8, 4, 2, 1)):
        for r in steps: a(f'{op}_dpp v{v}, v{v}, v{v} row_ror:{r} row_mask:0xf bank_mask:0xf')
    def allred_xrow(op, v, t):
        a(f'v_mov_b32 v{t}, v{v}\nv_permlane16_swap_b32 v{t}, v{v}\n{op} v{v}, v{v}, v{t}')
        a(f'v_mov_b32 v{t}, v{v}\nv_permlane32_swap_b32 v{t}, v{v}\n{op} v{v}, v{v}, v{t}')
    def rbf(v):
        a(f'v_cvt_pk_bf16_f32 v{v}, v{v}, v{v}\nv_lshlrev_b32 v{v}, 16, v{v}')
    def perms_pair(La, Lb, TB, u):
        for d in range(4):
            a(f'v_perm_b32 v{TB+4*(2*d)+u}, v{Lb+d}, v{La+d}, s60')
            a(f'v_perm_b32 v{TB+4*(2*d+1)+u}, v{Lb+d}, v{La+d}, s61')
    def tree(op2, op3, regs, t):
        regs = list(regs)
        if len(regs) == 2:
            a(f'{op2} v{t}, v{regs[0]}, v{regs[1]}'); return
        a(f'{op3} v{t}, v{regs[0]}, v{regs[1]}, v{regs[2]}')
        regs = regs[3:]
        while len(regs) >= 2:
            a(f'{op3} v{t}, v{t}, v{regs[0]}, v{regs[1]}'); regs = regs[2:]
        if regs: a(f'{op2} v{t}, v{t}, v{regs[0]}')
    def umax(regs, t): tree('v_max_u32', 'v_max3_u32', regs, t)
    def orall(regs, t): tree('v_or_b32', 'v_or3_b32', regs, t)
    def again(lbl): a(f's_sub_u32 s62, s62, 1\ns_cmp_gt_i32 s62, 0\ns_cbranch_scc1 {lbl}')
    def retry(lbl_loop, lbl_done, slp):
        a(f's_cbranch_vccz {lbl_done}')
        if slp: a(f's_sleep {slp}')
        again(lbl_loop)
        a(f'{lbl_done}:')
    def gather(name, loads, clean, tag, mask, tmp, slp, mode, first=True, each=None, pre=None, onfail=None):
        n = len(loads)
        cur[0] = name
        if first:
            for t, _, _ in loads: a(t)
        a(f'L_{name}:')
        tk = []; c0 = clean
        for k, (_, r, c) in enumerate(loads):
            if k == 0 or (first and each): a(f's_waitcnt vmcnt({n-1-k if (first and each) else 0})')
            for d in range(c): a(f'v_xor_b32 v{c0+d}, {tag(k, d)}, v{r+d}')
            if pre: pre(c0, tmp+k); tk.append(tmp+k)
            elif c > 1: orall(range(c0, c0+c), tmp+k); tk.append(tmp+k)
            else: tk.append(c0)
            if each: each(k, c0)
            c0 += c
        if n > 1: orall(tk, tmp+n)
        a(f'v_and_b32 v{tmp+n}, {mask}, v{tmp+n if n > 1 else tk[0]}\nv_cmp_ne_u32 vcc, 0, v{tmp+n}')
        a(f's_branch L_{name}_ok' if (abl or name in noretry) else f's_cbranch_vccz L_{name}_ok')
        if slp: a(f's_sleep {slp}')
        if onfail: onfail()
        if mode == 'all':
            for t, _, _ in loads: a(t)
            again(f'L_{name}')
            a(f's_waitcnt vmcnt(0)\nL_{name}_ok:')
            return
        if mode == 'union':
            a('s_mov_b64 exec, vcc')
            for t, _, _ in loads: a(t)
            a('s_mov_b64 exec, -1')
        for k, (t, _, _) in enumerate(loads if mode != 'union' else ()):
            if n > 1 or mode == 'line8':
                a(f'v_and_b32 v{tmp+n}, {mask}, v{tk[k]}')
                if mode == 'line8':
                    for m in ('quad_perm:[1,0,3,2]', 'quad_perm:[2,3,0,1]', 'row_half_mirror'):
                        a(f'v_or_b32_dpp v{tmp+n}, v{tmp+n}, v{tmp+n} {m} row_mask:0xf bank_mask:0xf')
                a(f'v_cmp_ne_u32 vcc, 0, v{tmp+n}\ns_cbranch_vccz L_{name}_s{k}')
            if mode == 'instr': a(t)
            else: a(f's_mov_b64 exec, vcc\n{t}\ns_mov_b64 exec, -1')
            if n > 1 or mode == 'line8': a(f'L_{name}_s{k}:')
        a('s_waitcnt vmcnt(0)')
        again(f'L_{name}')
        a(f'L_{name}_ok:')
    def ldswait(name, addr, slp):
        a(f'v_mov_b32 v12, {addr}\nL_{name}:')
        a(f'ds_read_b32 v11, v12\ns_waitcnt lgkmcnt(0)\nv_cmp_eq_u32 vcc, -1, v11')
        retry(f'L_{name}', f'L_{name}_ok', slp)
    def ldsdata(name, reads, regs, t, slp):
        a(f'L_{name}:')
        for r in reads: a(r)
        a('s_waitcnt lgkmcnt(0)')
        umax(regs, t)
        a(f'v_cmp_eq_u32 vcc, -1, v{t}')
        retry(f'L_{name}', f'L_{name}_ok', slp)
    def get_tag(t):
        a(f'v_mov_b32 v{t}, {L_F}\nds_read_b32 v{t}, v{t} offset:{FT}\ns_waitcnt lgkmcnt(0)\nv_readfirstlane_b32 s96, v{t}')
    def tags(bits, shifts, s0=97):
        for d, sh in enumerate(shifts): a(f's_bfe_u32 s{s0+d}, s96, {(bits << 16) | sh}')
    def put_tag(r, n, bits, vm, s0=97):
        for d in range(n): a(f'v_add_u32 v{r+d}, {1 << (bits-1)}, v{r+d}')
        for d in range(n): a(f'v_and_or_b32 v{r+d}, v{r+d}, v{vm}, s{s0+d}')
    def silu(v, t):
        a(f'v_mul_f32 v{t}, 0xbfb8aa3b, v{v}\nv_exp_f32 v{t}, v{t}\nv_add_f32 v{t}, 1.0, v{t}\nv_rcp_f32 v{t}, v{t}\nv_mul_f32 v{v}, v{v}, v{t}')
    def fold_cols(D, o, rm='0xf'):
        for k in range(4):
            a(f'v_add_f32_dpp v{o+k}, v{D+4*k+1}, v{D+4*k} row_ror:8 row_mask:{rm} bank_mask:0x3')
            a(f'v_add_f32_dpp v{o+((k+2)&3)}, v{D+4*(((k+2)&3)+4)}, v{D+4*(((k+2)&3)+4)+1} row_ror:8 row_mask:{rm} bank_mask:0xc')
    def red4(r):
        a(f'v_permlane32_swap_b32 v{r}, v{r+2}\nv_permlane32_swap_b32 v{r+1}, v{r+3}')
        a(f'v_add_f32 v{r}, v{r}, v{r+2}\nv_add_f32 v{r+1}, v{r+1}, v{r+3}')
        a(f'v_permlane16_swap_b32 v{r}, v{r+1}\nv_add_f32 v{r}, v{r}, v{r+1}')
    def rb_of(d, t):
        a(f's_lshr_b32 {d}, s2, 5\ns_lshl_b32 {d}, {d}, 3\ns_and_b32 {t}, s2, 7\ns_add_u32 {d}, {d}, {t}')
    def gj(g, j, t):
        a(f's_bfe_u32 {g}, s2, 0x20003')
        if j: rb_of(j, t)
    def qjob(head, kq, t):
        a(f's_bfe_u32 {t}, s2, 0x20003\ns_add_u32 {head}, s2, {t}\ns_and_b32 {head}, {head}, 7\ns_lshl3_add_u32 {head}, {t}, {head}\ns_lshr_b32 {kq}, s2, 5')
    def gujob(jb, blk, mat, kq, t, lbl):
        a(f's_cmp_ge_u32 s2, 192\ns_cbranch_scc1 L_{lbl}a')
        a(f's_lshr_b32 {t}, s2, 6\ns_add_u32 {t}, {t}, {jb}\ns_cmp_eq_u32 {t}, 3\ns_cselect_b32 {t}, 0, {t}')
        a(f's_add_u32 {blk}, s2, {t}\ns_and_b32 {blk}, {blk}, 7\ns_lshl3_add_u32 {blk}, {t}, {blk}\ns_mov_b32 {mat}, {jb}\ns_bfe_u32 {kq}, s2, 0x30003')
        a(f's_branch L_{lbl}b\nL_{lbl}a:')
        a(f's_bfe_u32 {blk}, s2, 0x20001\ns_add_u32 {blk}, {blk}, 24\ns_and_b32 {mat}, s2, 1\ns_bfe_u32 {kq}, s2, 0x20003\ns_lshl1_add_u32 {kq}, {kq}, {jb}')
        a(f'L_{lbl}b:')
    def lstore(key, name, text):
        if key in local: a(f's_cmp_eq_u32 s92, 1\ns_cbranch_scc0 L_{name}f\n{text}\ns_branch L_{name}d\nL_{name}f:')
        a(f'{text} sc1\nL_{name}d:')
    def consts():
        a(f's_mov_b32 s60, 0x05040100\ns_mov_b32 s61, 0x07060302\ns_mov_b32 s62, {SPIN}')
        srd(28, 26, WSEND)
    def finish():
        if stamps:
            stamp(7)
            a('s_waitcnt lgkmcnt(0)')
            a('s_lshl_b32 s52, s2, 3\ns_add_u32 s52, s52, s3\ns_lshl_b32 s52, s52, 7')
            a(f's_add_u32 s54, s26, {STAMPS}\ns_addc_u32 s55, s27, 0')
            a('v_mov_b32 v2, s52\ns_mov_b64 exec, 1')
            for k in range(6):
                a(f'v_mov_b32 v4, s{64+4*k}\nv_mov_b32 v5, s{65+4*k}\nv_mov_b32 v6, s{66+4*k}\nv_mov_b32 v7, s{67+4*k}')
                a(f'global_store_dwordx4 v2, v[4:7], s[54:55] offset:{16*k}\ns_nop 1')
        a('s_endpgm')
    def zstamps():
        if stamps:
            for k in range(68, 88, 2): a(f's_mov_b64 s[{k}:{k+1}], 0')

    a.raw(HEADER.rstrip())
    a.raw(f'; @launch grid=(256,1,1) block=(512,1,1) lds={L_END}')
    a.raw('.amdgcn_target "amdgcn-amd-amdhsa--gfx950"\n.text')
    a.raw(f'.globl {KNAME}\n.p2align 8\n.type {KNAME},@function\n{KNAME}:')
    stamp(0)
    a('s_load_dwordx16 s[4:19], s[0:1], 0\ns_load_dwordx8 s[20:27], s[0:1], 64')
    a('v_lshrrev_b32 v2, 6, v0\nv_and_b32 v1, 63, v0\nv_readfirstlane_b32 s3, v2')
    a('s_cmp_ge_u32 s2, 256\ns_cbranch_scc1 L_exit')
    a('s_cmp_ge_u32 s3, 4\ns_cbranch_scc1 L_S')
    XS = 40
    a('s_setprio 2')
    a('s_cmp_lg_u32 s3, 0\ns_cbranch_scc1 L_H123')
    if pref:
        a(f's_getpc_b64 s[56:57]\nL_pc:\ns_lshr_b32 s58, s2, 3\ns_mulk_i32 s58, 1024\nv_and_b32 v2, 7, v1\nv_lshl_add_u32 v2, v2, 7, s58')
        a(f'v_min_u32 v2, L_exit-L_pc, v2\nglobal_load_dword v255, v2, s[56:57]')
    a(f'v_lshlrev_b32 v7, 5, v1\nv_mov_b32 v8, {EP}\ns_waitcnt lgkmcnt(0)')
    a(f'global_load_dwordx4 v[{XS}:{XS+3}], v7, s[4:5]\nglobal_load_dwordx4 v[{XS+4}:{XS+7}], v7, s[4:5] offset:16')
    a('global_load_dword v14, v8, s[26:27] sc1')
    stamp(1)
    a('s_branch L_H0')

    a('L_S:')
    V, TB, PO, O, S, PP, QL, QH, D, X = 128, 96, 64, 48, 32, 24, 64, 80, 64, 32
    n_ld = [0]
    W = [win]; nF = [nF1]
    def pace():
        a.vm_window(sched(W[0], n_ld[0])); n_ld[0] += 1
    a('s_sub_u32 s63, s3, 4')
    qjob('s54', 's55', 's53')
    a('s_lshl2_add_u32 s53, s55, s63\ns_lshl_b32 s52, s53, 10\ns_add_u32 s52, s52, s54\ns_lshl_b32 s52, s52, 8')
    a('v_lshrrev_b32 v2, 4, v1\nv_and_b32 v3, 15, v1\nv_lshlrev_b32 v4, 4, v3\nv_lshl_add_u32 v6, v2, 16, v4')
    a('s_movk_i32 s57, 0x2000\ns_lshl_b32 s34, s57, 10\ns_mov_b32 s35, 0x20000\ns_waitcnt lgkmcnt(0)\ns_mov_b64 s[32:33], s[10:11]')
    a.vm_reset()
    def s_setup():
        stamp(1)
        a('v_lshlrev_b32 v9, 4, v1')
        a(f's_mul_i32 s58, s63, 4224\ns_add_u32 s58, s58, {L_OR}\nv_add_u32 v10, s58, v9')
        for k in range(4): a(f'v_mov_b32 v{20+k}, -1')
        for k in range(4): a(f'ds_write_b128 v10, v[20:23] offset:{1024*k}')
        a('ds_write_b128 v10, v[20:23] offset:3200')
        zstamps(); consts()
        a('s_lshr_b32 s51, s63, 1')
        gujob('s51', 's58', 's56', 's55', 's59', 'gjs')
        a(f's_cmp_eq_u32 s56, 1\ns_cselect_b64 s[36:37], s[18:19], s[16:17]\ns_mov_b32 s38, {1024*7168}\ns_mov_b32 s39, 0x20000\ns_lshl_b32 s58, s58, 8')
        a(f's_and_b32 s59, s63, 1\ns_lshl1_add_u32 s59, s55, s59\ns_mul_i32 s50, s59, {64*7168}\ns_add_u32 s50, s50, s58')
        a(f'v_mul_u32_u24 v7, {8*7168}, v2\nv_add_u32 v7, v7, v4')
        a(f's_lshl_b32 s53, s53, 6\ns_add_u32 s53, s53, {L_X}\nv_lshl_add_u32 v12, v2, 4, s53')
        a(f's_lshl_b32 s59, s59, 7\ns_add_u32 s59, s59, {L_X}\nv_lshl_add_u32 v13, v2, 4, s59')
        a(f's_lshl_b32 s59, s63, 9\ns_add_u32 s59, s59, {L_QR}\nv_lshlrev_b32 v14, 5, v3\nv_lshl_add_u32 v14, v2, 4, v14\nv_add_u32 v14, s59, v14')
        a('s_waitcnt lgkmcnt(0)\ns_barrier')
    for i in range(8):
        pace()
        a(f'buffer_load_dwordx4 v[{V+4*i}:{V+4*i+3}], v6, s[32:35], s52 offen{PL["q"]}', tag=('q', i))
        if i < 7: a('s_add_u32 s52, s52, s57')
        if i == min(sched(win, 0), 8) - 1: s_setup()
    def kv_setup():
        gj('s52', 's53', 's54')
        if kv != 'slab':
            for T in range(4):
                a(f's_mul_i32 s56, s53, {4*kv}\ns_add_u32 s56, s56, s63\ns_add_u32 s56, s56, {4*(T % kv) + (T // kv)*256*kv}\ns_lshl_b32 s54, s52, 10\ns_add_u32 s56, s56, s54\ns_lshl_b32 s{88+T}, s56, 13')
        a('s_lshl2_add_u32 s53, s53, s63\ns_lshl_b32 s54, s52, 10')
        for T in range(4 if kv == 'slab' else 0):
            a(f's_add_u32 s56, s53, {rot*T}\ns_and_b32 s56, s56, 255\ns_add_u32 s56, s56, s54')
            a(f's_mul_i32 s59, s52, {grot}\ns_add_u32 s59, s59, {T}\ns_and_b32 s59, s59, 3\ns_lshl_b32 s59, s59, 8\ns_add_u32 s56, s56, s59\ns_lshl_b32 s{88+T}, s56, 13')
        a('s_lshl_b32 s55, s63, 15')
        a('v_lshlrev_b32 v5, 6, v2\nv_xor_b32 v5, v5, v4\nv_lshl_add_u32 v16, v2, 8, v5')
        for k in range(1, 4): a(f'v_xor_b32 v{16+k}, {16*k}, v16')
        srd(40, 6, 32*MB); srd(44, 8, 32*MB)
    kv_setup()
    def tile_ops(Lb, Xr, first):
        ops = [(lambda u=u: perms_pair(Lb+8*u, Lb+8*u+4, TB, u)) for u in range(4)]
        def mf():
            for j in range(8):
                c = '0' if first else f'v[{D+4*j}:{D+4*j+3}]'
                a(f'v_mfma_f32_16x16x32_bf16 v[{D+4*j}:{D+4*j+3}], v[{Xr}:{Xr+3}], v[{TB+4*j}:{TB+4*j+3}], {c}')
        return ops + [mf]
    def pack128(off):
        for k in range(4): a(f'v_mov_b32 v{20+k}, v{D+4*k}')
        for k in range(4): a(f'v_mov_b32_dpp v{20+k}, v{D+16+4*k} quad_perm:[0,1,2,3] row_mask:0x2 bank_mask:0xf')
        a(f's_mov_b32 exec_hi, 0\nds_write_b128 v14, v[20:23] offset:{off}\ns_mov_b32 exec_hi, -1')
    def xwait(name, gu):
        a(f'v_mov_b32 v20, {L_F}\nL_{name}:\nds_read_b32 v21, v20 offset:{F0}\ns_waitcnt lgkmcnt(0)\nv_cmp_eq_u32 vcc, -1, v21')
        retry(f'L_{name}', f'L_{name}_ok', 1)
        a(f'ds_read_b128 v[{X}:{X+3}], v12')
        if gu: a(f'ds_read_b128 v[{X+4}:{X+7}], v13\nds_read_b128 v[{X+8}:{X+11}], v13 offset:64')
        a('s_waitcnt lgkmcnt(0)')
    def kload(i):
        if i % 4 == 0:
            a(f's_add_u32 m0, s55, {i*1024}\ns_add_u32 s56, s{88+(i >> 3)}, {(i & 4)*1024}')
        pace()
        a(f'buffer_load_dwordx4 v{16+(i & 3)}, s[40:43], s56 offen offset:{1024*(i & 3)}{PL["k"]} lds', tag=('k', i))
        if i == nF[0]: a(f'v_mov_b32 v20, {L_F}\nds_write_b32 v20, v20 offset:{F1}')
    KJ = 16
    def phase1(gu):
        seq = ([('g', i) for i in range(16)] if gu else []) + [('k', i) for i in range(KJ)]
        work = [(None, lambda: xwait('xw%d' % gu, gu))]
        work += [(('q', 7), f) for f in tile_ops(V, X, True)] + [(None, lambda: (pack128(0), stamp(10)))]
        if gu:
            work += [(('g', 7), f) for f in tile_ops(V+32, X+4, True)] + [(('g', 15), f) for f in tile_ops(V+64, X+8, False)]
            work += [(None, lambda: pack128(L_GR-L_QR))]
        for n, (kind, i) in enumerate(seq):
            if kind == 'g':
                pace()
                a(f'buffer_load_dwordx4 v[{V+32+4*i}:{V+32+4*i+3}], v7, s[36:39], s50 offen{PL["g"]}', tag=('g', i))
                if i < 15: a(f's_add_u32 s50, s50, {7168*25 if i == 7 else 7168}')
            else: kload(i)
            if n + 9 == nXC: a(f'v_mov_b32 v20, {L_F}\nds_write_b32 v20, v20 offset:{F4}')
            if n + 9 < nX: continue
            st = [t for t in a.vm if isinstance(t, tuple)]
            landed = st[:len(st) - sched(W[0], n_ld[0]-1)]
            k = 0
            while work and k < 3 and (work[0][0] is None or work[0][0] in landed):
                work.pop(0)[1](); k += 1
        assert not work
    def rest(sfx, nB1):
        a('v_and_b32 v14, 3, v3\nv_lshlrev_b32 v14, 2, v14\nv_lshrrev_b32 v15, 2, v3\nv_add_u32 v14, v14, v15\nv_lshlrev_b32 v14, 8, v14\nv_add_u32 v14, s55, v14')
        a('v_xor_b32 v15, v2, v3')
        for s in range(4):
            a(f'v_xor_b32 v{10+s}, {4*s}, v15\nv_lshl_add_u32 v{10+s}, v{10+s}, 4, v14')
        if bias and not sfx:
            w0 = W[0]
            st0 = (list(a.vm), n_ld[0])
            a('s_getreg_b32 s56, hwreg(HW_REG_XCC_ID, 0, 1)\ns_cmp_eq_u32 s56, 0\ns_cbranch_scc1 L_b0')
            W[0] = bias[0]
            for i in range(KJ, 32): kload(i)
            a('s_branch L_b1\nL_b0:')
            a.vm, n_ld[0] = list(st0[0]), st0[1]
            W[0] = bias[1]
            for i in range(KJ, 32): kload(i)
            W[0] = w0
            a('L_b1:')
        else:
            for i in range(KJ, 32): kload(i)
        a(f'v_and_b32 v8, 7, v1\nv_mul_u32_u24 v14, 272, v8\nv_lshl_add_u32 v14, v2, 4, v14\nv_add_u32 v14, {L_Q}, v14')
        a('v_cmp_gt_u32 vcc, 8, v3\nv_cndmask_b32 v15, 0, -1, vcc\nv_not_b32 v16, v15')
        a(f'v_lshlrev_b32 v17, 3, v8\nv_add_u32 v17, {L_MLW}, v17')
        vn = [0]
        def vload():
            if vn[0] == 32: return
            i = vn[0]; vn[0] += 1
            if i % 4 == 0: a(f's_add_u32 s56, s{88+(i >> 3)}, {(i & 4)*1024}')
            pace()
            a(f'buffer_load_dwordx4 v[{V+4*i}:{V+4*i+3}], v9, s[44:47], s56 offen offset:{1024*(i & 3)}{PL["v"]}', tag=('v', i))
        for i in range(nB1): vload()
        a.vm_wait(('k', 31))
        stamp(2)
        ldsdata('qw' + sfx, [f'ds_read_b128 v[{QL+4*s}:{QL+4*s+3}], v14 offset:{64*s}' for s in range(4)], range(QL, QL+16), 18, 1)
        stamp(3)
        units = [(p, hh, ts) for p in range(2) for hh in range(2) for ts in range(2)]
        def kreads(k):
            p, hh, ts = units[k]
            for s in range(4):
                r = TB + 16*(k & 1) + 4*s
                a(f'ds_read_b128 v[{r}:{r+3}], v{10+s} offset:{(2*p+ts)*8192 + hh*4096}')
        kreads(0); kreads(1)
        vload()
        for k in range(16): a(f'v_and_b32 v{QH+k}, v16, v{QL+k}\nv_and_b32 v{QL+k}, v15, v{QL+k}')
        for k in range(8):
            p, hh, ts = units[k]
            a(f's_waitcnt lgkmcnt({4 if k < 7 else 0})')
            d = S + 8*p + 4*hh
            for s in range(4):
                r = TB + 16*(k & 1) + 4*s; q = (QH if ts else QL) + 4*s
                c = '0' if (ts == 0 and s == 0) else f'v[{d}:{d+3}]'
                a(f'v_mfma_f32_16x16x32_bf16 v[{d}:{d+3}], v[{r}:{r+3}], v[{q}:{q+3}], {c}')
            if k + 2 < 8: kreads(k+2)
            if k in (1, 4, 7): vload()
        a(f's_mov_b32 s57, {SCALE}\ns_mov_b32 s58, {LOG2E}')
        for k in range(0, 16, 2):
            r = S + k
            a(f'v_cvt_pk_bf16_f32 v{r}, v{r}, v{r+1}\nv_and_b32 v{r+1}, 0xffff0000, v{r}\nv_lshlrev_b32 v{r}, 16, v{r}')
            a(f'v_mul_f32 v{r}, s57, v{r}\nv_mul_f32 v{r+1}, s57, v{r+1}')
            a(f'v_cvt_pk_bf16_f32 v{r}, v{r}, v{r+1}\nv_and_b32 v{r+1}, 0xffff0000, v{r}\nv_lshlrev_b32 v{r}, 16, v{r}')
        vload()
        tree('v_max_f32', 'v_max3_f32', range(S, S+16), 18)
        allred_row('v_max_f32', 18, (8,)); allred_xrow('v_max_f32', 18, 20)
        for k in range(16): a(f'v_sub_f32 v{S+k}, v{S+k}, v18\nv_mul_f32 v{S+k}, s58, v{S+k}')
        vload()
        for k in range(16): a(f'v_exp_f32 v{S+k}, v{S+k}')
        a(f'v_add_f32 v19, v{S}, v{S+1}')
        for k in range(2, 16): a(f'v_add_f32 v19, v19, v{S+k}')
        allred_row('v_add_f32', 19, (8,)); allred_xrow('v_add_f32', 19, 20)
        a('s_lshl_b32 s59, s63, 6\nv_add_u32 v20, s59, v17\nds_write_b64 v20, v[18:19]')
        vload()
        for k in range(8): a(f'v_cvt_pk_bf16_f32 v{PP+k}, v{S+2*k}, v{S+2*k+1}')
        stamp(11)
        for p in range(2):
            for k in range(4):
                src = PP + 4*p + k
                a(f'v_and_b32 v{PO+16*p+k}, v15, v{src}')
                a(f'v_mov_b32_dpp v{PO+16*p+4+k}, v{src} row_shr:8 row_mask:0xf bank_mask:0xf bound_ctrl:1')
                a(f'v_mov_b32_dpp v{PO+16*p+8+k}, v{src} row_shl:8 row_mask:0xf bank_mask:0xf bound_ctrl:1')
                a(f'v_and_b32 v{PO+16*p+12+k}, v16, v{src}')
        def pv_pair(pr):
            T, u = pr >> 2, pr & 3
            perms_pair(V+8*pr, V+8*pr+4, TB, u)
            if u == 3:
                for half in range(2):
                    for q in range(4):
                        c = '0' if (T == 0 and half == 0) else f'v[{O+4*q}:{O+4*q+3}]'
                        j = q + 4*half; b = PO + 8*T + 4*half
                        a(f'v_mfma_f32_16x16x32_bf16 v[{O+4*q}:{O+4*q+3}], v[{TB+4*j}:{TB+4*j+3}], v[{b}:{b+3}], {c}')
        def tail_setup1():
            srd(32, 12, 4096*2048); srd(36, 20, 3584*2048)
            a('s_lshr_b32 s52, s2, 3\ns_and_b32 s59, s63, 1\ns_lshl1_add_u32 s52, s52, s59')
            a('s_and_b32 s53, s2, 7\ns_lshr_b32 s57, s63, 1\ns_lshl1_add_u32 s53, s53, s57')
            a(f's_lshl_b32 s57, s53, 7\ns_mul_i32 s48, s52, {56*2048}\ns_add_u32 s48, s48, s57')
            a('s_lshl_b32 s49, s52, 17\ns_add_u32 s49, s49, s57')
            a(f's_lshl_b32 s50, s53, 15\ns_lshl_b32 s51, s52, 7\ns_add_u32 s50, s50, s51\ns_add_u32 s50, s50, {SF}')
            a(f'v_lshrrev_b32 v20, 3, v1\nv_lshlrev_b32 v21, 4, v8\nv_mul_u32_u24 v6, {7*2048}, v20\nv_add_u32 v6, v6, v21')
            a('v_and_b32 v7, 3, v20\nv_lshl_add_u32 v7, v7, 12, v21\nv_and_b32 v20, 4, v20\nv_lshl_add_u32 v7, v20, 14, v7')
        def tail_setup2():
            a('v_and_b32 v10, 6, v1\nv_lshlrev_b32 v10, 12, v10\nv_and_b32 v20, 8, v1\nv_lshl_add_u32 v10, v20, 2, v10\nv_and_b32 v21, 1, v1\nv_lshl_add_u32 v10, v21, 6, v10\nv_lshl_add_u32 v10, v2, 4, v10')
            a(f'v_mov_b32 v21, {OOB}\nv_cmp_gt_u32 vcc, 32, v1\nv_cndmask_b32 v10, v21, v10, vcc')
            a(f'v_and_b32 v21, 1, v1\nv_lshl_add_u32 v11, v2, 1, v21\nv_lshlrev_b32 v11, 4, v11\ns_lshl_b32 s59, s59, 7\ns_add_u32 s59, s59, {L_H}\nv_add_u32 v11, s59, v11')
            a(f'v_mul_u32_u24 v5, 528, v8\nv_lshl_add_u32 v5, v2, 7, v5\nv_lshl_add_u32 v5, v20, 3, v5')
            a(f's_mul_i32 s57, s63, 4224\ns_add_u32 s57, s57, {L_OR}\nv_add_u32 v5, s57, v5')
            a(f's_lshl_b32 s57, s63, 2\ns_add_u32 s57, s57, {L_F+F3}\nv_mov_b32 v13, s57\nv_mov_b32 v12, 0xfffff000')
            get_tag(20); tags(12, SH12)
        def last_pair():
            La, Lb, u, T = V+120, V+124, 3, 3
            def pm(j): a(f'v_perm_b32 v{TB+4*j+u}, v{Lb+(j >> 1)}, v{La+(j >> 1)}, s{60+(j & 1)}')
            def mf(q):
                for half in range(2):
                    j = q + 4*half; b = PO + 8*T + 4*half
                    a(f'v_mfma_f32_16x16x32_bf16 v[{O+4*q}:{O+4*q+3}], v[{TB+4*j}:{TB+4*j+3}], v[{b}:{b+3}], v[{O+4*q}:{O+4*q+3}]')
            def wr(q): a(f'ds_write_b128 v5, v[{O+4*q}:{O+4*q+3}] offset:{16*q}')
            stamp(5)
            pm(0); pm(4); pm(1); pm(5); mf(0); pm(2); pm(6); mf(1); pm(3); pm(7); mf(2); mf(3)
            for q in range(4): wr(q)
        donep = [0]
        def pvw(pr):
            if pr < 15: pv_pair(pr)
            else: last_pair()
            donep[0] = pr + 1
            if pr == 3:
                for k in range(4): a(f'v_mov_b32 v{V+28+k}, 0')
        work = [(None, tail_setup1), (None, tail_setup2)] + [(('v', 2*pr+1), (lambda pr=pr: pvw(pr))) for pr in range(16)]
        seq = [('v', i) for i in range(vn[0], 32)] + [('d', i) for i in range(7)] + [('o', i) for i in range(8)]
        def force(n):
            while donep[0] < n:
                t, f = work.pop(0)
                if t: a.vm_wait(t)
                f()
        def run_seq(seq, work, f3):
            for kind, i in seq:
                if kind == 'v': vload()
                elif kind == 'd':
                    force(4)
                    if i == 0: stamp(4)
                    pace()
                    a(f'buffer_load_dwordx4 v[{V+4*i}:{V+4*i+3}], v6, s[36:39], s48 offen offset:{2048*(i & 1)}{PL["d"]}', tag=('d', i))
                    if i & 1: a('s_add_u32 s48, s48, 4096')
                    if i == f3: a('ds_write_b32 v13, v13')
                else:
                    force(8)
                    if i & 3: a('s_add_u32 s49, s49, 16384')
                    elif i: a('s_sub_u32 s49, s49, 49152')
                    pace()
                    a(f'buffer_load_dwordx4 v[{V+32+4*i}:{V+32+4*i+3}], v7, s[32:35], s49 offen offset:{2048*(i >> 2)}{PL["o"]}', tag=('o', i))
                    if i + 7 == f3: a('ds_write_b32 v13, v13')
                st = [t for t in a.vm if isinstance(t, tuple)]
                landed = st[:len(st) - sched(W[0], n_ld[0]-1)]
                k = 0
                while work and k < 2 and (work[0][0] is None or work[0][0] in landed):
                    work.pop(0)[1](); k += 1
        if sfx and defer:
            run_seq(seq[:-defer], work, 14 - defer)
            force(16)
            a(f'v_mov_b32 v24, {L_F+F3E}')
            ldsdata('rdone', ['ds_read_b128 v[20:23], v24'], range(20, 24), 25, 1)
            W[0] = ((0, 15),)
            run_seq(seq[-defer:], work, None)
        elif hold and not sfx:
            nb, wa, wait = hold
            run_seq(seq[:nb-15], work, f3at)
            force(16)
            if wait:
                a(f'v_mov_b32 v24, {L_F+FO}')
                ldsdata('odone', ['ds_read_b64 v[20:21], v24'], range(20, 22), 25, slH)
            W[0] = ((0, wa),)
            run_seq(seq[nb-15:], work, f3at)
        else:
            run_seq(seq, work, f3at)
            force(16)
    vm0, n0 = list(a.vm), n_ld[0]
    a('s_cmp_ge_u32 s2, 224\ns_cbranch_scc1 L_light')
    phase1(1)
    rest('', nB1)
    a('L_varend:')
    a(f'v_mov_b32 v24, {L_F}')
    ldsdata('hw', [f'ds_read_b128 v[{X}:{X+3}], v11', f'ds_read_b32 v{X+4}, v24 offset:{FM}'], range(X, X+5), 20, 1)
    a(f'v_readfirstlane_b32 s92, v{X+4}')
    a.vm_wait(('d', 6))
    for f in tile_ops(V, X, True): f()
    fold_cols(D, 20)
    for u in range(4):
        a.vm_wait(('o', 2*u+1))
        perms_pair(V+32+8*u, V+32+8*u+4, TB, u)
    stamp(8)
    ldsdata('ow', [f'ds_read_b128 v[{X}:{X+3}], v11 offset:{L_O16-L_H}'], range(X, X+4), 24, 0)
    for j in (0, 6, 1, 7, 2, 4, 3, 5):
        a(f'v_mfma_f32_16x16x32_bf16 v[{D+4*j}:{D+4*j+3}], v[{X}:{X+3}], v[{TB+4*j}:{TB+4*j+3}], 0')
    fold_cols(D, 20, '0x1')
    a('s_cmp_eq_u32 s92, 1')
    put_tag(20, 4, 12, 12)
    if 's' in local:
        a('s_cbranch_scc0 L_sfar\nbuffer_store_dwordx4 v[20:23], v10, s[28:31], s50 offen' + sfpol)
        stamp(6)
        finish()
        a('L_sfar:')
    a('buffer_store_dwordx4 v[20:23], v10, s[28:31], s50 offen sc1')
    stamp(6)
    finish()

    a('L_light:')
    a.vm = list(vm0); n_ld[0] = n0; W[0] = winL; nF[0] = nF1L
    phase1(0)
    rest('L', nB1L)
    a('s_branch L_varend')

    def optags():
        a('v_mov_b32 v20, s96\nv_and_b32 v19, 7, v1\nv_lshlrev_b32 v21, 2, v19\nv_alignbit_b32 v20, v20, v20, v21')
        for d in range(4): a(f'v_alignbit_b32 v{28+d}, v20, v20, {d}\nv_and_b32 v{28+d}, 0x10001, v{28+d}')
    a('L_H0:')
    t = 20
    a('s_barrier')
    zstamps(); consts()
    a(f's_waitcnt vmcnt(0)\nv_xor_b32 v14, {0xffffffff ^ CMIX}, v14\nv_mov_b32 v13, {L_F}\nv_readfirstlane_b32 s96, v14')
    a(f's_getreg_b32 s52, hwreg(HW_REG_XCC_ID, 0, 4)\ns_xor_b32 s53, s96, 0x5a5a5a50\ns_and_b32 s53, s53, -16\ns_or_b32 s53, s53, s52')
    a(f's_and_b32 s54, s2, 7\ns_lshl_b32 s54, s54, 8\ns_and_b32 s55, s2, -8\ns_add_u32 s54, s54, s55\ns_add_u32 s54, s54, {XC}')
    a(f'v_mov_b32 v15, s53\nv_mov_b32 v16, {OOB}\nv_cmp_ne_u32 vcc, 0, v1\nv_cndmask_b32 v16, 0, v16, vcc')
    a('buffer_store_dwordx2 v[14:15], v16, s[28:31], s54 offen')
    for d in range(8):
        a(f'v_lshlrev_b32 v{t+2*d}, 16, v{XS+d}\nv_and_b32 v{t+2*d+1}, 0xffff0000, v{XS+d}')
    a(f'v_add_f32 v8, v{t}, v{t+1}')
    for k in range(2, 16): a(f'v_add_f32 v8, v8, v{t+k}')
    allred_row('v_add_f32', 8); allred_xrow('v_add_f32', 8, 9)
    a('v_mul_f32 v8, 0x3a800000, v8')
    a(f'v_sub_f32 v9, v{t}, v8\nv_mul_f32 v10, v9, v9')
    for k in range(1, 16): a(f'v_sub_f32 v9, v{t+k}, v8\nv_fmac_f32 v10, v9, v9')
    allred_row('v_add_f32', 10); allred_xrow('v_add_f32', 10, 9)
    a('v_mul_f32 v10, 0x3a800000, v10')
    rbf(8); rbf(10)
    a('v_add_f32 v10, 0x3727c5ac, v10'); rbf(10)
    a('v_sqrt_f32 v10, v10'); rbf(10)
    a('v_rcp_f32 v11, v10\nv_fma_f32 v12, -v10, v11, 1.0\nv_fma_f32 v11, v12, v11, v11')
    for d in range(8):
        r = t + 2*d
        a(f'v_sub_f32 v{r}, v{r}, v8\nv_sub_f32 v{r+1}, v{r+1}, v8')
        a(f'v_cvt_pk_bf16_f32 v{r}, v{r}, v{r+1}\nv_and_b32 v{r+1}, 0xffff0000, v{r}\nv_lshlrev_b32 v{r}, 16, v{r}')
        a(f'v_mul_f32 v{r}, v{r}, v11\nv_mul_f32 v{r+1}, v{r+1}, v11\nv_cvt_pk_bf16_f32 v{XS+d}, v{r}, v{r+1}')
    a(f'v_add_u32 v7, {L_X}, v7\nds_write_b128 v7, v[{XS}:{XS+3}]\nds_write_b128 v7, v[{XS+4}:{XS+7}] offset:16')
    a(f'ds_write_b32 v13, v14 offset:{FT}\ns_waitcnt lgkmcnt(0)')
    a(f'ds_write_b32 v13, v13 offset:{F0}')
    stamp(2)
    a('v_and_b32 v18, 7, v1')
    a(f's_mul_i32 s52, s55, 56\ns_add_u32 s52, s52, {HF}')
    ldswait('sdone', L_MLW, 4)
    a('v_min_u32 v12, 6, v18\nv_lshrrev_b32 v10, 3, v1\nv_mul_u32_u24 v10, 7, v10\nv_add_lshl_u32 v10, v10, v12, 2')
    a('v_lshlrev_b32 v12, 2, v10\nv_and_b32 v12, 16, v12\nv_bfe_u32 v12, s96, v12, 16')
    gather('hg', [(f'buffer_load_dword v{32+n}, v10, s[28:31], s52 offen offset:{224*n} sc1', 32+n, 1) for n in range(2)], 20, lambda k, d: 'v12', '0xffff', 22, sleep, 'instr')
    a(f'v_cmp_ne_u32 vcc, 7, v18\nv_and_b32 v10, 62, v1\nv_lshlrev_b32 v10, 1, v10\nv_add_u32 v10, {L_H}, v10')
    for n in range(2):
        a(f'v_cndmask_b32 v{20+n}, 0, v{20+n}, vcc')
        a(f'v_mov_b32_dpp v22, v{20+n} quad_perm:[0,0,2,2] row_mask:0xf bank_mask:0xf\nv_mov_b32_dpp v23, v{20+n} quad_perm:[1,1,3,3] row_mask:0xf bank_mask:0xf')
        a(f'v_perm_b32 v{20+n}, v23, v22, s61\nds_write_b32 v10, v{20+n} offset:{128*n}')
    stamp(4)
    a('s_cmp_ge_u32 s2, 224\ns_cbranch_scc1 L_ofin\nL_H0b:')
    if og16:
        a(f's_and_b32 s50, s2, -8\ns_lshl_b32 s50, s50, 8\ns_add_u32 s50, s50, {OG}')
        optags()
        a('v_and_b32 v10, 1, v1\nv_lshlrev_b32 v10, 4, v10\nv_mov_b32 v11, 0x3f80\nv_lshlrev_b32 v10, v10, v11\nv_bfe_u32 v11, v1, 1, 3')
        for d in range(4): a(f'v_cmp_eq_u32 vcc, {d}, v11\nv_cndmask_b32 v{24+d}, 0, v10, vcc')
        a(f'v_and_b32 v10, 15, v1\nv_lshlrev_b32 v10, 4, v10\nv_and_b32 v8, 16, v1\nv_lshrrev_b32 v8, 1, v8\nv_add_u32 v10, v10, v8\nv_add_u32 v10, {L_O16}, v10')
        a(f'v_lshlrev_b32 v8, 4, v1\nv_mov_b32 v16, {L_F+F3}')
        ldsdata('f3', ['ds_read_b128 v[40:43], v16'], range(40, 44), 22, 2)
        stamp(3)
        gather('og', [(f'buffer_load_dwordx4 v[{64+4*n}:{67+4*n}], v8, s[28:31], s50 offen offset:{1024*n} sc1', 64+4*n, 4) for n in range(2)],
               40, lambda k, d: f'v{28+d}', '0x10001', 20, slF, 'all',
               each=lambda n, c0: a(f'v_mfma_f32_16x16x32_bf16 v[48:51], v[24:27], v[{c0}:{c0+3}], {"v[48:51]" if n else "0"}'))
        a('s_mov_b32 exec_hi, 0\ns_nop 1\nv_cvt_pk_bf16_f32 v20, v48, v49\nv_cvt_pk_bf16_f32 v21, v50, v51\nds_write_b64 v10, v[20:21]')
    else:
        a(f's_and_b32 s50, s2, -8\ns_lshl_b32 s50, s50, 9\ns_add_u32 s50, s50, {OG}')
        tags(12, SH12)
        a(f'v_and_b32 v10, 31, v1\nv_lshlrev_b32 v10, 3, v10\nv_lshrrev_b32 v8, 5, v1\nv_lshl_add_u32 v10, v8, 2, v10\nv_add_u32 v10, {L_O16}, v10')
        a(f'v_lshlrev_b32 v8, 4, v1\nv_mov_b32 v16, {L_F+F3}')
        ldsdata('f3', ['ds_read_b128 v[40:43], v16'], range(40, 44), 22, 2)
        stamp(3)
        gather('og', [(f'buffer_load_dwordx4 v[{64+4*n}:{67+4*n}], v8, s[28:31], s50 offen offset:{1024*n} sc1', 64+4*n, 4) for n in range(4)],
               40, lambda k, d: f's{97+d}', '0xfff', 22, slF, mO)
        for k in (0, 2): a(f'v_pk_add_f32 v[{40+k}:{41+k}], v[{40+k}:{41+k}], v[{44+k}:{45+k}]\nv_pk_add_f32 v[{48+k}:{49+k}], v[{48+k}:{49+k}], v[{52+k}:{53+k}]')
        for k in (0, 2): a(f'v_pk_add_f32 v[{40+k}:{41+k}], v[{40+k}:{41+k}], v[{48+k}:{49+k}]')
        a('v_permlane32_swap_b32 v40, v42\nv_permlane32_swap_b32 v41, v43\nv_pk_add_f32 v[40:41], v[40:41], v[42:43]')
        a('v_cvt_pk_bf16_f32 v20, v40, v41\nds_write_b32 v10, v20')
    stamp(8)
    a('s_waitcnt lgkmcnt(0)')
    finish()

    a('L_H123:')
    if tlbpf:
        a('s_cmp_lg_u32 s3, 1\ns_cbranch_scc1 L_notlb')
        a('s_cmp_lt_u32 s2, 224\ns_cbranch_scc1 L_notlb')
        a('s_lshr_b32 s52, s2, 3\ns_and_b32 s52, s52, 3\ns_and_b32 s55, s2, 7\ns_lshl_b32 s53, s55, 15')
        a('s_lshl_b32 s54, s52, 23\ns_add_u32 s54, s54, s53\nv_lshlrev_b32 v3, 21, v1\nv_add_u32 v3, s54, v3')
        a(f's_lshl2_add_u32 s54, s55, s52\ns_mul_i32 s54, s54, {32*7168}\nv_mov_b32 v4, s54')
        a('s_lshl_b32 s54, s52, 21\ns_add_u32 s54, s54, s53\nv_mov_b32 v5, s54\nv_mov_b32 v7, 0')
        a('s_mov_b64 exec, 15\ns_waitcnt lgkmcnt(0)')
        for k, (v, p) in enumerate(((4, 16), (4, 18), (3, 6), (3, 8), (5, 20), (5, 12), (7, 22))):
            a(f'global_load_dword v{240+k}, v{v}, s[{p}:{p+1}]')
        a('s_mov_b64 exec, -1\nL_notlb:')
    if stamps: a('s_mov_b64 s[66:67], 0')
    a('v_mov_b32 v16, -1\nv_mov_b32 v17, -1\nv_mov_b32 v18, -1\nv_mov_b32 v19, -1')
    a(f'v_lshlrev_b32 v13, 4, v1\nv_add_u32 v12, {L_Q}, v13')
    for k in range(7): a(f'ds_write_b128 v12, v[16:19] offset:{1024*k}')
    assert L_Q + 7168 == L_END
    a('s_waitcnt lgkmcnt(0)\ns_barrier')
    zstamps(); consts()
    a(f'v_mov_b32 v9, {OOB}\nv_mov_b32 v15, 0xffffff00\nv_lshrrev_b32 v2, 4, v1\nv_and_b32 v3, 15, v1\nv_and_b32 v14, 7, v1')
    a('s_and_b32 s55, s2, 7\ns_lshr_b32 s54, s2, 3')
    ldswait('f0h', L_F+F0, 4)
    get_tag(11); tags(8, (0, 8, 16, 24))
    a('s_cmp_eq_u32 s3, 2\ns_cbranch_scc1 L_H2')
    a('s_cmp_eq_u32 s3, 3\ns_cbranch_scc1 L_H3')
    L, C = 128, 144
    qjob('s53', 's58', 's59')
    a(f's_lshl_b32 s59, s53, 12\ns_add_u32 s59, s59, {QP}\ns_lshl_b32 s58, s58, 9\ns_add_u32 s58, s58, s59')
    ldswait('fm1', L_F+FM, 2)
    a('v_readfirstlane_b32 s92, v11')
    a(f'v_add_u32 v10, {L_QR}, v13\nv_cmp_gt_u32 vcc, 32, v1\nv_cndmask_b32 v8, v9, v13, vcc')
    def sum_halves(r):
        for k in range(4): a(f'v_mov_b32 v{r+4+k}, v{r+k}')
        for k in range(4): a(f'v_permlane32_swap_b32 v{r+4+k}, v{r+k}')
        for k in range(4): a(f'v_add_f32 v{r+k}, v{r+k}, v{r+4+k}')
    ldsdata('qr', [f'ds_read_b128 v[{L+4*n}:{L+4*n+3}], v10 offset:{1024*n}' for n in range(2)], range(L, L+8), 20, 2)
    for k in range(4): a(f'v_add_f32 v{L+k}, v{L+k}, v{L+4+k}')
    sum_halves(L)
    put_tag(L, 4, 8, 15)
    lstore('q', 'stq', f'buffer_store_dwordx4 v[{L}:{L+3}], v8, s[28:31], s58 offen')
    stamp(2)
    a('s_and_b32 s88, s96, 0xffff\ns_lshr_b32 s89, s96, 16')
    a('s_cmp_lt_u32 s2, 224\ns_cbranch_scc1 L_qf0')
    a(f's_lshl_b32 s57, s53, 9\ns_add_u32 s57, s57, {QF}\ns_waitcnt vmcnt(0)')
    gather('qp', [(f'buffer_load_dwordx4 v[{L+4*n}:{L+4*n+3}], v13, s[28:31], s59 offen offset:{1024*n} sc1', L+4*n, 4) for n in range(4)],
           C, lambda k, d: f's{97+d}', '0xff', 20, 4, 'instr')
    for k in range(4): a(f'v_add_f32 v{C+k}, v{C+k}, v{C+4+k}\nv_add_f32 v{C+8+k}, v{C+8+k}, v{C+12+k}')
    for k in range(4): a(f'v_add_f32 v{C+k}, v{C+k}, v{C+8+k}')
    sum_halves(C)
    for k in range(4): a(f'v_cvt_pk_bf16_f32 v{20+k}, v{C+k}, v{C+k}\nv_lshlrev_b32 v{20+k}, 16, v{20+k}\nv_or_b32 v{20+k}, s{88+(k & 1)}, v{20+k}')
    a('buffer_store_dwordx4 v[20:23], v8, s[28:31], s57 offen sc1')
    stamp(10)
    a('s_waitcnt vmcnt(0)')
    a('L_qf0:')
    ldswait('f1', L_F+F1, 2)
    stamp(3)
    gj('s52', None, None)
    a(f's_lshl_b32 s52, s52, 12\ns_add_u32 s52, s52, {QF}')
    gather('qf', [(f'buffer_load_dwordx4 v[{L+4*n}:{L+4*n+3}], v13, s[28:31], s52 offen offset:{1024*n} sc1', L+4*n, 4) for n in range(4)],
           C, lambda k, d: f's{88+(d & 1)}', '0xffff', 20, sleep, 'lane')
    a(f'v_lshrrev_b32 v11, 5, v1\nv_lshlrev_b32 v11, 1, v11\nv_add_lshl_u32 v11, v11, v1, 3\nv_add_u32 v11, {L_Q}, v11')
    for n in range(4):
        a(f'v_perm_b32 v{20+2*n}, v{C+4*n+1}, v{C+4*n}, s61\nv_perm_b32 v{21+2*n}, v{C+4*n+3}, v{C+4*n+2}, s61')
        a(f'ds_write_b64 v11, v[{20+2*n}:{21+2*n}] offset:{544*n}')
    stamp(4)
    a('s_cmp_ge_u32 s2, 224\ns_cbranch_scc1 L_ofin\nL_H1b:')
    srd(40, 22, 2048); srd(44, 4, 2048)
    a('s_lshl_b32 s50, s55, 5\ns_add_u32 s50, s50, s54\ns_lshl_b32 s55, s50, 3')
    a(f's_lshr_b32 s51, s50, 2\ns_lshl_b32 s51, s51, 13\ns_and_b32 s50, s50, 3\ns_lshl_b32 s50, s50, 5\ns_add_u32 s50, s50, s51\ns_add_u32 s50, s50, {SF}\ns_add_u32 s51, s50, 4096')
    a('v_lshrrev_b32 v10, 1, v1\nv_lshlrev_b32 v10, 7, v10\nv_and_b32 v12, 1, v1\nv_lshl_add_u32 v10, v12, 4, v10\nv_lshlrev_b32 v12, 1, v2')
    a('buffer_load_ushort v15, v12, s[44:47], s55 offen')
    a('v_cmp_eq_u32 vcc, 0, v3\nv_cndmask_b32 v13, v9, v12, vcc')
    a(f's_xor_b32 s57, s96, {CMIX}\nv_mov_b32 v17, s57\nv_or_b32 v18, s2, v1\nv_mov_b32 v19, {EP}\nv_cmp_eq_u32 vcc, 0, v18\nv_cndmask_b32 v16, v9, v19, vcc')
    tags(12, SH12)
    a('s_waitcnt vmcnt(0)\nv_lshlrev_b32 v15, 16, v15')
    ldswait('o16', L_O16, 1)
    if dlS: a(f's_sleep {dlS}')
    stamp(8)
    sl = [f'buffer_load_dwordx4 v[{36+4*n}:{39+4*n}], v10, s[28:31], s{50+n} offen sc1' for n in range(2)]
    if not pipe:
        gather('sg', [(sl[n], 36+4*n, 4) for n in range(2)], 28, lambda k, d: f's{97+d}', '0xfff', 20, slS, mS)
    else:
        a(sl[0] + '\n' + sl[1] + '\ns_mov_b64 s[88:89], -1\ns_mov_b64 s[90:91], -1')
        a('L_sg:')
        a(f's_or_b64 exec, s[88:89], 1\n{sl[0]}\ns_or_b64 exec, s[90:91], 1\n{sl[1]}\ns_mov_b64 exec, -1')
        a(f's_waitcnt vmcnt({2*pipe})')
        for n in range(2):
            for d in range(4): a(f'v_xor_b32 v{28+4*n+d}, s{97+d}, v{36+4*n+d}')
            orall(range(28+4*n, 32+4*n), 20+n)
            a(f'v_and_b32 v{20+n}, 0xfff, v{20+n}\nv_cmp_ne_u32 s[{88+2*n}:{89+2*n}], 0, v{20+n}')
        a('s_or_b64 vcc, s[88:89], s[90:91]\ns_cbranch_scc0 L_sg_ok')
        again('L_sg')
        a('L_sg_ok:')
    stamp(9)
    a('v_pk_add_f32 v[28:29], v[28:29], v[32:33]\nv_pk_add_f32 v[30:31], v[30:31], v[34:35]')
    red4(28); allred_row('v_add_f32', 28, (8, 4, 2))
    rbf(28)
    a('v_mul_f32 v25, 0xbfb8aa3b, v28\nv_exp_f32 v25, v25\nv_add_f32 v25, 1.0, v25\nv_rcp_f32 v25, v25\nv_mul_f32 v24, v28, v25')
    rbf(24)
    a('v_mul_f32_dpp v28, v24, v28 quad_perm:[1,1,3,3] row_mask:0xf bank_mask:0xf'); rbf(28)
    a('v_add_f32 v28, v28, v15\nv_cvt_pk_bf16_f32 v28, v28, v28')
    a('buffer_store_short v28, v13, s[40:43], s55 offen' + outpol)
    a('buffer_store_dword v17, v16, s[28:31], 0 offen sc1')
    finish()
    a('L_H2:')
    a('s_cmp_ge_u32 s2, 224\ns_cbranch_scc1 L_nogu')
    for jb in range(2):
        gujob(jb, 's58', 's52', 's53', 's59', f'gj{jb}')
        a(f's_lshl1_add_u32 s58, s58, s52\ns_lshl3_add_u32 s58, s58, s53\ns_lshl_b32 s{56+jb}, s58, 9')
    a('s_sub_u32 s57, s57, 512')
    ldswait('fm2', L_F+FM, 4)
    a('v_readfirstlane_b32 s92, v11\ns_and_b32 s58, s2, 0xc1\ns_cmp_eq_u32 s58, 0xc1\ns_cselect_b32 s92, 0, s92')
    a('v_mov_b32 v8, s57\nv_mov_b32 v10, s56\nv_cmp_gt_u32 vcc, 32, v1\nv_cndmask_b32 v8, v8, v10, vcc\nv_add_u32 v8, v8, v13')
    a(f'v_and_b32 v10, 32, v1\nv_lshl_add_u32 v10, v10, 4, v13\nv_add_u32 v10, {L_GR}, v10')
    ldsdata('gr', [f'ds_read_b128 v[{L+4*n}:{L+4*n+3}], v10 offset:{512*n}' for n in range(2)], range(L, L+8), 20, 4)
    for k in range(4): a(f'v_add_f32 v{L+k}, v{L+k}, v{L+4+k}')
    put_tag(L, 4, 8, 15)
    assert GU == 0
    lstore('g', 'stg', f'buffer_store_dwordx4 v[{L}:{L+3}], v8, s[28:31], 0 offen')
    stamp(2)
    a('s_branch L_hget')
    a('L_nogu:')
    a('s_and_b32 s53, s2, 0xf9\ns_cmp_eq_u32 s53, 0xf9\ns_cbranch_scc1 L_hget')
    qjob('s53', 's56', 's57')
    a('s_bfe_u32 s56, s2, 0x20001\ns_add_u32 s56, s56, 24\ns_cmp_ge_u32 s2, 248\ns_cselect_b32 s53, s56, s53')
    a(f's_lshl_b32 s56, s53, 13\ns_add_u32 s57, s56, 4096\ns_lshl_b32 s58, s53, 9\ns_add_u32 s58, s58, {HF}')
    a('s_and_b32 s88, s96, 0xffff\ns_lshr_b32 s89, s96, 16\nv_cmp_gt_u32 vcc, 32, v1\nv_cndmask_b32 v8, v9, v13, vcc')
    ldswait('qseen', L_Q, 4)
    C2 = 160
    gather('gug', [(f'buffer_load_dwordx4 v[{L+4*n}:{L+4*n+3}], v13, s[28:31], s{56+(n >> 2)} offen offset:{1024*(n & 3)} sc1', L+4*n, 4) for n in range(8)],
           C2, lambda k, d: f's{97+d}', '0xff', 20, 4, 'instr')
    for b in (C2, C2+16):
        for k in range(4): a(f'v_add_f32 v{b+k}, v{b+k}, v{b+4+k}\nv_add_f32 v{b+8+k}, v{b+8+k}, v{b+12+k}')
        for k in range(4): a(f'v_add_f32 v{b+k}, v{b+k}, v{b+8+k}')
        sum_halves(b)
    for k in range(4):
        rbf(C2+k); rbf(C2+16+k); silu(C2+k, 24); rbf(C2+k)
        a(f'v_mul_f32 v{20+k}, v{C2+k}, v{C2+16+k}'); rbf(20+k)
        a(f'v_or_b32 v{20+k}, s{88+(k & 1)}, v{20+k}')
    a('buffer_store_dwordx4 v[20:23], v8, s[28:31], s58 offen sc1')
    stamp(10)
    a('L_hget:')
    a('s_branch L_H23')
    a('L_H3:')
    a(f's_getreg_b32 s52, hwreg(HW_REG_XCC_ID, 0, 4)\ns_xor_b32 s53, s96, 0x5a5a5a50\ns_and_b32 s53, s53, -16')
    a(f's_lshl_b32 s56, s55, 8\ns_add_u32 s56, s56, {XC}\nv_and_b32 v10, 31, v1\nv_lshlrev_b32 v10, 3, v10')
    a(f's_or_b32 s53, s53, s52\ns_mov_b32 s57, {xctries}')
    ldswait('f4', L_F+F4, 2)
    a('L_xc:\nbuffer_load_dwordx2 v[32:33], v10, s[28:31], s56 offen sc1\ns_mov_b32 s52, 1\ns_waitcnt vmcnt(0)')
    a('v_xor_b32 v20, s96, v32\nv_xor_b32 v21, s53, v33\nv_or_b32 v20, v20, v21\nv_cmp_ne_u32 vcc, 0, v20\ns_cbranch_vccz L_xc_ok')
    a('s_mov_b32 s52, 0\ns_sub_u32 s57, s57, 1\ns_cmp_lg_u32 s57, 0\ns_cbranch_scc1 L_xc\nL_xc_ok:')
    a(f'v_mov_b32 v10, {L_F}\nv_mov_b32 v11, s52\nds_write_b32 v10, v11 offset:{FM}')
    stamp(2)
    a(f'v_lshlrev_b32 v10, 3, v14\nv_add_u32 v11, {L_MLW}, v10\ns_mov_b32 s88, {LOG2E}\ns_lshr_b32 s90, s96, 16\ns_and_b32 s97, s96, 0xfff')
    gj('s52', 's53', 's89')
    a(f's_lshl_b32 s89, s52, 6\ns_add_u32 s89, s89, s53\ns_lshl_b32 s89, s89, 6\ns_add_u32 s89, s89, {ML}\nv_cmp_gt_u32 vcc, 8, v1\nv_cndmask_b32 v10, v9, v10, vcc\nv_mov_b32 v15, 0xfffff000')
    ldsdata('mlp_w', [f'ds_read_b64 v[{20+2*w}:{21+2*w}], v11 offset:{64*w}' for w in range(4)], range(20, 28), 28, 4)
    a('v_max3_f32 v28, v20, v22, v24\nv_max_f32 v28, v28, v26\nv_mul_f32 v30, s88, v28\nv_ceil_f32 v30, v30')
    for w in range(4): a(f'v_fma_f32 v{20+2*w}, v{20+2*w}, s88, -v30\nv_exp_f32 v{20+2*w}, v{20+2*w}')
    a('v_mul_f32 v33, v20, v21\nv_fmac_f32 v33, v22, v23\nv_fmac_f32 v33, v24, v25\nv_fmac_f32 v33, v26, v27')
    put_tag(33, 1, 12, 15)
    a('v_or_b32 v32, s90, v28')
    a('buffer_store_dwordx2 v[32:33], v10, s[28:31], s89 offen sc1')
    stamp(4)
    a('L_H23:')
    optags()
    a(f'v_mul_u32_u24 v6, 528, v2\nv_lshl_add_u32 v6, v3, 5, v6')
    a(f's_and_b32 s59, s3, 1\ns_mul_i32 s57, s59, 2112\ns_add_u32 s57, s57, {L_OR}\nv_add_u32 v6, s57, v6')
    a(f's_and_b32 s52, s54, 3\ns_lshl2_add_u32 s57, s55, s52\ns_lshl1_add_u32 s57, s57, s59\ns_lshl_b32 s57, s57, 13')
    a(f's_lshr_b32 s56, s54, 2\ns_lshl_b32 s56, s56, 7\ns_add_u32 s56, s56, s57\ns_add_u32 s56, s56, {OP}')
    a('v_lshrrev_b32 v7, 3, v1\nv_lshlrev_b32 v7, 10, v7\nv_lshl_add_u32 v7, v19, 4, v7')
    ldswait('fm', L_F+FM, 4)
    a('v_readfirstlane_b32 s92, v11')
    a('v_mov_b32 v15, 0xfffefffe')
    R, FA = 64, 48
    a(f's_lshl_b32 s57, s59, 5\ns_add_u32 s57, s57, {L_MLW}\nv_lshl_add_u32 v10, v2, 3, s57\ns_mov_b32 s58, {LOG2E}')
    ldsdata('mlf', [f'ds_read_b32 v{FA+2*w}, v10 offset:{64*w}' for w in range(4)], range(FA, FA+8, 2), 20, 4)
    a(f'v_max3_f32 v20, v{FA}, v{FA+2}, v{FA+4}\nv_max_f32 v20, v20, v{FA+6}\nv_mul_f32 v20, s58, v20\nv_ceil_f32 v20, v20')
    for w in range(4): a(f'v_fma_f32 v{FA+2*w}, v{FA+2*w}, s58, -v20\nv_exp_f32 v{FA+2*w}, v{FA+2*w}\nv_mov_b32 v{FA+2*w+1}, v{FA+2*w}')
    def acc(w, r):
        f = f'v[{FA+2*w}:{FA+2*w+1}]'
        for k in range(0, 8, 2):
            if w == 0: a(f'v_pk_mul_f32 v[{R+k}:{R+k+1}], v[{r+k}:{r+k+1}], {f}')
            else: a(f'v_pk_fma_f32 v[{R+k}:{R+k+1}], v[{r+k}:{r+k+1}], {f}, v[{R+k}:{R+k+1}]')
    if ormode == 0:
        for w in range(4):
            ldsdata(f'orw{w}', [f'ds_read_b128 v[{R+8+4*e}:{R+8+4*e+3}], v6 offset:{4224*w+16*e}' for e in range(2)], range(R+8, R+16), 20, 0 if w else 1)
            acc(w, R+8)
    else:
        a(f'v_mul_u32_u24 v12, 4224, v2\nv_add_u32 v12, {L_OR + 7*528 + 3*128 + 64 + 48 + 12}, v12\nL_orl4:')
        a('ds_read_b32 v11, v12\ns_waitcnt lgkmcnt(0)\nv_cmp_eq_u32 vcc, -1, v11')
        retry('L_orl4', 'L_orl4_ok', 0)
        for w in range(4):
            for e in range(2): a(f'ds_read_b128 v[{R+8+8*w+4*e}:{R+8+8*w+4*e+3}], v6 offset:{4224*w+16*e}')
        for w in range(4):
            a(f's_waitcnt lgkmcnt({6-2*w})')
            acc(w, R+8+8*w)
    for k in range(8): a(f'v_add_u32 v{R+k}, 0x10000, v{R+k}')
    for k in range(4): a(f'v_perm_b32 v{20+k}, v{R+2*k+1}, v{R+2*k}, s61')
    for k in range(4): a(f'v_and_or_b32 v{20+k}, v{20+k}, v15, v{28+k}')
    if 'o' in local:
        a('s_cmp_eq_u32 s92, 1\ns_cbranch_scc0 L_ofar\nbuffer_store_dwordx4 v[20:23], v7, s[28:31], s56 offen' + oppol + '\ns_branch L_ost\nL_ofar:')
    a('buffer_store_dwordx4 v[20:23], v7, s[28:31], s56 offen sc1\nL_ost:')
    if hold: a(f's_lshl_b32 s53, s59, 2\ns_add_u32 s53, s53, {L_F+FO}\nv_mov_b32 v24, s53\nds_write_b32 v24, v24\ns_waitcnt lgkmcnt(0)')
    stamp(6)
    a('s_cmp_ge_u32 s2, 224\ns_cbranch_scc1 L_ofin')
    finish()
    a('L_ofin:')
    MR, MC, SEL, G, GC, DD = 32, 36, 40, 64, 80, 96
    optags()
    a('s_and_b32 s88, s2, 7\ns_bfe_u32 s89, s2, 0x20003')
    a(f's_lshl_b32 s57, s89, 12\ns_lshl_b32 s53, s3, 4\ns_add_u32 s57, s57, s53\ns_add_u32 s57, s57, {ML}')
    a('v_add_u32 v7, s88, v19\nv_and_b32 v7, 7, v7\nv_and_b32 v8, 56, v1\nv_add_lshl_u32 v7, v7, v8, 6')
    a(f's_lshr_b32 s90, s96, 16\ns_and_b32 s91, s96, 0xfff\ns_mov_b32 s58, {LOG2E}')
    a('v_and_b32 v10, 1, v1\nv_lshlrev_b32 v10, 4, v10\nv_mov_b32 v11, 0xffff\nv_lshlrev_b32 v10, v10, v11\nv_bfe_u32 v11, v1, 1, 2')
    for d in range(4): a(f'v_cmp_eq_u32 vcc, {d}, v11\nv_cndmask_b32 v{24+d}, 0, v10, vcc')
    a(f's_lshl2_add_u32 s48, s88, s89\ns_lshl2_add_u32 s48, s48, s3\ns_lshl_b32 s48, s48, 12\ns_add_u32 s48, s48, {OP}')
    a(f's_lshl2_add_u32 s56, s89, s3\ns_lshl_b32 s56, s56, 13\ns_lshl_b32 s53, s88, 9\ns_add_u32 s56, s56, s53\ns_add_u32 s56, s56, {OG}')
    a('v_and_b32 v10, 8, v1\nv_lshlrev_b32 v10, 9, v10\nv_and_b32 v11, 32, v1\nv_lshl_add_u32 v10, v11, 3, v10\nv_lshl_add_u32 v10, v19, 5, v10\nv_and_b32 v11, 16, v1\nv_add_u32 v10, v10, v11')
    a(f'v_lshlrev_b32 v8, 4, v1\nv_mov_b32 v14, {L_F+F3}\nv_mov_b32 v18, {0xfffefffe if og16 else 0xfffff000}')
    if og16:
        a(f's_sub_u32 s56, s56, {OG}\ns_lshr_b32 s56, s56, 1\ns_add_u32 s56, s56, {OG}\nv_lshrrev_b32 v10, 1, v10\nv_mov_b32 v4, v28\nv_mov_b32 v5, v29')
        for e in range(2): a(f'v_mov_b32_dpp v{4+e}, v{30+e} quad_perm:[0,1,2,3] row_mask:0xa bank_mask:0xf')
    tags(12, SH12)
    if mlgate == 'or': ldswait('orl', L_OR, 4)
    else: ldsdata('f3m', ['ds_read_b128 v[56:59], v14'], range(56, 60), 22, 4)
    def mlpre(c0, t):
        a(f'v_or_b32 v{t}, v{c0+1}, v{c0+3}\nv_and_b32 v{t}, 0xfff, v{t}\nv_or3_b32 v{t}, v{t}, v{c0}, v{c0+2}')
    gather('mlg', [(f'buffer_load_dwordx4 v[{MR}:{MR+3}], v7, s[28:31], s57 offen sc1', MR, 4)], MC, lambda k, d: f's{90+(d & 1)}', '0xffff', 22, 4, 'lane', pre=mlpre)
    for e in range(2):
        m, l = MC + 2*e, MC + 2*e + 1
        a(f'v_mul_f32 v{m}, s58, v{m}\nv_ceil_f32 v{m}, v{m}\nv_mov_b32 v22, v{m}')
        allred_row('v_max_f32', 22); allred_xrow('v_max_f32', 22, 23)
        a(f'v_sub_f32 v{m}, v{m}, v22\nv_cvt_i32_f32 v{m}, v{m}\nv_ldexp_f32 v{m}, 1.0, v{m}\nv_mul_f32 v{l}, v{m}, v{l}')
        allred_row('v_add_f32', l); allred_xrow('v_add_f32', l, 23)
        a(f'v_perm_b32 v{m}, v{m}, v{m}, s61')
        a(f'v_mov_b32_dpp v22, v{m} row_newbcast:0 row_mask:0xf bank_mask:0x3\nv_mov_b32_dpp v22, v{m} row_newbcast:8 row_mask:0xf bank_mask:0xc')
        for d in range(4): a(f'v_and_b32 v{SEL+4*e+d}, v22, v{24+d}')
    a(f'v_mov_b32_dpp v{MC+1}, v{MC+3} quad_perm:[0,1,2,3] row_mask:0xf bank_mask:0xc\nv_rcp_f32 v17, v{MC+1}')
    stamp(9)
    ldsdata('f3o', ['ds_read_b128 v[56:59], v14'], range(56, 60), 22, 2)
    if stamps: a('s_cmp_lt_u32 s3, 2\ns_cbranch_scc1 L_ns1'); stamp(3); a('L_ns1:')
    def omfma(n, c0):
        a(f'v_mfma_f32_16x16x32_bf16 v[{DD+4*n}:{DD+4*n+3}], v[{SEL+4*(n >> 1)}:{SEL+4*(n >> 1)+3}], v[{c0}:{c0+3}], 0')
    gather('ol', [(f'buffer_load_dwordx4 v[{G+4*n}:{G+4*n+3}], v8, s[28:31], s48 offen offset:{1024*n} sc1', G+4*n, 4) for n in range(4)],
           GC, lambda k, d: f'v{28+d}', '0x10001', 48, slO, 'all', each=omfma)
    stamp(8)
    for k in range(4): a(f'v_permlane32_swap_b32 v{DD+k}, v{DD+4+k}')
    for k in range(4): a(f'v_permlane32_swap_b32 v{DD+8+k}, v{DD+12+k}')
    for k in range(4): a(f'v_add_f32_dpp v{20+k}, v{DD+4+k}, v{DD+k} row_ror:8 row_mask:0xf bank_mask:0x3')
    for k in range(4): a(f'v_add_f32_dpp v{20+k}, v{DD+8+k}, v{DD+12+k} row_ror:8 row_mask:0xf bank_mask:0xc')
    for k in range(4): a(f'v_mul_f32 v{20+k}, v17, v{20+k}')
    if og16:
        for k in range(4): a(f'v_add_u32 v{20+k}, 0x10000, v{20+k}')
        a('v_perm_b32 v20, v21, v20, s61\nv_perm_b32 v21, v23, v22, s61\nv_and_or_b32 v20, v20, v18, v4\nv_and_or_b32 v21, v21, v18, v5')
        a('buffer_store_dwordx2 v[20:21], v10, s[28:31], s56 offen sc1')
    else:
        put_tag(20, 4, 12, 18)
        a('buffer_store_dwordx4 v[20:23], v10, s[28:31], s56 offen sc1')
    if clean:
        for n in range(4): a(f'buffer_store_dwordx4 v[{G+4*n}:{G+4*n+3}], v8, s[28:31], s48 offen offset:{1024*n} sc1')
    a(f's_lshl_b32 s53, s3, 2\nv_add_u32 v14, s53, v14\nds_write_b32 v14, v14 offset:{F3E-F3}')
    stamp(11)
    a('s_cmp_eq_u32 s3, 0\ns_cbranch_scc1 L_H0b')
    a('s_cmp_eq_u32 s3, 1\ns_cbranch_scc1 L_H1b')
    a('s_waitcnt lgkmcnt(0)')
    finish()
    a('L_exit:\ns_endpgm')
    a.raw(f'''.section .rodata,"a"
.p2align 6
.amdhsa_kernel {KNAME}
  .amdhsa_next_free_vgpr 256
  .amdhsa_next_free_sgpr 102
  .amdhsa_accum_offset 256
  .amdhsa_group_segment_fixed_size 0
  .amdhsa_kernarg_size 96
  .amdhsa_user_sgpr_count 2
  .amdhsa_user_sgpr_kernarg_segment_ptr 1
  .amdhsa_system_sgpr_workgroup_id_x 1
  .amdhsa_float_denorm_mode_32 3
.end_amdhsa_kernel''')
    return a.text()

if __name__ == '__main__':
    out = sys.argv[1]
    kw = eval('dict(' + (sys.argv[2] if len(sys.argv) > 2 else '') + ')')
    open(out, 'w').write(gen(**kw))
```

```python
import sys
sys.path.insert(0, 'work')
from asmlib import Asm

KNAME = 'recurrent_scan__gqa_block_cached__swiglu_ffn__decode_kernel'
MB = 1 << 20
GU = 0
HF = 229376
EP = 245760
XC = 249856
SF, OP = 262144, 786432
ML, QF, QP, OG, WSEND = 1310720, 1327104, 1343488, 1474560, 1605632
STAMPS = 8 * MB
L_K, L_OR, L_X, L_Q = 0, 131072, 147968, 150016
L_MLW, L_H, L_O16, L_F, L_QR, L_GR, L_END = 152192, 152448, 152704, 152960, 153088, 155136, 157184
F0, F1, FM, FT, F3, F3E, FO, F4 = 0, 4, 8, 12, 16, 32, 48, 56
OOB = 0x40000000
LOG2E = 0x3fb8aa3b
SCALE = 0x3db504f3
SPIN = 400000
CMIX = 0x9e3779b9
SH12 = (0, 12, 20, 6)

HEADER = open('recurrent_scan__gqa_block_cached__swiglu_ffn__decode.s.ref').read().split('; Override')[0]

def gen(plain='', win=((0,6),), winL=((0,6),(50,7)), nB1L=14, nF1L=31, defer=3, hold=(4,7,1), bias=None, ormode=1, noretry=(), nXC=12, xctries=5, mlgate='f3', pipe=False, slS=0, slO=0, dlS=0, slF=0, local='soqg', oppol='', sfpol='', clean=False, outpol='', mO='union', mS='union', nX=18, nB1=10, nF1=28, og16=True, probe=None, slH=1, shu=2, shg=1, f3at=14, rot=0, kv='slab', grot=0, lightred=True, f3e=None,
        pref=True, tlbpf=False, stamps=False, sleep=8, abl=()):
    a0 = Asm()
    cur = ['']
    class A:
        def __call__(self, text, tag=None):
            for t in text.split('\n'):
                if 'sc1' in t and t.startswith('buffer_store') and 'st' in abl and tag is None: continue
                if 'sc1' in t and t.startswith('buffer_load') and ('ld' in abl or cur[0] in abl): continue
                if 'nowork' in abl and t.startswith(('v_perm', 'v_mfma', 'v_cvt_pk', 'v_exp', 'v_mul_f32', 'v_sub_f32', 'v_add_f32', 'v_mov_b32_dpp', 'v_max3_f32')): continue
                if 'nolds' in abl and t.startswith('s_cbranch_vccz'): t = t.replace('s_cbranch_vccz', 's_branch')
                if 'nobar' in abl and t.startswith('s_barrier'): continue
                if 'nohelp' in abl and t.startswith('s_setprio 2'): t = 's_endpgm'
                a0(t, tag)
        def __getattr__(self, n): return getattr(a0, n)
        def __setattr__(self, n, v): setattr(a0, n, v)
    a = A()
    PL = {k: ('' if k in plain else ' nt') for k in 'qgkvdo'}
    def sched(sc, i): return [w for (st, w) in sc if st <= i][-1]
    def stamp(k):
        if stamps: a(f's_memrealtime s[{64+2*k}:{65+2*k}]')
    def srd(d, p, size):
        a(f's_mov_b32 s{d}, s{p}\ns_mov_b32 s{d+1}, s{p+1}\ns_mov_b32 s{d+2}, {size}\ns_mov_b32 s{d+3}, 0x20000')
    def allred_row(op, v, steps=(8, 4, 2, 1)):
        for r in steps: a(f'{op}_dpp v{v}, v{v}, v{v} row_ror:{r} row_mask:0xf bank_mask:0xf')
    def allred_xrow(op, v, t):
        a(f'v_mov_b32 v{t}, v{v}\nv_permlane16_swap_b32 v{t}, v{v}\n{op} v{v}, v{v}, v{t}')
        a(f'v_mov_b32 v{t}, v{v}\nv_permlane32_swap_b32 v{t}, v{v}\n{op} v{v}, v{v}, v{t}')
    def rbf(v):
        a(f'v_cvt_pk_bf16_f32 v{v}, v{v}, v{v}\nv_lshlrev_b32 v{v}, 16, v{v}')
    def perms_pair(La, Lb, TB, u):
        for d in range(4):
            a(f'v_perm_b32 v{TB+4*(2*d)+u}, v{Lb+d}, v{La+d}, s60')
            a(f'v_perm_b32 v{TB+4*(2*d+1)+u}, v{Lb+d}, v{La+d}, s61')
    def tree(op2, op3, regs, t):
        regs = list(regs)
        if len(regs) == 2:
            a(f'{op2} v{t}, v{regs[0]}, v{regs[1]}'); return
        a(f'{op3} v{t}, v{regs[0]}, v{regs[1]}, v{regs[2]}')
        regs = regs[3:]
        while len(regs) >= 2:
            a(f'{op3} v{t}, v{t}, v{regs[0]}, v{regs[1]}'); regs = regs[2:]
        if regs: a(f'{op2} v{t}, v{t}, v{regs[0]}')
    def umax(regs, t): tree('v_max_u32', 'v_max3_u32', regs, t)
    def orall(regs, t): tree('v_or_b32', 'v_or3_b32', regs, t)
    def again(lbl): a(f's_sub_u32 s62, s62, 1\ns_cmp_gt_i32 s62, 0\ns_cbranch_scc1 {lbl}')
    def retry(lbl_loop, lbl_done, slp):
        a(f's_cbranch_vccz {lbl_done}')
        if slp: a(f's_sleep {slp}')
        again(lbl_loop)
        a(f'{lbl_done}:')
    def gather(name, loads, clean, tag, mask, tmp, slp, mode, first=True, each=None, pre=None, onfail=None):
        n = len(loads)
        cur[0] = name
        if first:
            for t, _, _ in loads: a(t)
        a(f'L_{name}:')
        tk = []; c0 = clean
        for k, (_, r, c) in enumerate(loads):
            if k == 0 or (first and each): a(f's_waitcnt vmcnt({n-1-k if (first and each) else 0})')
            for d in range(c): a(f'v_xor_b32 v{c0+d}, {tag(k, d)}, v{r+d}')
            if pre: pre(c0, tmp+k); tk.append(tmp+k)
            elif c > 1: orall(range(c0, c0+c), tmp+k); tk.append(tmp+k)
            else: tk.append(c0)
            if each: each(k, c0)
            c0 += c
        if n > 1: orall(tk, tmp+n)
        a(f'v_and_b32 v{tmp+n}, {mask}, v{tmp+n if n > 1 else tk[0]}\nv_cmp_ne_u32 vcc, 0, v{tmp+n}')
        a(f's_branch L_{name}_ok' if (abl or name in noretry) else f's_cbranch_vccz L_{name}_ok')
        if slp: a(f's_sleep {slp}')
        if onfail: onfail()
        if mode == 'all':
            for t, _, _ in loads: a(t)
            again(f'L_{name}')
            a(f's_waitcnt vmcnt(0)\nL_{name}_ok:')
            return
        if mode == 'union':
            a('s_mov_b64 exec, vcc')
            for t, _, _ in loads: a(t)
            a('s_mov_b64 exec, -1')
        for k, (t, _, _) in enumerate(loads if mode != 'union' else ()):
            if n > 1 or mode == 'line8':
                a(f'v_and_b32 v{tmp+n}, {mask}, v{tk[k]}')
                if mode == 'line8':
                    for m in ('quad_perm:[1,0,3,2]', 'quad_perm:[2,3,0,1]', 'row_half_mirror'):
                        a(f'v_or_b32_dpp v{tmp+n}, v{tmp+n}, v{tmp+n} {m} row_mask:0xf bank_mask:0xf')
                a(f'v_cmp_ne_u32 vcc, 0, v{tmp+n}\ns_cbranch_vccz L_{name}_s{k}')
            if mode == 'instr': a(t)
            else: a(f's_mov_b64 exec, vcc\n{t}\ns_mov_b64 exec, -1')
            if n > 1 or mode == 'line8': a(f'L_{name}_s{k}:')
        a('s_waitcnt vmcnt(0)')
        again(f'L_{name}')
        a(f'L_{name}_ok:')
    def ldswait(name, addr, slp):
        a(f'v_mov_b32 v12, {addr}\nL_{name}:')
        a(f'ds_read_b32 v11, v12\ns_waitcnt lgkmcnt(0)\nv_cmp_eq_u32 vcc, -1, v11')
        retry(f'L_{name}', f'L_{name}_ok', slp)
    def ldsdata(name, reads, regs, t, slp):
        a(f'L_{name}:')
        for r in reads: a(r)
        a('s_waitcnt lgkmcnt(0)')
        umax(regs, t)
        a(f'v_cmp_eq_u32 vcc, -1, v{t}')
        retry(f'L_{name}', f'L_{name}_ok', slp)
    def get_tag(t):
        a(f'v_mov_b32 v{t}, {L_F}\nds_read_b32 v{t}, v{t} offset:{FT}\ns_waitcnt lgkmcnt(0)\nv_readfirstlane_b32 s96, v{t}')
    def tags(bits, shifts, s0=97):
        for d, sh in enumerate(shifts): a(f's_bfe_u32 s{s0+d}, s96, {(bits << 16) | sh}')
    def put_tag(r, n, bits, vm, s0=97):
        for d in range(n): a(f'v_add_u32 v{r+d}, {1 << (bits-1)}, v{r+d}')
        for d in range(n): a(f'v_and_or_b32 v{r+d}, v{r+d}, v{vm}, s{s0+d}')
    def silu(v, t):
        a(f'v_mul_f32 v{t}, 0xbfb8aa3b, v{v}\nv_exp_f32 v{t}, v{t}\nv_add_f32 v{t}, 1.0, v{t}\nv_rcp_f32 v{t}, v{t}\nv_mul_f32 v{v}, v{v}, v{t}')
    def fold_cols(D, o, rm='0xf'):
        for k in range(4):
            a(f'v_add_f32_dpp v{o+k}, v{D+4*k+1}, v{D+4*k} row_ror:8 row_mask:{rm} bank_mask:0x3')
            a(f'v_add_f32_dpp v{o+((k+2)&3)}, v{D+4*(((k+2)&3)+4)}, v{D+4*(((k+2)&3)+4)+1} row_ror:8 row_mask:{rm} bank_mask:0xc')
    def red4(r):
        a(f'v_permlane32_swap_b32 v{r}, v{r+2}\nv_permlane32_swap_b32 v{r+1}, v{r+3}')
        a(f'v_add_f32 v{r}, v{r}, v{r+2}\nv_add_f32 v{r+1}, v{r+1}, v{r+3}')
        a(f'v_permlane16_swap_b32 v{r}, v{r+1}\nv_add_f32 v{r}, v{r}, v{r+1}')
    def rb_of(d, t):
        a(f's_lshr_b32 {d}, s2, 5\ns_lshl_b32 {d}, {d}, 3\ns_and_b32 {t}, s2, 7\ns_add_u32 {d}, {d}, {t}')
    def gj(g, j, t):
        a(f's_bfe_u32 {g}, s2, 0x20003')
        if j: rb_of(j, t)
    def qjob(head, kq, t):
        a(f's_bfe_u32 {t}, s2, 0x20003\ns_add_u32 {head}, s2, {t}\ns_and_b32 {head}, {head}, 7\ns_lshl3_add_u32 {head}, {t}, {head}\ns_lshr_b32 {kq}, s2, 5')
    def gujob(jb, blk, mat, kq, t, lbl):
        a(f's_cmp_ge_u32 s2, 192\ns_cbranch_scc1 L_{lbl}a')
        a(f's_lshr_b32 {t}, s2, 6\ns_add_u32 {t}, {t}, {jb}\ns_cmp_eq_u32 {t}, 3\ns_cselect_b32 {t}, 0, {t}')
        a(f's_add_u32 {blk}, s2, {t}\ns_and_b32 {blk}, {blk}, 7\ns_lshl3_add_u32 {blk}, {t}, {blk}\ns_mov_b32 {mat}, {jb}\ns_bfe_u32 {kq}, s2, 0x30003')
        a(f's_branch L_{lbl}b\nL_{lbl}a:')
        a(f's_bfe_u32 {blk}, s2, 0x20001\ns_add_u32 {blk}, {blk}, 24\ns_and_b32 {mat}, s2, 1\ns_bfe_u32 {kq}, s2, 0x20003\ns_lshl1_add_u32 {kq}, {kq}, {jb}')
        a(f'L_{lbl}b:')
    def lstore(key, name, text):
        if key in local: a(f's_cmp_eq_u32 s92, 1\ns_cbranch_scc0 L_{name}f\n{text}\ns_branch L_{name}d\nL_{name}f:')
        a(f'{text} sc1\nL_{name}d:')
    def consts():
        a(f's_mov_b32 s60, 0x05040100\ns_mov_b32 s61, 0x07060302\ns_mov_b32 s62, {SPIN}')
        srd(28, 26, WSEND)
    def finish():
        if stamps:
            stamp(7)
            a('s_waitcnt lgkmcnt(0)')
            a('s_lshl_b32 s52, s2, 3\ns_add_u32 s52, s52, s3\ns_lshl_b32 s52, s52, 7')
            a(f's_add_u32 s54, s26, {STAMPS}\ns_addc_u32 s55, s27, 0')
            a('v_mov_b32 v2, s52\ns_mov_b64 exec, 1')
            for k in range(6):
                a(f'v_mov_b32 v4, s{64+4*k}\nv_mov_b32 v5, s{65+4*k}\nv_mov_b32 v6, s{66+4*k}\nv_mov_b32 v7, s{67+4*k}')
                a(f'global_store_dwordx4 v2, v[4:7], s[54:55] offset:{16*k}\ns_nop 1')
        a('s_endpgm')
    def zstamps():
        if stamps:
            for k in range(68, 88, 2): a(f's_mov_b64 s[{k}:{k+1}], 0')

    a.raw(HEADER.rstrip())
    a.raw(f'; @launch grid=(256,1,1) block=(512,1,1) lds={L_END}')
    a.raw('.amdgcn_target "amdgcn-amd-amdhsa--gfx950"\n.text')
    a.raw(f'.globl {KNAME}\n.p2align 8\n.type {KNAME},@function\n{KNAME}:')
    stamp(0)
    a('s_load_dwordx16 s[4:19], s[0:1], 0\ns_load_dwordx8 s[20:27], s[0:1], 64')
    a('v_lshrrev_b32 v2, 6, v0\nv_and_b32 v1, 63, v0\nv_readfirstlane_b32 s3, v2')
    a('s_cmp_ge_u32 s2, 256\ns_cbranch_scc1 L_exit')
    a('s_cmp_ge_u32 s3, 4\ns_cbranch_scc1 L_S')
    XS = 40
    a('s_setprio 2')
    a('s_cmp_lg_u32 s3, 0\ns_cbranch_scc1 L_H123')
    if pref:
        a(f's_getpc_b64 s[56:57]\nL_pc:\ns_lshr_b32 s58, s2, 3\ns_mulk_i32 s58, 1024\nv_and_b32 v2, 7, v1\nv_lshl_add_u32 v2, v2, 7, s58')
        a(f'v_min_u32 v2, L_exit-L_pc, v2\nglobal_load_dword v255, v2, s[56:57]')
    a(f'v_lshlrev_b32 v7, 5, v1\nv_mov_b32 v8, {EP}\ns_waitcnt lgkmcnt(0)')
    a(f'global_load_dwordx4 v[{XS}:{XS+3}], v7, s[4:5]\nglobal_load_dwordx4 v[{XS+4}:{XS+7}], v7, s[4:5] offset:16')
    a('global_load_dword v14, v8, s[26:27] sc1')
    stamp(1)
    a('s_branch L_H0')

    a('L_S:')
    V, TB, PO, O, S, PP, QL, QH, D, X = 128, 96, 64, 48, 32, 24, 64, 80, 64, 32
    n_ld = [0]
    W = [win]; nF = [nF1]
    def pace():
        a.vm_window(sched(W[0], n_ld[0])); n_ld[0] += 1
    a('s_sub_u32 s63, s3, 4')
    qjob('s54', 's55', 's53')
    a('s_lshl2_add_u32 s53, s55, s63\ns_lshl_b32 s52, s53, 10\ns_add_u32 s52, s52, s54\ns_lshl_b32 s52, s52, 8')
    a('v_lshrrev_b32 v2, 4, v1\nv_and_b32 v3, 15, v1\nv_lshlrev_b32 v4, 4, v3\nv_lshl_add_u32 v6, v2, 16, v4')
    a('s_movk_i32 s57, 0x2000\ns_lshl_b32 s34, s57, 10\ns_mov_b32 s35, 0x20000\ns_waitcnt lgkmcnt(0)\ns_mov_b64 s[32:33], s[10:11]')
    a.vm_reset()
    def s_setup():
        stamp(1)
        a('v_lshlrev_b32 v9, 4, v1')
        a(f's_mul_i32 s58, s63, 4224\ns_add_u32 s58, s58, {L_OR}\nv_add_u32 v10, s58, v9')
        for k in range(4): a(f'v_mov_b32 v{20+k}, -1')
        for k in range(4): a(f'ds_write_b128 v10, v[20:23] offset:{1024*k}')
        a('ds_write_b128 v10, v[20:23] offset:3200')
        zstamps(); consts()
        a('s_lshr_b32 s51, s63, 1')
        gujob('s51', 's58', 's56', 's55', 's59', 'gjs')
        a(f's_cmp_eq_u32 s56, 1\ns_cselect_b64 s[36:37], s[18:19], s[16:17]\ns_mov_b32 s38, {1024*7168}\ns_mov_b32 s39, 0x20000\ns_lshl_b32 s58, s58, 8')
        a(f's_and_b32 s59, s63, 1\ns_lshl1_add_u32 s59, s55, s59\ns_mul_i32 s50, s59, {64*7168}\ns_add_u32 s50, s50, s58')
        a(f'v_mul_u32_u24 v7, {8*7168}, v2\nv_add_u32 v7, v7, v4')
        a(f's_lshl_b32 s53, s53, 6\ns_add_u32 s53, s53, {L_X}\nv_lshl_add_u32 v12, v2, 4, s53')
        a(f's_lshl_b32 s59, s59, 7\ns_add_u32 s59, s59, {L_X}\nv_lshl_add_u32 v13, v2, 4, s59')
        a(f's_lshl_b32 s59, s63, 9\ns_add_u32 s59, s59, {L_QR}\nv_lshlrev_b32 v14, 5, v3\nv_lshl_add_u32 v14, v2, 4, v14\nv_add_u32 v14, s59, v14')
        a('s_waitcnt lgkmcnt(0)\ns_barrier')
    for i in range(8):
        pace()
        a(f'buffer_load_dwordx4 v[{V+4*i}:{V+4*i+3}], v6, s[32:35], s52 offen{PL["q"]}', tag=('q', i))
        if i < 7: a('s_add_u32 s52, s52, s57')
        if i == min(sched(win, 0), 8) - 1: s_setup()
    def kv_setup():
        gj('s52', 's53', 's54')
        if kv != 'slab':
            for T in range(4):
                a(f's_mul_i32 s56, s53, {4*kv}\ns_add_u32 s56, s56, s63\ns_add_u32 s56, s56, {4*(T % kv) + (T // kv)*256*kv}\ns_lshl_b32 s54, s52, 10\ns_add_u32 s56, s56, s54\ns_lshl_b32 s{88+T}, s56, 13')
        a('s_lshl2_add_u32 s53, s53, s63\ns_lshl_b32 s54, s52, 10')
        for T in range(4 if kv == 'slab' else 0):
            a(f's_add_u32 s56, s53, {rot*T}\ns_and_b32 s56, s56, 255\ns_add_u32 s56, s56, s54')
            a(f's_mul_i32 s59, s52, {grot}\ns_add_u32 s59, s59, {T}\ns_and_b32 s59, s59, 3\ns_lshl_b32 s59, s59, 8\ns_add_u32 s56, s56, s59\ns_lshl_b32 s{88+T}, s56, 13')
        a('s_lshl_b32 s55, s63, 15')
        a('v_lshlrev_b32 v5, 6, v2\nv_xor_b32 v5, v5, v4\nv_lshl_add_u32 v16, v2, 8, v5')
        for k in range(1, 4): a(f'v_xor_b32 v{16+k}, {16*k}, v16')
        srd(40, 6, 32*MB); srd(44, 8, 32*MB)
    kv_setup()
    def tile_ops(Lb, Xr, first):
        ops = [(lambda u=u: perms_pair(Lb+8*u, Lb+8*u+4, TB, u)) for u in range(4)]
        def mf():
            for j in range(8):
                c = '0' if first else f'v[{D+4*j}:{D+4*j+3}]'
                a(f'v_mfma_f32_16x16x32_bf16 v[{D+4*j}:{D+4*j+3}], v[{Xr}:{Xr+3}], v[{TB+4*j}:{TB+4*j+3}], {c}')
        return ops + [mf]
    def pack128(off):
        for k in range(4): a(f'v_mov_b32 v{20+k}, v{D+4*k}')
        for k in range(4): a(f'v_mov_b32_dpp v{20+k}, v{D+16+4*k} quad_perm:[0,1,2,3] row_mask:0x2 bank_mask:0xf')
        a(f's_mov_b32 exec_hi, 0\nds_write_b128 v14, v[20:23] offset:{off}\ns_mov_b32 exec_hi, -1')
    def xwait(name, gu):
        a(f'v_mov_b32 v20, {L_F}\nL_{name}:\nds_read_b32 v21, v20 offset:{F0}\ns_waitcnt lgkmcnt(0)\nv_cmp_eq_u32 vcc, -1, v21')
        retry(f'L_{name}', f'L_{name}_ok', 1)
        a(f'ds_read_b128 v[{X}:{X+3}], v12')
        if gu: a(f'ds_read_b128 v[{X+4}:{X+7}], v13\nds_read_b128 v[{X+8}:{X+11}], v13 offset:64')
        a('s_waitcnt lgkmcnt(0)')
    def kload(i):
        if i % 4 == 0:
            a(f's_add_u32 m0, s55, {i*1024}\ns_add_u32 s56, s{88+(i >> 3)}, {(i & 4)*1024}')
        pace()
        a(f'buffer_load_dwordx4 v{16+(i & 3)}, s[40:43], s56 offen offset:{1024*(i & 3)}{PL["k"]} lds', tag=('k', i))
        if i == nF[0]: a(f'v_mov_b32 v20, {L_F}\nds_write_b32 v20, v20 offset:{F1}')
    KJ = 16
    def phase1(gu):
        seq = ([('g', i) for i in range(16)] if gu else []) + [('k', i) for i in range(KJ)]
        work = [(None, lambda: xwait('xw%d' % gu, gu))]
        work += [(('q', 7), f) for f in tile_ops(V, X, True)] + [(None, lambda: (pack128(0), stamp(10)))]
        if gu:
            work += [(('g', 7), f) for f in tile_ops(V+32, X+4, True)] + [(('g', 15), f) for f in tile_ops(V+64, X+8, False)]
            work += [(None, lambda: pack128(L_GR-L_QR))]
        for n, (kind, i) in enumerate(seq):
            if kind == 'g':
                pace()
                a(f'buffer_load_dwordx4 v[{V+32+4*i}:{V+32+4*i+3}], v7, s[36:39], s50 offen{PL["g"]}', tag=('g', i))
                if i < 15: a(f's_add_u32 s50, s50, {7168*25 if i == 7 else 7168}')
            else: kload(i)
            if n + 9 == nXC: a(f'v_mov_b32 v20, {L_F}\nds_write_b32 v20, v20 offset:{F4}')
            if n + 9 < nX: continue
            st = [t for t in a.vm if isinstance(t, tuple)]
            landed = st[:len(st) - sched(W[0], n_ld[0]-1)]
            k = 0
            while work and k < 3 and (work[0][0] is None or work[0][0] in landed):
                work.pop(0)[1](); k += 1
        assert not work
    def rest(sfx, nB1):
        a('v_and_b32 v14, 3, v3\nv_lshlrev_b32 v14, 2, v14\nv_lshrrev_b32 v15, 2, v3\nv_add_u32 v14, v14, v15\nv_lshlrev_b32 v14, 8, v14\nv_add_u32 v14, s55, v14')
        a('v_xor_b32 v15, v2, v3')
        for s in range(4):
            a(f'v_xor_b32 v{10+s}, {4*s}, v15\nv_lshl_add_u32 v{10+s}, v{10+s}, 4, v14')
        if bias and not sfx:
            w0 = W[0]
            st0 = (list(a.vm), n_ld[0])
            a('s_getreg_b32 s56, hwreg(HW_REG_XCC_ID, 0, 1)\ns_cmp_eq_u32 s56, 0\ns_cbranch_scc1 L_b0')
            W[0] = bias[0]
            for i in range(KJ, 32): kload(i)
            a('s_branch L_b1\nL_b0:')
            a.vm, n_ld[0] = list(st0[0]), st0[1]
            W[0] = bias[1]
            for i in range(KJ, 32): kload(i)
            W[0] = w0
            a('L_b1:')
        else:
            for i in range(KJ, 32): kload(i)
        a(f'v_and_b32 v8, 7, v1\nv_mul_u32_u24 v14, 272, v8\nv_lshl_add_u32 v14, v2, 4, v14\nv_add_u32 v14, {L_Q}, v14')
        a('v_cmp_gt_u32 vcc, 8, v3\nv_cndmask_b32 v15, 0, -1, vcc\nv_not_b32 v16, v15')
        a(f'v_lshlrev_b32 v17, 3, v8\nv_add_u32 v17, {L_MLW}, v17')
        vn = [0]
        def vload():
            if vn[0] == 32: return
            i = vn[0]; vn[0] += 1
            if i % 4 == 0: a(f's_add_u32 s56, s{88+(i >> 3)}, {(i & 4)*1024}')
            pace()
            a(f'buffer_load_dwordx4 v[{V+4*i}:{V+4*i+3}], v9, s[44:47], s56 offen offset:{1024*(i & 3)}{PL["v"]}', tag=('v', i))
        for i in range(nB1): vload()
        a.vm_wait(('k', 31))
        stamp(2)
        ldsdata('qw' + sfx, [f'ds_read_b128 v[{QL+4*s}:{QL+4*s+3}], v14 offset:{64*s}' for s in range(4)], range(QL, QL+16), 18, 1)
        stamp(3)
        units = [(p, hh, ts) for p in range(2) for hh in range(2) for ts in range(2)]
        def kreads(k):
            p, hh, ts = units[k]
            for s in range(4):
                r = TB + 16*(k & 1) + 4*s
                a(f'ds_read_b128 v[{r}:{r+3}], v{10+s} offset:{(2*p+ts)*8192 + hh*4096}')
        kreads(0); kreads(1)
        vload()
        for k in range(16): a(f'v_and_b32 v{QH+k}, v16, v{QL+k}\nv_and_b32 v{QL+k}, v15, v{QL+k}')
        for k in range(8):
            p, hh, ts = units[k]
            a(f's_waitcnt lgkmcnt({4 if k < 7 else 0})')
            d = S + 8*p + 4*hh
            for s in range(4):
                r = TB + 16*(k & 1) + 4*s; q = (QH if ts else QL) + 4*s
                c = '0' if (ts == 0 and s == 0) else f'v[{d}:{d+3}]'
                a(f'v_mfma_f32_16x16x32_bf16 v[{d}:{d+3}], v[{r}:{r+3}], v[{q}:{q+3}], {c}')
            if k + 2 < 8: kreads(k+2)
            if k in (1, 4, 7): vload()
        a(f's_mov_b32 s57, {SCALE}\ns_mov_b32 s58, {LOG2E}')
        for k in range(0, 16, 2):
            r = S + k
            a(f'v_cvt_pk_bf16_f32 v{r}, v{r}, v{r+1}\nv_and_b32 v{r+1}, 0xffff0000, v{r}\nv_lshlrev_b32 v{r}, 16, v{r}')
            a(f'v_mul_f32 v{r}, s57, v{r}\nv_mul_f32 v{r+1}, s57, v{r+1}')
            a(f'v_cvt_pk_bf16_f32 v{r}, v{r}, v{r+1}\nv_and_b32 v{r+1}, 0xffff0000, v{r}\nv_lshlrev_b32 v{r}, 16, v{r}')
        vload()
        tree('v_max_f32', 'v_max3_f32', range(S, S+16), 18)
        allred_row('v_max_f32', 18, (8,)); allred_xrow('v_max_f32', 18, 20)
        for k in range(16): a(f'v_sub_f32 v{S+k}, v{S+k}, v18\nv_mul_f32 v{S+k}, s58, v{S+k}')
        vload()
        for k in range(16): a(f'v_exp_f32 v{S+k}, v{S+k}')
        a(f'v_add_f32 v19, v{S}, v{S+1}')
        for k in range(2, 16): a(f'v_add_f32 v19, v19, v{S+k}')
        allred_row('v_add_f32', 19, (8,)); allred_xrow('v_add_f32', 19, 20)
        a('s_lshl_b32 s59, s63, 6\nv_add_u32 v20, s59, v17\nds_write_b64 v20, v[18:19]')
        vload()
        for k in range(8): a(f'v_cvt_pk_bf16_f32 v{PP+k}, v{S+2*k}, v{S+2*k+1}')
        stamp(11)
        for p in range(2):
            for k in range(4):
                src = PP + 4*p + k
                a(f'v_and_b32 v{PO+16*p+k}, v15, v{src}')
                a(f'v_mov_b32_dpp v{PO+16*p+4+k}, v{src} row_shr:8 row_mask:0xf bank_mask:0xf bound_ctrl:1')
                a(f'v_mov_b32_dpp v{PO+16*p+8+k}, v{src} row_shl:8 row_mask:0xf bank_mask:0xf bound_ctrl:1')
                a(f'v_and_b32 v{PO+16*p+12+k}, v16, v{src}')
        def pv_pair(pr):
            T, u = pr >> 2, pr & 3
            perms_pair(V+8*pr, V+8*pr+4, TB, u)
            if u == 3:
                for half in range(2):
                    for q in range(4):
                        c = '0' if (T == 0 and half == 0) else f'v[{O+4*q}:{O+4*q+3}]'
                        j = q + 4*half; b = PO + 8*T + 4*half
                        a(f'v_mfma_f32_16x16x32_bf16 v[{O+4*q}:{O+4*q+3}], v[{TB+4*j}:{TB+4*j+3}], v[{b}:{b+3}], {c}')
        def tail_setup1():
            srd(32, 12, 4096*2048); srd(36, 20, 3584*2048)
            a('s_lshr_b32 s52, s2, 3\ns_and_b32 s59, s63, 1\ns_lshl1_add_u32 s52, s52, s59')
            a('s_and_b32 s53, s2, 7\ns_lshr_b32 s57, s63, 1\ns_lshl1_add_u32 s53, s53, s57')
            a(f's_lshl_b32 s57, s53, 7\ns_mul_i32 s48, s52, {56*2048}\ns_add_u32 s48, s48, s57')
            a('s_lshl_b32 s49, s52, 17\ns_add_u32 s49, s49, s57')
            a(f's_lshl_b32 s50, s53, 15\ns_lshl_b32 s51, s52, 7\ns_add_u32 s50, s50, s51\ns_add_u32 s50, s50, {SF}')
            a(f'v_lshrrev_b32 v20, 3, v1\nv_lshlrev_b32 v21, 4, v8\nv_mul_u32_u24 v6, {7*2048}, v20\nv_add_u32 v6, v6, v21')
            a('v_and_b32 v7, 3, v20\nv_lshl_add_u32 v7, v7, 12, v21\nv_and_b32 v20, 4, v20\nv_lshl_add_u32 v7, v20, 14, v7')
        def tail_setup2():
            a('v_and_b32 v10, 6, v1\nv_lshlrev_b32 v10, 12, v10\nv_and_b32 v20, 8, v1\nv_lshl_add_u32 v10, v20, 2, v10\nv_and_b32 v21, 1, v1\nv_lshl_add_u32 v10, v21, 6, v10\nv_lshl_add_u32 v10, v2, 4, v10')
            a(f'v_mov_b32 v21, {OOB}\nv_cmp_gt_u32 vcc, 32, v1\nv_cndmask_b32 v10, v21, v10, vcc')
            a(f'v_and_b32 v21, 1, v1\nv_lshl_add_u32 v11, v2, 1, v21\nv_lshlrev_b32 v11, 4, v11\ns_lshl_b32 s59, s59, 7\ns_add_u32 s59, s59, {L_H}\nv_add_u32 v11, s59, v11')
            a(f'v_mul_u32_u24 v5, 528, v8\nv_lshl_add_u32 v5, v2, 7, v5\nv_lshl_add_u32 v5, v20, 3, v5')
            a(f's_mul_i32 s57, s63, 4224\ns_add_u32 s57, s57, {L_OR}\nv_add_u32 v5, s57, v5')
            a(f's_lshl_b32 s57, s63, 2\ns_add_u32 s57, s57, {L_F+F3}\nv_mov_b32 v13, s57\nv_mov_b32 v12, 0xfffff000')
            get_tag(20); tags(12, SH12)
        def last_pair():
            La, Lb, u, T = V+120, V+124, 3, 3
            def pm(j): a(f'v_perm_b32 v{TB+4*j+u}, v{Lb+(j >> 1)}, v{La+(j >> 1)}, s{60+(j & 1)}')
            def mf(q):
                for half in range(2):
                    j = q + 4*half; b = PO + 8*T + 4*half
                    a(f'v_mfma_f32_16x16x32_bf16 v[{O+4*q}:{O+4*q+3}], v[{TB+4*j}:{TB+4*j+3}], v[{b}:{b+3}], v[{O+4*q}:{O+4*q+3}]')
            def wr(q): a(f'ds_write_b128 v5, v[{O+4*q}:{O+4*q+3}] offset:{16*q}')
            stamp(5)
            pm(0); pm(4); pm(1); pm(5); mf(0); pm(2); pm(6); mf(1); pm(3); pm(7); mf(2); mf(3)
            for q in range(4): wr(q)
        donep = [0]
        def pvw(pr):
            if pr < 15: pv_pair(pr)
            else: last_pair()
            donep[0] = pr + 1
            if pr == 3:
                for k in range(4): a(f'v_mov_b32 v{V+28+k}, 0')
        work = [(None, tail_setup1), (None, tail_setup2)] + [(('v', 2*pr+1), (lambda pr=pr: pvw(pr))) for pr in range(16)]
        seq = [('v', i) for i in range(vn[0], 32)] + [('d', i) for i in range(7)] + [('o', i) for i in range(8)]
        def force(n):
            while donep[0] < n:
                t, f = work.pop(0)
                if t: a.vm_wait(t)
                f()
        def run_seq(seq, work, f3):
            for kind, i in seq:
                if kind == 'v': vload()
                elif kind == 'd':
                    force(4)
                    if i == 0: stamp(4)
                    pace()
                    a(f'buffer_load_dwordx4 v[{V+4*i}:{V+4*i+3}], v6, s[36:39], s48 offen offset:{2048*(i & 1)}{PL["d"]}', tag=('d', i))
                    if i & 1: a('s_add_u32 s48, s48, 4096')
                    if i == f3: a('ds_write_b32 v13, v13')
                else:
                    force(8)
                    if i & 3: a('s_add_u32 s49, s49, 16384')
                    elif i: a('s_sub_u32 s49, s49, 49152')
                    pace()
                    a(f'buffer_load_dwordx4 v[{V+32+4*i}:{V+32+4*i+3}], v7, s[32:35], s49 offen offset:{2048*(i >> 2)}{PL["o"]}', tag=('o', i))
                    if i + 7 == f3: a('ds_write_b32 v13, v13')
                st = [t for t in a.vm if isinstance(t, tuple)]
                landed = st[:len(st) - sched(W[0], n_ld[0]-1)]
                k = 0
                while work and k < 2 and (work[0][0] is None or work[0][0] in landed):
                    work.pop(0)[1](); k += 1
        if sfx and defer:
            run_seq(seq[:-defer], work, 14 - defer)
            force(16)
            a(f'v_mov_b32 v24, {L_F+F3E}')
            ldsdata('rdone', ['ds_read_b128 v[20:23], v24'], range(20, 24), 25, 1)
            W[0] = ((0, 15),)
            run_seq(seq[-defer:], work, None)
        elif hold and not sfx:
            nb, wa, wait = hold
            run_seq(seq[:nb-15], work, f3at)
            force(16)
            if wait:
                a(f'v_mov_b32 v24, {L_F+FO}')
                ldsdata('odone', ['ds_read_b64 v[20:21], v24'], range(20, 22), 25, slH)
            W[0] = ((0, wa),)
            run_seq(seq[nb-15:], work, f3at)
        else:
            run_seq(seq, work, f3at)
            force(16)
    vm0, n0 = list(a.vm), n_ld[0]
    a('s_cmp_ge_u32 s2, 224\ns_cbranch_scc1 L_light')
    phase1(1)
    rest('', nB1)
    a('L_varend:')
    a(f'v_mov_b32 v24, {L_F}')
    ldsdata('hw', [f'ds_read_b128 v[{X}:{X+3}], v11', f'ds_read_b32 v{X+4}, v24 offset:{FM}'], range(X, X+5), 20, 1)
    a(f'v_readfirstlane_b32 s92, v{X+4}')
    a.vm_wait(('d', 6))
    for f in tile_ops(V, X, True): f()
    fold_cols(D, 20)
    for u in range(4):
        a.vm_wait(('o', 2*u+1))
        perms_pair(V+32+8*u, V+32+8*u+4, TB, u)
    stamp(8)
    ldsdata('ow', [f'ds_read_b128 v[{X}:{X+3}], v11 offset:{L_O16-L_H}'], range(X, X+4), 24, 0)
    for j in (0, 6, 1, 7, 2, 4, 3, 5):
        a(f'v_mfma_f32_16x16x32_bf16 v[{D+4*j}:{D+4*j+3}], v[{X}:{X+3}], v[{TB+4*j}:{TB+4*j+3}], 0')
    fold_cols(D, 20, '0x1')
    a('s_cmp_eq_u32 s92, 1')
    put_tag(20, 4, 12, 12)
    if 's' in local:
        a('s_cbranch_scc0 L_sfar\nbuffer_store_dwordx4 v[20:23], v10, s[28:31], s50 offen' + sfpol)
        stamp(6)
        finish()
        a('L_sfar:')
    a('buffer_store_dwordx4 v[20:23], v10, s[28:31], s50 offen sc1')
    stamp(6)
    finish()

    a('L_light:')
    a.vm = list(vm0); n_ld[0] = n0; W[0] = winL; nF[0] = nF1L
    phase1(0)
    rest('L', nB1L)
    a('s_branch L_varend')

    def optags():
        a('v_mov_b32 v20, s96\nv_and_b32 v19, 7, v1\nv_lshlrev_b32 v21, 2, v19\nv_alignbit_b32 v20, v20, v20, v21')
        for d in range(4): a(f'v_alignbit_b32 v{28+d}, v20, v20, {d}\nv_and_b32 v{28+d}, 0x10001, v{28+d}')
    a('L_H0:')
    t = 20
    a('s_barrier')
    zstamps(); consts()
    a(f's_waitcnt vmcnt(0)\nv_xor_b32 v14, {0xffffffff ^ CMIX}, v14\nv_mov_b32 v13, {L_F}\nv_readfirstlane_b32 s96, v14')
    a(f's_getreg_b32 s52, hwreg(HW_REG_XCC_ID, 0, 4)\ns_xor_b32 s53, s96, 0x5a5a5a50\ns_and_b32 s53, s53, -16\ns_or_b32 s53, s53, s52')
    a(f's_and_b32 s54, s2, 7\ns_lshl_b32 s54, s54, 8\ns_and_b32 s55, s2, -8\ns_add_u32 s54, s54, s55\ns_add_u32 s54, s54, {XC}')
    a(f'v_mov_b32 v15, s53\nv_mov_b32 v16, {OOB}\nv_cmp_ne_u32 vcc, 0, v1\nv_cndmask_b32 v16, 0, v16, vcc')
    a('buffer_store_dwordx2 v[14:15], v16, s[28:31], s54 offen')
    for d in range(8):
        a(f'v_lshlrev_b32 v{t+2*d}, 16, v{XS+d}\nv_and_b32 v{t+2*d+1}, 0xffff0000, v{XS+d}')
    a(f'v_add_f32 v8, v{t}, v{t+1}')
    for k in range(2, 16): a(f'v_add_f32 v8, v8, v{t+k}')
    allred_row('v_add_f32', 8); allred_xrow('v_add_f32', 8, 9)
    a('v_mul_f32 v8, 0x3a800000, v8')
    a(f'v_sub_f32 v9, v{t}, v8\nv_mul_f32 v10, v9, v9')
    for k in range(1, 16): a(f'v_sub_f32 v9, v{t+k}, v8\nv_fmac_f32 v10, v9, v9')
    allred_row('v_add_f32', 10); allred_xrow('v_add_f32', 10, 9)
    a('v_mul_f32 v10, 0x3a800000, v10')
    rbf(8); rbf(10)
    a('v_add_f32 v10, 0x3727c5ac, v10'); rbf(10)
    a('v_sqrt_f32 v10, v10'); rbf(10)
    a('v_rcp_f32 v11, v10\nv_fma_f32 v12, -v10, v11, 1.0\nv_fma_f32 v11, v12, v11, v11')
    for d in range(8):
        r = t + 2*d
        a(f'v_sub_f32 v{r}, v{r}, v8\nv_sub_f32 v{r+1}, v{r+1}, v8')
        a(f'v_cvt_pk_bf16_f32 v{r}, v{r}, v{r+1}\nv_and_b32 v{r+1}, 0xffff0000, v{r}\nv_lshlrev_b32 v{r}, 16, v{r}')
        a(f'v_mul_f32 v{r}, v{r}, v11\nv_mul_f32 v{r+1}, v{r+1}, v11\nv_cvt_pk_bf16_f32 v{XS+d}, v{r}, v{r+1}')
    a(f'v_add_u32 v7, {L_X}, v7\nds_write_b128 v7, v[{XS}:{XS+3}]\nds_write_b128 v7, v[{XS+4}:{XS+7}] offset:16')
    a(f'ds_write_b32 v13, v14 offset:{FT}\ns_waitcnt lgkmcnt(0)')
    a(f'ds_write_b32 v13, v13 offset:{F0}')
    stamp(2)
    a('v_and_b32 v18, 7, v1')
    a(f's_mul_i32 s52, s55, 56\ns_add_u32 s52, s52, {HF}')
    ldswait('sdone', L_MLW, 4)
    a('v_min_u32 v12, 6, v18\nv_lshrrev_b32 v10, 3, v1\nv_mul_u32_u24 v10, 7, v10\nv_add_lshl_u32 v10, v10, v12, 2')
    a('v_lshlrev_b32 v12, 2, v10\nv_and_b32 v12, 16, v12\nv_bfe_u32 v12, s96, v12, 16')
    gather('hg', [(f'buffer_load_dword v{32+n}, v10, s[28:31], s52 offen offset:{224*n} sc1', 32+n, 1) for n in range(2)], 20, lambda k, d: 'v12', '0xffff', 22, sleep, 'instr')
    a(f'v_cmp_ne_u32 vcc, 7, v18\nv_and_b32 v10, 62, v1\nv_lshlrev_b32 v10, 1, v10\nv_add_u32 v10, {L_H}, v10')
    for n in range(2):
        a(f'v_cndmask_b32 v{20+n}, 0, v{20+n}, vcc')
        a(f'v_mov_b32_dpp v22, v{20+n} quad_perm:[0,0,2,2] row_mask:0xf bank_mask:0xf\nv_mov_b32_dpp v23, v{20+n} quad_perm:[1,1,3,3] row_mask:0xf bank_mask:0xf')
        a(f'v_perm_b32 v{20+n}, v23, v22, s61\nds_write_b32 v10, v{20+n} offset:{128*n}')
    stamp(4)
    a('s_cmp_ge_u32 s2, 224\ns_cbranch_scc1 L_ofin\nL_H0b:')
    if og16:
        a(f's_and_b32 s50, s2, -8\ns_lshl_b32 s50, s50, 8\ns_add_u32 s50, s50, {OG}')
        optags()
        a('v_and_b32 v10, 1, v1\nv_lshlrev_b32 v10, 4, v10\nv_mov_b32 v11, 0x3f80\nv_lshlrev_b32 v10, v10, v11\nv_bfe_u32 v11, v1, 1, 3')
        for d in range(4): a(f'v_cmp_eq_u32 vcc, {d}, v11\nv_cndmask_b32 v{24+d}, 0, v10, vcc')
        a(f'v_and_b32 v10, 15, v1\nv_lshlrev_b32 v10, 4, v10\nv_and_b32 v8, 16, v1\nv_lshrrev_b32 v8, 1, v8\nv_add_u32 v10, v10, v8\nv_add_u32 v10, {L_O16}, v10')
        a(f'v_lshlrev_b32 v8, 4, v1\nv_mov_b32 v16, {L_F+F3}')
        ldsdata('f3', ['ds_read_b128 v[40:43], v16'], range(40, 44), 22, 2)
        stamp(3)
        gather('og', [(f'buffer_load_dwordx4 v[{64+4*n}:{67+4*n}], v8, s[28:31], s50 offen offset:{1024*n} sc1', 64+4*n, 4) for n in range(2)],
               40, lambda k, d: f'v{28+d}', '0x10001', 20, slF, 'all',
               each=lambda n, c0: a(f'v_mfma_f32_16x16x32_bf16 v[48:51], v[24:27], v[{c0}:{c0+3}], {"v[48:51]" if n else "0"}'))
        a('s_mov_b32 exec_hi, 0\ns_nop 1\nv_cvt_pk_bf16_f32 v20, v48, v49\nv_cvt_pk_bf16_f32 v21, v50, v51\nds_write_b64 v10, v[20:21]')
    else:
        a(f's_and_b32 s50, s2, -8\ns_lshl_b32 s50, s50, 9\ns_add_u32 s50, s50, {OG}')
        tags(12, SH12)
        a(f'v_and_b32 v10, 31, v1\nv_lshlrev_b32 v10, 3, v10\nv_lshrrev_b32 v8, 5, v1\nv_lshl_add_u32 v10, v8, 2, v10\nv_add_u32 v10, {L_O16}, v10')
        a(f'v_lshlrev_b32 v8, 4, v1\nv_mov_b32 v16, {L_F+F3}')
        ldsdata('f3', ['ds_read_b128 v[40:43], v16'], range(40, 44), 22, 2)
        stamp(3)
        gather('og', [(f'buffer_load_dwordx4 v[{64+4*n}:{67+4*n}], v8, s[28:31], s50 offen offset:{1024*n} sc1', 64+4*n, 4) for n in range(4)],
               40, lambda k, d: f's{97+d}', '0xfff', 22, slF, mO)
        for k in (0, 2): a(f'v_pk_add_f32 v[{40+k}:{41+k}], v[{40+k}:{41+k}], v[{44+k}:{45+k}]\nv_pk_add_f32 v[{48+k}:{49+k}], v[{48+k}:{49+k}], v[{52+k}:{53+k}]')
        for k in (0, 2): a(f'v_pk_add_f32 v[{40+k}:{41+k}], v[{40+k}:{41+k}], v[{48+k}:{49+k}]')
        a('v_permlane32_swap_b32 v40, v42\nv_permlane32_swap_b32 v41, v43\nv_pk_add_f32 v[40:41], v[40:41], v[42:43]')
        a('v_cvt_pk_bf16_f32 v20, v40, v41\nds_write_b32 v10, v20')
    stamp(8)
    a('s_waitcnt lgkmcnt(0)')
    finish()

    a('L_H123:')
    if tlbpf:
        a('s_cmp_lg_u32 s3, 1\ns_cbranch_scc1 L_notlb')
        a('s_cmp_lt_u32 s2, 224\ns_cbranch_scc1 L_notlb')
        a('s_lshr_b32 s52, s2, 3\ns_and_b32 s52, s52, 3\ns_and_b32 s55, s2, 7\ns_lshl_b32 s53, s55, 15')
        a('s_lshl_b32 s54, s52, 23\ns_add_u32 s54, s54, s53\nv_lshlrev_b32 v3, 21, v1\nv_add_u32 v3, s54, v3')
        a(f's_lshl2_add_u32 s54, s55, s52\ns_mul_i32 s54, s54, {32*7168}\nv_mov_b32 v4, s54')
        a('s_lshl_b32 s54, s52, 21\ns_add_u32 s54, s54, s53\nv_mov_b32 v5, s54\nv_mov_b32 v7, 0')
        a('s_mov_b64 exec, 15\ns_waitcnt lgkmcnt(0)')
        for k, (v, p) in enumerate(((4, 16), (4, 18), (3, 6), (3, 8), (5, 20), (5, 12), (7, 22))):
            a(f'global_load_dword v{240+k}, v{v}, s[{p}:{p+1}]')
        a('s_mov_b64 exec, -1\nL_notlb:')
    if stamps: a('s_mov_b64 s[66:67], 0')
    a('v_mov_b32 v16, -1\nv_mov_b32 v17, -1\nv_mov_b32 v18, -1\nv_mov_b32 v19, -1')
    a(f'v_lshlrev_b32 v13, 4, v1\nv_add_u32 v12, {L_Q}, v13')
    for k in range(7): a(f'ds_write_b128 v12, v[16:19] offset:{1024*k}')
    assert L_Q + 7168 == L_END
    a('s_waitcnt lgkmcnt(0)\ns_barrier')
    zstamps(); consts()
    a(f'v_mov_b32 v9, {OOB}\nv_mov_b32 v15, 0xffffff00\nv_lshrrev_b32 v2, 4, v1\nv_and_b32 v3, 15, v1\nv_and_b32 v14, 7, v1')
    a('s_and_b32 s55, s2, 7\ns_lshr_b32 s54, s2, 3')
    ldswait('f0h', L_F+F0, 4)
    get_tag(11); tags(8, (0, 8, 16, 24))
    a('s_cmp_eq_u32 s3, 2\ns_cbranch_scc1 L_H2')
    a('s_cmp_eq_u32 s3, 3\ns_cbranch_scc1 L_H3')
    L, C = 128, 144
    qjob('s53', 's58', 's59')
    a(f's_lshl_b32 s59, s53, 12\ns_add_u32 s59, s59, {QP}\ns_lshl_b32 s58, s58, 9\ns_add_u32 s58, s58, s59')
    ldswait('fm1', L_F+FM, 2)
    a('v_readfirstlane_b32 s92, v11')
    a(f'v_add_u32 v10, {L_QR}, v13\nv_cmp_gt_u32 vcc, 32, v1\nv_cndmask_b32 v8, v9, v13, vcc')
    def sum_halves(r):
        for k in range(4): a(f'v_mov_b32 v{r+4+k}, v{r+k}')
        for k in range(4): a(f'v_permlane32_swap_b32 v{r+4+k}, v{r+k}')
        for k in range(4): a(f'v_add_f32 v{r+k}, v{r+k}, v{r+4+k}')
    ldsdata('qr', [f'ds_read_b128 v[{L+4*n}:{L+4*n+3}], v10 offset:{1024*n}' for n in range(2)], range(L, L+8), 20, 2)
    for k in range(4): a(f'v_add_f32 v{L+k}, v{L+k}, v{L+4+k}')
    sum_halves(L)
    put_tag(L, 4, 8, 15)
    lstore('q', 'stq', f'buffer_store_dwordx4 v[{L}:{L+3}], v8, s[28:31], s58 offen')
    stamp(2)
    a('s_and_b32 s88, s96, 0xffff\ns_lshr_b32 s89, s96, 16')
    a('s_cmp_lt_u32 s2, 224\ns_cbranch_scc1 L_qf0')
    a(f's_lshl_b32 s57, s53, 9\ns_add_u32 s57, s57, {QF}\ns_waitcnt vmcnt(0)')
    gather('qp', [(f'buffer_load_dwordx4 v[{L+4*n}:{L+4*n+3}], v13, s[28:31], s59 offen offset:{1024*n} sc1', L+4*n, 4) for n in range(4)],
           C, lambda k, d: f's{97+d}', '0xff', 20, 4, 'instr')
    for k in range(4): a(f'v_add_f32 v{C+k}, v{C+k}, v{C+4+k}\nv_add_f32 v{C+8+k}, v{C+8+k}, v{C+12+k}')
    for k in range(4): a(f'v_add_f32 v{C+k}, v{C+k}, v{C+8+k}')
    sum_halves(C)
    for k in range(4): a(f'v_cvt_pk_bf16_f32 v{20+k}, v{C+k}, v{C+k}\nv_lshlrev_b32 v{20+k}, 16, v{20+k}\nv_or_b32 v{20+k}, s{88+(k & 1)}, v{20+k}')
    a('buffer_store_dwordx4 v[20:23], v8, s[28:31], s57 offen sc1')
    stamp(10)
    a('s_waitcnt vmcnt(0)')
    a('L_qf0:')
    ldswait('f1', L_F+F1, 2)
    stamp(3)
    gj('s52', None, None)
    a(f's_lshl_b32 s52, s52, 12\ns_add_u32 s52, s52, {QF}')
    gather('qf', [(f'buffer_load_dwordx4 v[{L+4*n}:{L+4*n+3}], v13, s[28:31], s52 offen offset:{1024*n} sc1', L+4*n, 4) for n in range(4)],
           C, lambda k, d: f's{88+(d & 1)}', '0xffff', 20, sleep, 'lane')
    a(f'v_lshrrev_b32 v11, 5, v1\nv_lshlrev_b32 v11, 1, v11\nv_add_lshl_u32 v11, v11, v1, 3\nv_add_u32 v11, {L_Q}, v11')
    for n in range(4):
        a(f'v_perm_b32 v{20+2*n}, v{C+4*n+1}, v{C+4*n}, s61\nv_perm_b32 v{21+2*n}, v{C+4*n+3}, v{C+4*n+2}, s61')
        a(f'ds_write_b64 v11, v[{20+2*n}:{21+2*n}] offset:{544*n}')
    stamp(4)
    a('s_cmp_ge_u32 s2, 224\ns_cbranch_scc1 L_ofin\nL_H1b:')
    srd(40, 22, 2048); srd(44, 4, 2048)
    a('s_lshl_b32 s50, s55, 5\ns_add_u32 s50, s50, s54\ns_lshl_b32 s55, s50, 3')
    a(f's_lshr_b32 s51, s50, 2\ns_lshl_b32 s51, s51, 13\ns_and_b32 s50, s50, 3\ns_lshl_b32 s50, s50, 5\ns_add_u32 s50, s50, s51\ns_add_u32 s50, s50, {SF}\ns_add_u32 s51, s50, 4096')
    a('v_lshrrev_b32 v10, 1, v1\nv_lshlrev_b32 v10, 7, v10\nv_and_b32 v12, 1, v1\nv_lshl_add_u32 v10, v12, 4, v10\nv_lshlrev_b32 v12, 1, v2')
    a('buffer_load_ushort v15, v12, s[44:47], s55 offen')
    a('v_cmp_eq_u32 vcc, 0, v3\nv_cndmask_b32 v13, v9, v12, vcc')
    a(f's_xor_b32 s57, s96, {CMIX}\nv_mov_b32 v17, s57\nv_or_b32 v18, s2, v1\nv_mov_b32 v19, {EP}\nv_cmp_eq_u32 vcc, 0, v18\nv_cndmask_b32 v16, v9, v19, vcc')
    tags(12, SH12)
    a('s_waitcnt vmcnt(0)\nv_lshlrev_b32 v15, 16, v15')
    ldswait('o16', L_O16, 1)
    if dlS: a(f's_sleep {dlS}')
    stamp(8)
    sl = [f'buffer_load_dwordx4 v[{36+4*n}:{39+4*n}], v10, s[28:31], s{50+n} offen sc1' for n in range(2)]
    if not pipe:
        gather('sg', [(sl[n], 36+4*n, 4) for n in range(2)], 28, lambda k, d: f's{97+d}', '0xfff', 20, slS, mS)
    else:
        a(sl[0] + '\n' + sl[1] + '\ns_mov_b64 s[88:89], -1\ns_mov_b64 s[90:91], -1')
        a('L_sg:')
        a(f's_or_b64 exec, s[88:89], 1\n{sl[0]}\ns_or_b64 exec, s[90:91], 1\n{sl[1]}\ns_mov_b64 exec, -1')
        a(f's_waitcnt vmcnt({2*pipe})')
        for n in range(2):
            for d in range(4): a(f'v_xor_b32 v{28+4*n+d}, s{97+d}, v{36+4*n+d}')
            orall(range(28+4*n, 32+4*n), 20+n)
            a(f'v_and_b32 v{20+n}, 0xfff, v{20+n}\nv_cmp_ne_u32 s[{88+2*n}:{89+2*n}], 0, v{20+n}')
        a('s_or_b64 vcc, s[88:89], s[90:91]\ns_cbranch_scc0 L_sg_ok')
        again('L_sg')
        a('L_sg_ok:')
    stamp(9)
    a('v_pk_add_f32 v[28:29], v[28:29], v[32:33]\nv_pk_add_f32 v[30:31], v[30:31], v[34:35]')
    red4(28); allred_row('v_add_f32', 28, (8, 4, 2))
    rbf(28)
    a('v_mul_f32 v25, 0xbfb8aa3b, v28\nv_exp_f32 v25, v25\nv_add_f32 v25, 1.0, v25\nv_rcp_f32 v25, v25\nv_mul_f32 v24, v28, v25')
    rbf(24)
    a('v_mul_f32_dpp v28, v24, v28 quad_perm:[1,1,3,3] row_mask:0xf bank_mask:0xf'); rbf(28)
    a('v_add_f32 v28, v28, v15\nv_cvt_pk_bf16_f32 v28, v28, v28')
    if probe:
        a('s_lshl_b32 s52, s2, 7')
        for base, off, own in probe:
            a(f's_add_u32 s53, s52, {off}\nv_mov_b32 v30, {"s53" if own else off}\nglobal_load_dword v31, v30, s[{base}:{base+1}]\ns_waitcnt vmcnt(0)')
    a('buffer_store_short v28, v13, s[40:43], s55 offen' + outpol)
    a('buffer_store_dword v17, v16, s[28:31], 0 offen sc1')
    finish()
    a('L_H2:')
    a('s_cmp_ge_u32 s2, 224\ns_cbranch_scc1 L_nogu')
    for jb in range(2):
        gujob(jb, 's58', 's52', 's53', 's59', f'gj{jb}')
        a(f's_lshl1_add_u32 s58, s58, s52\ns_lshl3_add_u32 s58, s58, s53\ns_lshl_b32 s{56+jb}, s58, 9')
    a('s_sub_u32 s57, s57, 512')
    ldswait('fm2', L_F+FM, 4)
    a('v_readfirstlane_b32 s92, v11\ns_and_b32 s58, s2, 0xc1\ns_cmp_eq_u32 s58, 0xc1\ns_cselect_b32 s92, 0, s92')
    a('v_mov_b32 v8, s57\nv_mov_b32 v10, s56\nv_cmp_gt_u32 vcc, 32, v1\nv_cndmask_b32 v8, v8, v10, vcc\nv_add_u32 v8, v8, v13')
    a(f'v_and_b32 v10, 32, v1\nv_lshl_add_u32 v10, v10, 4, v13\nv_add_u32 v10, {L_GR}, v10')
    ldsdata('gr', [f'ds_read_b128 v[{L+4*n}:{L+4*n+3}], v10 offset:{512*n}' for n in range(2)], range(L, L+8), 20, 4)
    for k in range(4): a(f'v_add_f32 v{L+k}, v{L+k}, v{L+4+k}')
    put_tag(L, 4, 8, 15)
    assert GU == 0
    lstore('g', 'stg', f'buffer_store_dwordx4 v[{L}:{L+3}], v8, s[28:31], 0 offen')
    stamp(2)
    a('s_branch L_hget')
    a('L_nogu:')
    a('s_and_b32 s53, s2, 0xf9\ns_cmp_eq_u32 s53, 0xf9\ns_cbranch_scc1 L_hget')
    qjob('s53', 's56', 's57')
    a('s_bfe_u32 s56, s2, 0x20001\ns_add_u32 s56, s56, 24\ns_cmp_ge_u32 s2, 248\ns_cselect_b32 s53, s56, s53')
    a(f's_lshl_b32 s56, s53, 13\ns_add_u32 s57, s56, 4096\ns_lshl_b32 s58, s53, 9\ns_add_u32 s58, s58, {HF}')
    a('s_and_b32 s88, s96, 0xffff\ns_lshr_b32 s89, s96, 16\nv_cmp_gt_u32 vcc, 32, v1\nv_cndmask_b32 v8, v9, v13, vcc')
    ldswait('qseen', L_Q, 4)
    C2 = 160
    gather('gug', [(f'buffer_load_dwordx4 v[{L+4*n}:{L+4*n+3}], v13, s[28:31], s{56+(n >> 2)} offen offset:{1024*(n & 3)} sc1', L+4*n, 4) for n in range(8)],
           C2, lambda k, d: f's{97+d}', '0xff', 20, 4, 'instr')
    for b in (C2, C2+16):
        for k in range(4): a(f'v_add_f32 v{b+k}, v{b+k}, v{b+4+k}\nv_add_f32 v{b+8+k}, v{b+8+k}, v{b+12+k}')
        for k in range(4): a(f'v_add_f32 v{b+k}, v{b+k}, v{b+8+k}')
        sum_halves(b)
    for k in range(4):
        rbf(C2+k); rbf(C2+16+k); silu(C2+k, 24); rbf(C2+k)
        a(f'v_mul_f32 v{20+k}, v{C2+k}, v{C2+16+k}'); rbf(20+k)
        a(f'v_or_b32 v{20+k}, s{88+(k & 1)}, v{20+k}')
    a('buffer_store_dwordx4 v[20:23], v8, s[28:31], s58 offen sc1')
    stamp(10)
    a('L_hget:')
    a('s_branch L_H23')
    a('L_H3:')
    a(f's_getreg_b32 s52, hwreg(HW_REG_XCC_ID, 0, 4)\ns_xor_b32 s53, s96, 0x5a5a5a50\ns_and_b32 s53, s53, -16')
    a(f's_lshl_b32 s56, s55, 8\ns_add_u32 s56, s56, {XC}\nv_and_b32 v10, 31, v1\nv_lshlrev_b32 v10, 3, v10')
    a(f's_or_b32 s53, s53, s52\ns_mov_b32 s57, {xctries}')
    ldswait('f4', L_F+F4, 2)
    a('L_xc:\nbuffer_load_dwordx2 v[32:33], v10, s[28:31], s56 offen sc1\ns_mov_b32 s52, 1\ns_waitcnt vmcnt(0)')
    a('v_xor_b32 v20, s96, v32\nv_xor_b32 v21, s53, v33\nv_or_b32 v20, v20, v21\nv_cmp_ne_u32 vcc, 0, v20\ns_cbranch_vccz L_xc_ok')
    a('s_mov_b32 s52, 0\ns_sub_u32 s57, s57, 1\ns_cmp_lg_u32 s57, 0\ns_cbranch_scc1 L_xc\nL_xc_ok:')
    a(f'v_mov_b32 v10, {L_F}\nv_mov_b32 v11, s52\nds_write_b32 v10, v11 offset:{FM}')
    stamp(2)
    a(f'v_lshlrev_b32 v10, 3, v14\nv_add_u32 v11, {L_MLW}, v10\ns_mov_b32 s88, {LOG2E}\ns_lshr_b32 s90, s96, 16\ns_and_b32 s97, s96, 0xfff')
    gj('s52', 's53', 's89')
    a(f's_lshl_b32 s89, s52, 6\ns_add_u32 s89, s89, s53\ns_lshl_b32 s89, s89, 6\ns_add_u32 s89, s89, {ML}\nv_cmp_gt_u32 vcc, 8, v1\nv_cndmask_b32 v10, v9, v10, vcc\nv_mov_b32 v15, 0xfffff000')
    ldsdata('mlp_w', [f'ds_read_b64 v[{20+2*w}:{21+2*w}], v11 offset:{64*w}' for w in range(4)], range(20, 28), 28, 4)
    a('v_max3_f32 v28, v20, v22, v24\nv_max_f32 v28, v28, v26\nv_mul_f32 v30, s88, v28\nv_ceil_f32 v30, v30')
    for w in range(4): a(f'v_fma_f32 v{20+2*w}, v{20+2*w}, s88, -v30\nv_exp_f32 v{20+2*w}, v{20+2*w}')
    a('v_mul_f32 v33, v20, v21\nv_fmac_f32 v33, v22, v23\nv_fmac_f32 v33, v24, v25\nv_fmac_f32 v33, v26, v27')
    put_tag(33, 1, 12, 15)
    a('v_or_b32 v32, s90, v28')
    a('buffer_store_dwordx2 v[32:33], v10, s[28:31], s89 offen sc1')
    stamp(4)
    a('L_H23:')
    optags()
    a(f'v_mul_u32_u24 v6, 528, v2\nv_lshl_add_u32 v6, v3, 5, v6')
    a(f's_and_b32 s59, s3, 1\ns_mul_i32 s57, s59, 2112\ns_add_u32 s57, s57, {L_OR}\nv_add_u32 v6, s57, v6')
    a(f's_and_b32 s52, s54, 3\ns_lshl2_add_u32 s57, s55, s52\ns_lshl1_add_u32 s57, s57, s59\ns_lshl_b32 s57, s57, 13')
    a(f's_lshr_b32 s56, s54, 2\ns_lshl_b32 s56, s56, 7\ns_add_u32 s56, s56, s57\ns_add_u32 s56, s56, {OP}')
    a('v_lshrrev_b32 v7, 3, v1\nv_lshlrev_b32 v7, 10, v7\nv_lshl_add_u32 v7, v19, 4, v7')
    ldswait('fm', L_F+FM, 4)
    a('v_readfirstlane_b32 s92, v11')
    a('v_mov_b32 v15, 0xfffefffe')
    R, FA = 64, 48
    a(f's_lshl_b32 s57, s59, 5\ns_add_u32 s57, s57, {L_MLW}\nv_lshl_add_u32 v10, v2, 3, s57\ns_mov_b32 s58, {LOG2E}')
    ldsdata('mlf', [f'ds_read_b32 v{FA+2*w}, v10 offset:{64*w}' for w in range(4)], range(FA, FA+8, 2), 20, 4)
    a(f'v_max3_f32 v20, v{FA}, v{FA+2}, v{FA+4}\nv_max_f32 v20, v20, v{FA+6}\nv_mul_f32 v20, s58, v20\nv_ceil_f32 v20, v20')
    for w in range(4): a(f'v_fma_f32 v{FA+2*w}, v{FA+2*w}, s58, -v20\nv_exp_f32 v{FA+2*w}, v{FA+2*w}\nv_mov_b32 v{FA+2*w+1}, v{FA+2*w}')
    def acc(w, r):
        f = f'v[{FA+2*w}:{FA+2*w+1}]'
        for k in range(0, 8, 2):
            if w == 0: a(f'v_pk_mul_f32 v[{R+k}:{R+k+1}], v[{r+k}:{r+k+1}], {f}')
            else: a(f'v_pk_fma_f32 v[{R+k}:{R+k+1}], v[{r+k}:{r+k+1}], {f}, v[{R+k}:{R+k+1}]')
    if ormode == 0:
        for w in range(4):
            ldsdata(f'orw{w}', [f'ds_read_b128 v[{R+8+4*e}:{R+8+4*e+3}], v6 offset:{4224*w+16*e}' for e in range(2)], range(R+8, R+16), 20, 0 if w else 1)
            acc(w, R+8)
    else:
        a(f'v_mul_u32_u24 v12, 4224, v2\nv_add_u32 v12, {L_OR + 7*528 + 3*128 + 64 + 48 + 12}, v12\nL_orl4:')
        a('ds_read_b32 v11, v12\ns_waitcnt lgkmcnt(0)\nv_cmp_eq_u32 vcc, -1, v11')
        retry('L_orl4', 'L_orl4_ok', 0)
        for w in range(4):
            for e in range(2): a(f'ds_read_b128 v[{R+8+8*w+4*e}:{R+8+8*w+4*e+3}], v6 offset:{4224*w+16*e}')
        for w in range(4):
            a(f's_waitcnt lgkmcnt({6-2*w})')
            acc(w, R+8+8*w)
    for k in range(8): a(f'v_add_u32 v{R+k}, 0x10000, v{R+k}')
    for k in range(4): a(f'v_perm_b32 v{20+k}, v{R+2*k+1}, v{R+2*k}, s61')
    for k in range(4): a(f'v_and_or_b32 v{20+k}, v{20+k}, v15, v{28+k}')
    if 'o' in local:
        a('s_cmp_eq_u32 s92, 1\ns_cbranch_scc0 L_ofar\nbuffer_store_dwordx4 v[20:23], v7, s[28:31], s56 offen' + oppol + '\ns_branch L_ost\nL_ofar:')
    a('buffer_store_dwordx4 v[20:23], v7, s[28:31], s56 offen sc1\nL_ost:')
    if hold: a(f's_lshl_b32 s53, s59, 2\ns_add_u32 s53, s53, {L_F+FO}\nv_mov_b32 v24, s53\nds_write_b32 v24, v24\ns_waitcnt lgkmcnt(0)')
    stamp(6)
    a('s_cmp_ge_u32 s2, 224\ns_cbranch_scc1 L_ofin')
    finish()
    a('L_ofin:')
    MR, MC, SEL, G, GC, DD = 32, 36, 40, 64, 80, 96
    optags()
    a('s_and_b32 s88, s2, 7\ns_bfe_u32 s89, s2, 0x20003')
    a(f's_lshl_b32 s57, s89, 12\ns_lshl_b32 s53, s3, 4\ns_add_u32 s57, s57, s53\ns_add_u32 s57, s57, {ML}')
    a('v_add_u32 v7, s88, v19\nv_and_b32 v7, 7, v7\nv_and_b32 v8, 56, v1\nv_add_lshl_u32 v7, v7, v8, 6')
    a(f's_lshr_b32 s90, s96, 16\ns_and_b32 s91, s96, 0xfff\ns_mov_b32 s58, {LOG2E}')
    a('v_and_b32 v10, 1, v1\nv_lshlrev_b32 v10, 4, v10\nv_mov_b32 v11, 0xffff\nv_lshlrev_b32 v10, v10, v11\nv_bfe_u32 v11, v1, 1, 2')
    for d in range(4): a(f'v_cmp_eq_u32 vcc, {d}, v11\nv_cndmask_b32 v{24+d}, 0, v10, vcc')
    a(f's_lshl2_add_u32 s48, s88, s89\ns_lshl2_add_u32 s48, s48, s3\ns_lshl_b32 s48, s48, 12\ns_add_u32 s48, s48, {OP}')
    a(f's_lshl2_add_u32 s56, s89, s3\ns_lshl_b32 s56, s56, 13\ns_lshl_b32 s53, s88, 9\ns_add_u32 s56, s56, s53\ns_add_u32 s56, s56, {OG}')
    a('v_and_b32 v10, 8, v1\nv_lshlrev_b32 v10, 9, v10\nv_and_b32 v11, 32, v1\nv_lshl_add_u32 v10, v11, 3, v10\nv_lshl_add_u32 v10, v19, 5, v10\nv_and_b32 v11, 16, v1\nv_add_u32 v10, v10, v11')
    a(f'v_lshlrev_b32 v8, 4, v1\nv_mov_b32 v14, {L_F+F3}\nv_mov_b32 v18, {0xfffefffe if og16 else 0xfffff000}')
    if og16:
        a(f's_sub_u32 s56, s56, {OG}\ns_lshr_b32 s56, s56, 1\ns_add_u32 s56, s56, {OG}\nv_lshrrev_b32 v10, 1, v10\nv_mov_b32 v4, v28\nv_mov_b32 v5, v29')
        for e in range(2): a(f'v_mov_b32_dpp v{4+e}, v{30+e} quad_perm:[0,1,2,3] row_mask:0xa bank_mask:0xf')
    tags(12, SH12)
    if mlgate == 'or': ldswait('orl', L_OR, 4)
    else: ldsdata('f3m', ['ds_read_b128 v[56:59], v14'], range(56, 60), 22, 4)
    def mlpre(c0, t):
        a(f'v_or_b32 v{t}, v{c0+1}, v{c0+3}\nv_and_b32 v{t}, 0xfff, v{t}\nv_or3_b32 v{t}, v{t}, v{c0}, v{c0+2}')
    gather('mlg', [(f'buffer_load_dwordx4 v[{MR}:{MR+3}], v7, s[28:31], s57 offen sc1', MR, 4)], MC, lambda k, d: f's{90+(d & 1)}', '0xffff', 22, 4, 'lane', pre=mlpre)
    for e in range(2):
        m, l = MC + 2*e, MC + 2*e + 1
        a(f'v_mul_f32 v{m}, s58, v{m}\nv_ceil_f32 v{m}, v{m}\nv_mov_b32 v22, v{m}')
        allred_row('v_max_f32', 22); allred_xrow('v_max_f32', 22, 23)
        a(f'v_sub_f32 v{m}, v{m}, v22\nv_cvt_i32_f32 v{m}, v{m}\nv_ldexp_f32 v{m}, 1.0, v{m}\nv_mul_f32 v{l}, v{m}, v{l}')
        allred_row('v_add_f32', l); allred_xrow('v_add_f32', l, 23)
        a(f'v_perm_b32 v{m}, v{m}, v{m}, s61')
        a(f'v_mov_b32_dpp v22, v{m} row_newbcast:0 row_mask:0xf bank_mask:0x3\nv_mov_b32_dpp v22, v{m} row_newbcast:8 row_mask:0xf bank_mask:0xc')
        for d in range(4): a(f'v_and_b32 v{SEL+4*e+d}, v22, v{24+d}')
    a(f'v_mov_b32_dpp v{MC+1}, v{MC+3} quad_perm:[0,1,2,3] row_mask:0xf bank_mask:0xc\nv_rcp_f32 v17, v{MC+1}')
    stamp(9)
    ldsdata('f3o', ['ds_read_b128 v[56:59], v14'], range(56, 60), 22, 2)
    if stamps: a('s_cmp_lt_u32 s3, 2\ns_cbranch_scc1 L_ns1'); stamp(3); a('L_ns1:')
    def omfma(n, c0):
        a(f'v_mfma_f32_16x16x32_bf16 v[{DD+4*n}:{DD+4*n+3}], v[{SEL+4*(n >> 1)}:{SEL+4*(n >> 1)+3}], v[{c0}:{c0+3}], 0')
    gather('ol', [(f'buffer_load_dwordx4 v[{G+4*n}:{G+4*n+3}], v8, s[28:31], s48 offen offset:{1024*n} sc1', G+4*n, 4) for n in range(4)],
           GC, lambda k, d: f'v{28+d}', '0x10001', 48, slO, 'all', each=omfma)
    stamp(8)
    for k in range(4): a(f'v_permlane32_swap_b32 v{DD+k}, v{DD+4+k}')
    for k in range(4): a(f'v_permlane32_swap_b32 v{DD+8+k}, v{DD+12+k}')
    for k in range(4): a(f'v_add_f32_dpp v{20+k}, v{DD+4+k}, v{DD+k} row_ror:8 row_mask:0xf bank_mask:0x3')
    for k in range(4): a(f'v_add_f32_dpp v{20+k}, v{DD+8+k}, v{DD+12+k} row_ror:8 row_mask:0xf bank_mask:0xc')
    for k in range(4): a(f'v_mul_f32 v{20+k}, v17, v{20+k}')
    if og16:
        for k in range(4): a(f'v_add_u32 v{20+k}, 0x10000, v{20+k}')
        a('v_perm_b32 v20, v21, v20, s61\nv_perm_b32 v21, v23, v22, s61\nv_and_or_b32 v20, v20, v18, v4\nv_and_or_b32 v21, v21, v18, v5')
        a('buffer_store_dwordx2 v[20:21], v10, s[28:31], s56 offen sc1')
    else:
        put_tag(20, 4, 12, 18)
        a('buffer_store_dwordx4 v[20:23], v10, s[28:31], s56 offen sc1')
    if clean:
        for n in range(4): a(f'buffer_store_dwordx4 v[{G+4*n}:{G+4*n+3}], v8, s[28:31], s48 offen offset:{1024*n} sc1')
    a(f's_lshl_b32 s53, s3, 2\nv_add_u32 v14, s53, v14\nds_write_b32 v14, v14 offset:{F3E-F3}')
    stamp(11)
    a('s_cmp_eq_u32 s3, 0\ns_cbranch_scc1 L_H0b')
    a('s_cmp_eq_u32 s3, 1\ns_cbranch_scc1 L_H1b')
    a('s_waitcnt lgkmcnt(0)')
    finish()
    a('L_exit:\ns_endpgm')
    a.raw(f'''.section .rodata,"a"
.p2align 6
.amdhsa_kernel {KNAME}
  .amdhsa_next_free_vgpr 256
  .amdhsa_next_free_sgpr 102
  .amdhsa_accum_offset 256
  .amdhsa_group_segment_fixed_size 0
  .amdhsa_kernarg_size 96
  .amdhsa_user_sgpr_count 2
  .amdhsa_user_sgpr_kernarg_segment_ptr 1
  .amdhsa_system_sgpr_workgroup_id_x 1
  .amdhsa_float_denorm_mode_32 3
.end_amdhsa_kernel''')
    return a.text()

if __name__ == '__main__':
    out = sys.argv[1]
    kw = eval('dict(' + (sys.argv[2] if len(sys.argv) > 2 else '') + ')')
    open(out, 'w').write(gen(**kw))
```

```python
import sys
sys.path.insert(0, 'work')
from asmlib import Asm

KNAME = 'recurrent_scan__gqa_block_cached__swiglu_ffn__decode_kernel'
MB = 1 << 20
GU = 0
HF = 229376
EP = 245760
XC = 249856
SF, OP = 262144, 786432
ML, QF, QP, OG, WSEND = 1310720, 1327104, 1343488, 1474560, 1605632
STAMPS = 8 * MB
L_K, L_OR, L_X, L_Q = 0, 131072, 147968, 150016
L_MLW, L_H, L_O16, L_F, L_QR, L_GR, L_END = 152192, 152448, 152704, 152960, 153088, 155136, 157184
F0, F1, FM, FT, F3, F3E, FO, F4 = 0, 4, 8, 12, 16, 32, 48, 56
L_ORW = L_OR + 7*528 + 3*128 + 64 + 48 + 12
OOB = 0x40000000
LOG2E = 0x3fb8aa3b
SCALE = 0x3db504f3
SPIN = 400000
CMIX = 0x9e3779b9
SH12 = (0, 12, 20, 6)

HEADER = open('recurrent_scan__gqa_block_cached__swiglu_ffn__decode.s.ref').read().split('; Override')[0]

def gen(plain='', win=((0,6),), winL=((0,6),(50,7)), nB1L=14, nF1L=31, defer=3, hold=(4,7,1), bias=None, ormode=1, noretry=(), nXC=12, xctries=5, mlgate='f3', pipe=False, slS=0, slO=0, dlS=0, slF=0, local='soqg', oppol='', sfpol='', clean=False, outpol='', mO='union', mS='union', nX=18, nB1=10, nF1=28, og16=True, nB0=10, h0late=True, fastwo=True, gap='ack', rsat=6, outpf=True, prew='', probe=None, slH=1, shu=2, shg=1, f3at=14, rot=0, kv='slab', grot=0, lightred=True, f3e=None,
        pref=True, tlbpf=False, stamps=False, sleep=8, abl=()):
    a0 = Asm()
    cur = ['']
    class A:
        def __call__(self, text, tag=None):
            for t in text.split('\n'):
                if 'sc1' in t and t.startswith('buffer_store') and 'st' in abl and tag is None: continue
                if 'sc1' in t and t.startswith('buffer_load') and ('ld' in abl or cur[0] in abl): continue
                if 'nowork' in abl and t.startswith(('v_perm', 'v_mfma', 'v_cvt_pk', 'v_exp', 'v_mul_f32', 'v_sub_f32', 'v_add_f32', 'v_mov_b32_dpp', 'v_max3_f32')): continue
                if 'nolds' in abl and t.startswith('s_cbranch_vccz'): t = t.replace('s_cbranch_vccz', 's_branch')
                if 'nobar' in abl and t.startswith('s_barrier'): continue
                if 'nohelp' in abl and t.startswith('s_setprio 2'): t = 's_endpgm'
                a0(t, tag)
        def __getattr__(self, n): return getattr(a0, n)
        def __setattr__(self, n, v): setattr(a0, n, v)
    a = A()
    PL = {k: ('' if k in plain else ' nt') for k in 'qgkvdo'}
    def sched(sc, i): return [w for (st, w) in sc if st <= i][-1]
    def stamp(k):
        if stamps: a(f's_memrealtime s[{64+2*k}:{65+2*k}]')
    def srd(d, p, size):
        a(f's_mov_b32 s{d}, s{p}\ns_mov_b32 s{d+1}, s{p+1}\ns_mov_b32 s{d+2}, {size}\ns_mov_b32 s{d+3}, 0x20000')
    def allred_row(op, v, steps=(8, 4, 2, 1)):
        for r in steps: a(f'{op}_dpp v{v}, v{v}, v{v} row_ror:{r} row_mask:0xf bank_mask:0xf')
    def allred_xrow(op, v, t):
        a(f'v_mov_b32 v{t}, v{v}\nv_permlane16_swap_b32 v{t}, v{v}\n{op} v{v}, v{v}, v{t}')
        a(f'v_mov_b32 v{t}, v{v}\nv_permlane32_swap_b32 v{t}, v{v}\n{op} v{v}, v{v}, v{t}')
    def rbf(v):
        a(f'v_cvt_pk_bf16_f32 v{v}, v{v}, v{v}\nv_lshlrev_b32 v{v}, 16, v{v}')
    def perms_pair(La, Lb, TB, u):
        for d in range(4):
            a(f'v_perm_b32 v{TB+4*(2*d)+u}, v{Lb+d}, v{La+d}, s60')
            a(f'v_perm_b32 v{TB+4*(2*d+1)+u}, v{Lb+d}, v{La+d}, s61')
    def tree(op2, op3, regs, t):
        regs = list(regs)
        if len(regs) == 2:
            a(f'{op2} v{t}, v{regs[0]}, v{regs[1]}'); return
        a(f'{op3} v{t}, v{regs[0]}, v{regs[1]}, v{regs[2]}')
        regs = regs[3:]
        while len(regs) >= 2:
            a(f'{op3} v{t}, v{t}, v{regs[0]}, v{regs[1]}'); regs = regs[2:]
        if regs: a(f'{op2} v{t}, v{t}, v{regs[0]}')
    def umax(regs, t): tree('v_max_u32', 'v_max3_u32', regs, t)
    def orall(regs, t): tree('v_or_b32', 'v_or3_b32', regs, t)
    def again(lbl): a(f's_sub_u32 s62, s62, 1\ns_cmp_gt_i32 s62, 0\ns_cbranch_scc1 {lbl}')
    def retry(lbl_loop, lbl_done, slp):
        a(f's_cbranch_vccz {lbl_done}')
        if slp: a(f's_sleep {slp}')
        again(lbl_loop)
        a(f'{lbl_done}:')
    def gather(name, loads, clean, tag, mask, tmp, slp, mode, first=True, each=None, pre=None, onfail=None):
        n = len(loads)
        cur[0] = name
        if first:
            for t, _, _ in loads: a(t)
        a(f'L_{name}:')
        tk = []; c0 = clean
        for k, (_, r, c) in enumerate(loads):
            if k == 0 or (first and each): a(f's_waitcnt vmcnt({n-1-k if (first and each) else 0})')
            for d in range(c): a(f'v_xor_b32 v{c0+d}, {tag(k, d)}, v{r+d}')
            if pre: pre(c0, tmp+k); tk.append(tmp+k)
            elif c > 1: orall(range(c0, c0+c), tmp+k); tk.append(tmp+k)
            else: tk.append(c0)
            if each: each(k, c0)
            c0 += c
        if n > 1: orall(tk, tmp+n)
        a(f'v_and_b32 v{tmp+n}, {mask}, v{tmp+n if n > 1 else tk[0]}\nv_cmp_ne_u32 vcc, 0, v{tmp+n}')
        a(f's_branch L_{name}_ok' if (abl or name in noretry) else f's_cbranch_vccz L_{name}_ok')
        if slp: a(f's_sleep {slp}')
        if onfail: onfail()
        if mode == 'all':
            for t, _, _ in loads: a(t)
            again(f'L_{name}')
            a(f's_waitcnt vmcnt(0)\nL_{name}_ok:')
            return
        if mode == 'union':
            a('s_mov_b64 exec, vcc')
            for t, _, _ in loads: a(t)
            a('s_mov_b64 exec, -1')
        for k, (t, _, _) in enumerate(loads if mode != 'union' else ()):
            if n > 1 or mode == 'line8':
                a(f'v_and_b32 v{tmp+n}, {mask}, v{tk[k]}')
                if mode == 'line8':
                    for m in ('quad_perm:[1,0,3,2]', 'quad_perm:[2,3,0,1]', 'row_half_mirror'):
                        a(f'v_or_b32_dpp v{tmp+n}, v{tmp+n}, v{tmp+n} {m} row_mask:0xf bank_mask:0xf')
                a(f'v_cmp_ne_u32 vcc, 0, v{tmp+n}\ns_cbranch_vccz L_{name}_s{k}')
            if mode == 'instr': a(t)
            else: a(f's_mov_b64 exec, vcc\n{t}\ns_mov_b64 exec, -1')
            if n > 1 or mode == 'line8': a(f'L_{name}_s{k}:')
        a('s_waitcnt vmcnt(0)')
        again(f'L_{name}')
        a(f'L_{name}_ok:')
    def ldswait(name, addr, slp):
        a(f'v_mov_b32 v12, {addr}\nL_{name}:')
        a(f'ds_read_b32 v11, v12\ns_waitcnt lgkmcnt(0)\nv_cmp_eq_u32 vcc, -1, v11')
        retry(f'L_{name}', f'L_{name}_ok', slp)
    def ldsdata(name, reads, regs, t, slp):
        a(f'L_{name}:')
        for r in reads: a(r)
        a('s_waitcnt lgkmcnt(0)')
        umax(regs, t)
        a(f'v_cmp_eq_u32 vcc, -1, v{t}')
        retry(f'L_{name}', f'L_{name}_ok', slp)
    def get_tag(t):
        a(f'v_mov_b32 v{t}, {L_F}\nds_read_b32 v{t}, v{t} offset:{FT}\ns_waitcnt lgkmcnt(0)\nv_readfirstlane_b32 s96, v{t}')
    def tags(bits, shifts, s0=97):
        for d, sh in enumerate(shifts): a(f's_bfe_u32 s{s0+d}, s96, {(bits << 16) | sh}')
    def put_tag(r, n, bits, vm, s0=97):
        for d in range(n): a(f'v_add_u32 v{r+d}, {1 << (bits-1)}, v{r+d}')
        for d in range(n): a(f'v_and_or_b32 v{r+d}, v{r+d}, v{vm}, s{s0+d}')
    def silu(v, t):
        a(f'v_mul_f32 v{t}, 0xbfb8aa3b, v{v}\nv_exp_f32 v{t}, v{t}\nv_add_f32 v{t}, 1.0, v{t}\nv_rcp_f32 v{t}, v{t}\nv_mul_f32 v{v}, v{v}, v{t}')
    def fold_cols(D, o, rm='0xf'):
        for k in range(4):
            a(f'v_add_f32_dpp v{o+k}, v{D+4*k+1}, v{D+4*k} row_ror:8 row_mask:{rm} bank_mask:0x3')
            a(f'v_add_f32_dpp v{o+((k+2)&3)}, v{D+4*(((k+2)&3)+4)}, v{D+4*(((k+2)&3)+4)+1} row_ror:8 row_mask:{rm} bank_mask:0xc')
    def red4(r):
        a(f'v_permlane32_swap_b32 v{r}, v{r+2}\nv_permlane32_swap_b32 v{r+1}, v{r+3}')
        a(f'v_add_f32 v{r}, v{r}, v{r+2}\nv_add_f32 v{r+1}, v{r+1}, v{r+3}')
        a(f'v_permlane16_swap_b32 v{r}, v{r+1}\nv_add_f32 v{r}, v{r}, v{r+1}')
    def rb_of(d, t):
        a(f's_lshr_b32 {d}, s2, 5\ns_lshl_b32 {d}, {d}, 3\ns_and_b32 {t}, s2, 7\ns_add_u32 {d}, {d}, {t}')
    def gj(g, j, t):
        a(f's_bfe_u32 {g}, s2, 0x20003')
        if j: rb_of(j, t)
    def qjob(head, kq, t):
        a(f's_bfe_u32 {t}, s2, 0x20003\ns_add_u32 {head}, s2, {t}\ns_and_b32 {head}, {head}, 7\ns_lshl3_add_u32 {head}, {t}, {head}\ns_lshr_b32 {kq}, s2, 5')
    def gujob(jb, blk, mat, kq, t, lbl):
        a(f's_cmp_ge_u32 s2, 192\ns_cbranch_scc1 L_{lbl}a')
        a(f's_lshr_b32 {t}, s2, 6\ns_add_u32 {t}, {t}, {jb}\ns_cmp_eq_u32 {t}, 3\ns_cselect_b32 {t}, 0, {t}')
        a(f's_add_u32 {blk}, s2, {t}\ns_and_b32 {blk}, {blk}, 7\ns_lshl3_add_u32 {blk}, {t}, {blk}\ns_mov_b32 {mat}, {jb}\ns_bfe_u32 {kq}, s2, 0x30003')
        a(f's_branch L_{lbl}b\nL_{lbl}a:')
        a(f's_bfe_u32 {blk}, s2, 0x20001\ns_add_u32 {blk}, {blk}, 24\ns_and_b32 {mat}, s2, 1\ns_bfe_u32 {kq}, s2, 0x20003\ns_lshl1_add_u32 {kq}, {kq}, {jb}')
        a(f'L_{lbl}b:')
    def lstore(key, name, text):
        if key in local: a(f's_cmp_eq_u32 s92, 1\ns_cbranch_scc0 L_{name}f\n{text}\ns_branch L_{name}d\nL_{name}f:')
        a(f'{text} sc1\nL_{name}d:')
    def consts():
        a(f's_mov_b32 s60, 0x05040100\ns_mov_b32 s61, 0x07060302\ns_mov_b32 s62, {SPIN}')
        srd(28, 26, WSEND)
    def finish():
        if stamps:
            stamp(7)
            a('s_waitcnt lgkmcnt(0)')
            a('s_lshl_b32 s52, s2, 3\ns_add_u32 s52, s52, s3\ns_lshl_b32 s52, s52, 7')
            a(f's_add_u32 s54, s26, {STAMPS}\ns_addc_u32 s55, s27, 0')
            a('v_mov_b32 v2, s52\ns_mov_b64 exec, 1')
            for k in range(6):
                a(f'v_mov_b32 v4, s{64+4*k}\nv_mov_b32 v5, s{65+4*k}\nv_mov_b32 v6, s{66+4*k}\nv_mov_b32 v7, s{67+4*k}')
                a(f'global_store_dwordx4 v2, v[4:7], s[54:55] offset:{16*k}\ns_nop 1')
        a('s_endpgm')
    def zstamps():
        if stamps:
            for k in range(68, 88, 2): a(f's_mov_b64 s[{k}:{k+1}], 0')

    a.raw(HEADER.rstrip())
    a.raw(f'; @launch grid=(256,1,1) block=(512,1,1) lds={L_END}')
    a.raw('.amdgcn_target "amdgcn-amd-amdhsa--gfx950"\n.text')
    a.raw(f'.globl {KNAME}\n.p2align 8\n.type {KNAME},@function\n{KNAME}:')
    stamp(0)
    a('s_load_dwordx16 s[4:19], s[0:1], 0\ns_load_dwordx8 s[20:27], s[0:1], 64')
    a('v_lshrrev_b32 v2, 6, v0\nv_and_b32 v1, 63, v0\nv_readfirstlane_b32 s3, v2')
    a('s_cmp_ge_u32 s2, 256\ns_cbranch_scc1 L_exit')
    a('s_cmp_ge_u32 s3, 4\ns_cbranch_scc1 L_S')
    XS = 40
    a('s_setprio 2')
    a('s_cmp_lg_u32 s3, 0\ns_cbranch_scc1 L_H123')
    if pref:
        a(f's_getpc_b64 s[56:57]\nL_pc:\ns_lshr_b32 s58, s2, 3\ns_mulk_i32 s58, 1024\nv_and_b32 v2, 7, v1\nv_lshl_add_u32 v2, v2, 7, s58')
        a(f'v_min_u32 v2, L_exit-L_pc, v2\nglobal_load_dword v255, v2, s[56:57]')
    a(f'v_lshlrev_b32 v7, 5, v1\nv_mov_b32 v8, {EP}\ns_waitcnt lgkmcnt(0)')
    a(f'global_load_dwordx4 v[{XS}:{XS+3}], v7, s[4:5]\nglobal_load_dwordx4 v[{XS+4}:{XS+7}], v7, s[4:5] offset:16')
    a('global_load_dword v14, v8, s[26:27] sc1')
    stamp(1)
    a('s_branch L_H0')

    a('L_S:')
    V, TB, PO, O, S, PP, QL, QH, D, X = 128, 96, 64, 48, 32, 24, 64, 80, 64, 32
    n_ld = [0]
    W = [win]; nF = [nF1]
    def pace():
        a.vm_window(sched(W[0], n_ld[0])); n_ld[0] += 1
    a('s_sub_u32 s63, s3, 4')
    qjob('s54', 's55', 's53')
    a('s_lshl2_add_u32 s53, s55, s63\ns_lshl_b32 s52, s53, 10\ns_add_u32 s52, s52, s54\ns_lshl_b32 s52, s52, 8')
    a('v_lshrrev_b32 v2, 4, v1\nv_and_b32 v3, 15, v1\nv_lshlrev_b32 v4, 4, v3\nv_lshl_add_u32 v6, v2, 16, v4')
    a('s_movk_i32 s57, 0x2000\ns_lshl_b32 s34, s57, 10\ns_mov_b32 s35, 0x20000\ns_waitcnt lgkmcnt(0)\ns_mov_b64 s[32:33], s[10:11]')
    a.vm_reset()
    def s_setup():
        stamp(1)
        a('v_lshlrev_b32 v9, 4, v1')
        zstamps(); consts()
        a('s_lshr_b32 s51, s63, 1')
        gujob('s51', 's58', 's56', 's55', 's59', 'gjs')
        a(f's_cmp_eq_u32 s56, 1\ns_cselect_b64 s[36:37], s[18:19], s[16:17]\ns_mov_b32 s38, {1024*7168}\ns_mov_b32 s39, 0x20000\ns_lshl_b32 s58, s58, 8')
        a(f's_and_b32 s59, s63, 1\ns_lshl1_add_u32 s59, s55, s59\ns_mul_i32 s50, s59, {64*7168}\ns_add_u32 s50, s50, s58')
        a(f'v_mul_u32_u24 v7, {8*7168}, v2\nv_add_u32 v7, v7, v4')
        a(f's_lshl_b32 s53, s53, 6\ns_add_u32 s53, s53, {L_X}\nv_lshl_add_u32 v12, v2, 4, s53')
        a(f's_lshl_b32 s59, s59, 7\ns_add_u32 s59, s59, {L_X}\nv_lshl_add_u32 v13, v2, 4, s59')
        a(f's_lshl_b32 s59, s63, 9\ns_add_u32 s59, s59, {L_QR}\nv_lshlrev_b32 v14, 5, v3\nv_lshl_add_u32 v14, v2, 4, v14\nv_add_u32 v14, s59, v14')
        if not nB0: a('s_barrier')
    for i in range(8):
        pace()
        a(f'buffer_load_dwordx4 v[{V+4*i}:{V+4*i+3}], v6, s[32:35], s52 offen{PL["q"]}', tag=('q', i))
        if i < 7: a('s_add_u32 s52, s52, s57')
        if i == min(sched(win, 0), 8) - 1: s_setup()
    def kv_setup():
        gj('s52', 's53', 's54')
        if kv != 'slab':
            for T in range(4):
                a(f's_mul_i32 s56, s53, {4*kv}\ns_add_u32 s56, s56, s63\ns_add_u32 s56, s56, {4*(T % kv) + (T // kv)*256*kv}\ns_lshl_b32 s54, s52, 10\ns_add_u32 s56, s56, s54\ns_lshl_b32 s{88+T}, s56, 13')
        a('s_lshl2_add_u32 s53, s53, s63\ns_lshl_b32 s54, s52, 10')
        for T in range(4 if kv == 'slab' else 0):
            a(f's_add_u32 s56, s53, {rot*T}\ns_and_b32 s56, s56, 255\ns_add_u32 s56, s56, s54')
            a(f's_mul_i32 s59, s52, {grot}\ns_add_u32 s59, s59, {T}\ns_and_b32 s59, s59, 3\ns_lshl_b32 s59, s59, 8\ns_add_u32 s56, s56, s59\ns_lshl_b32 s{88+T}, s56, 13')
        a('s_lshl_b32 s55, s63, 15')
        a('v_lshlrev_b32 v5, 6, v2\nv_xor_b32 v5, v5, v4\nv_lshl_add_u32 v16, v2, 8, v5')
        for k in range(1, 4): a(f'v_xor_b32 v{16+k}, {16*k}, v16')
        srd(40, 6, 32*MB); srd(44, 8, 32*MB)
    kv_setup()
    def tile_ops(Lb, Xr, first):
        ops = [(lambda u=u: perms_pair(Lb+8*u, Lb+8*u+4, TB, u)) for u in range(4)]
        def mf():
            for j in range(8):
                c = '0' if first else f'v[{D+4*j}:{D+4*j+3}]'
                a(f'v_mfma_f32_16x16x32_bf16 v[{D+4*j}:{D+4*j+3}], v[{Xr}:{Xr+3}], v[{TB+4*j}:{TB+4*j+3}], {c}')
        return ops + [mf]
    def pack128(off):
        for k in range(4): a(f'v_mov_b32 v{20+k}, v{D+4*k}')
        for k in range(4): a(f'v_mov_b32_dpp v{20+k}, v{D+16+4*k} quad_perm:[0,1,2,3] row_mask:0x2 bank_mask:0xf')
        a(f's_mov_b32 exec_hi, 0\nds_write_b128 v14, v[20:23] offset:{off}\ns_mov_b32 exec_hi, -1')
    def xwait(name, gu):
        a(f'v_mov_b32 v20, {L_F}\nL_{name}:\nds_read_b32 v21, v20 offset:{F0}\ns_waitcnt lgkmcnt(0)\nv_cmp_eq_u32 vcc, -1, v21')
        retry(f'L_{name}', f'L_{name}_ok', 1)
        a(f'ds_read_b128 v[{X}:{X+3}], v12')
        if gu: a(f'ds_read_b128 v[{X+4}:{X+7}], v13\nds_read_b128 v[{X+8}:{X+11}], v13 offset:64')
        a('s_waitcnt lgkmcnt(0)')
    def kload(i):
        if i % 4 == 0:
            a(f's_add_u32 m0, s55, {i*1024}\ns_add_u32 s56, s{88+(i >> 3)}, {(i & 4)*1024}')
        pace()
        a(f'buffer_load_dwordx4 v{16+(i & 3)}, s[40:43], s56 offen offset:{1024*(i & 3)}{PL["k"]} lds', tag=('k', i))
        if i == nF[0]: a(f'v_mov_b32 v20, {L_F}\nds_write_b32 v20, v20 offset:{F1}')
    KJ = 16
    def phase1(gu):
        seq = ([('g', i) for i in range(16)] if gu else []) + [('k', i) for i in range(KJ)]
        work = [(None, lambda: xwait('xw%d' % gu, gu))]
        work += [(('q', 7), f) for f in tile_ops(V, X, True)] + [(None, lambda: (pack128(0), stamp(10)))]
        if gu:
            work += [(('g', 7), f) for f in tile_ops(V+32, X+4, True)] + [(('g', 15), f) for f in tile_ops(V+64, X+8, False)]
            work += [(None, lambda: pack128(L_GR-L_QR))]
        for n, (kind, i) in enumerate(seq):
            if kind == 'g':
                pace()
                a(f'buffer_load_dwordx4 v[{V+32+4*i}:{V+32+4*i+3}], v7, s[36:39], s50 offen{PL["g"]}', tag=('g', i))
                if i < 15: a(f's_add_u32 s50, s50, {7168*25 if i == 7 else 7168}')
            else: kload(i)
            if n + 9 == nB0: a('s_barrier')
            if n + 9 == nXC: a(f'v_mov_b32 v20, {L_F}\nds_write_b32 v20, v20 offset:{F4}')
            if n + 9 < nX: continue
            st = [t for t in a.vm if isinstance(t, tuple)]
            landed = st[:len(st) - sched(W[0], n_ld[0]-1)]
            k = 0
            while work and k < 3 and (work[0][0] is None or work[0][0] in landed):
                work.pop(0)[1](); k += 1
        assert not work
    def rest(sfx, nB1):
        a('v_and_b32 v14, 3, v3\nv_lshlrev_b32 v14, 2, v14\nv_lshrrev_b32 v15, 2, v3\nv_add_u32 v14, v14, v15\nv_lshlrev_b32 v14, 8, v14\nv_add_u32 v14, s55, v14')
        a('v_xor_b32 v15, v2, v3')
        for s in range(4):
            a(f'v_xor_b32 v{10+s}, {4*s}, v15\nv_lshl_add_u32 v{10+s}, v{10+s}, 4, v14')
        if bias and not sfx:
            w0 = W[0]
            st0 = (list(a.vm), n_ld[0])
            a('s_getreg_b32 s56, hwreg(HW_REG_XCC_ID, 0, 1)\ns_cmp_eq_u32 s56, 0\ns_cbranch_scc1 L_b0')
            W[0] = bias[0]
            for i in range(KJ, 32): kload(i)
            a('s_branch L_b1\nL_b0:')
            a.vm, n_ld[0] = list(st0[0]), st0[1]
            W[0] = bias[1]
            for i in range(KJ, 32): kload(i)
            W[0] = w0
            a('L_b1:')
        else:
            for i in range(KJ, 32): kload(i)
        a(f'v_and_b32 v8, 7, v1\nv_mul_u32_u24 v14, 272, v8\nv_lshl_add_u32 v14, v2, 4, v14\nv_add_u32 v14, {L_Q}, v14')
        a('v_cmp_gt_u32 vcc, 8, v3\nv_cndmask_b32 v15, 0, -1, vcc\nv_not_b32 v16, v15')
        a(f'v_lshlrev_b32 v17, 3, v8\nv_add_u32 v17, {L_MLW}, v17')
        vn = [0]
        def vload():
            if vn[0] == 32: return
            i = vn[0]; vn[0] += 1
            if i % 4 == 0: a(f's_add_u32 s56, s{88+(i >> 3)}, {(i & 4)*1024}')
            pace()
            a(f'buffer_load_dwordx4 v[{V+4*i}:{V+4*i+3}], v9, s[44:47], s56 offen offset:{1024*(i & 3)}{PL["v"]}', tag=('v', i))
        for i in range(nB1): vload()
        a.vm_wait(('k', 31))
        stamp(2)
        ldsdata('qw' + sfx, [f'ds_read_b128 v[{QL+4*s}:{QL+4*s+3}], v14 offset:{64*s}' for s in range(4)], range(QL, QL+16), 18, 1)
        stamp(3)
        units = [(p, hh, ts) for p in range(2) for hh in range(2) for ts in range(2)]
        def kreads(k):
            p, hh, ts = units[k]
            for s in range(4):
                r = TB + 16*(k & 1) + 4*s
                a(f'ds_read_b128 v[{r}:{r+3}], v{10+s} offset:{(2*p+ts)*8192 + hh*4096}')
        kreads(0); kreads(1)
        vload()
        for k in range(16): a(f'v_and_b32 v{QH+k}, v16, v{QL+k}\nv_and_b32 v{QL+k}, v15, v{QL+k}')
        for k in range(8):
            p, hh, ts = units[k]
            a(f's_waitcnt lgkmcnt({4 if k < 7 else 0})')
            d = S + 8*p + 4*hh
            for s in range(4):
                r = TB + 16*(k & 1) + 4*s; q = (QH if ts else QL) + 4*s
                c = '0' if (ts == 0 and s == 0) else f'v[{d}:{d+3}]'
                a(f'v_mfma_f32_16x16x32_bf16 v[{d}:{d+3}], v[{r}:{r+3}], v[{q}:{q+3}], {c}')
            if k + 2 < 8: kreads(k+2)
            if k in (1, 4, 7): vload()
        a(f's_mov_b32 s57, {SCALE}\ns_mov_b32 s58, {LOG2E}')
        for k in range(0, 16, 2):
            r = S + k
            a(f'v_cvt_pk_bf16_f32 v{r}, v{r}, v{r+1}\nv_and_b32 v{r+1}, 0xffff0000, v{r}\nv_lshlrev_b32 v{r}, 16, v{r}')
            a(f'v_mul_f32 v{r}, s57, v{r}\nv_mul_f32 v{r+1}, s57, v{r+1}')
            a(f'v_cvt_pk_bf16_f32 v{r}, v{r}, v{r+1}\nv_and_b32 v{r+1}, 0xffff0000, v{r}\nv_lshlrev_b32 v{r}, 16, v{r}')
        vload()
        tree('v_max_f32', 'v_max3_f32', range(S, S+16), 18)
        allred_row('v_max_f32', 18, (8,)); allred_xrow('v_max_f32', 18, 20)
        for k in range(16): a(f'v_sub_f32 v{S+k}, v{S+k}, v18\nv_mul_f32 v{S+k}, s58, v{S+k}')
        vload()
        for k in range(16): a(f'v_exp_f32 v{S+k}, v{S+k}')
        a(f'v_add_f32 v19, v{S}, v{S+1}')
        for k in range(2, 16): a(f'v_add_f32 v19, v19, v{S+k}')
        allred_row('v_add_f32', 19, (8,)); allred_xrow('v_add_f32', 19, 20)
        a('s_lshl_b32 s59, s63, 6\nv_add_u32 v20, s59, v17\nds_write_b64 v20, v[18:19]')
        vload()
        for k in range(8): a(f'v_cvt_pk_bf16_f32 v{PP+k}, v{S+2*k}, v{S+2*k+1}')
        stamp(11)
        for p in range(2):
            for k in range(4):
                src = PP + 4*p + k
                a(f'v_and_b32 v{PO+16*p+k}, v15, v{src}')
                a(f'v_mov_b32_dpp v{PO+16*p+4+k}, v{src} row_shr:8 row_mask:0xf bank_mask:0xf bound_ctrl:1')
                a(f'v_mov_b32_dpp v{PO+16*p+8+k}, v{src} row_shl:8 row_mask:0xf bank_mask:0xf bound_ctrl:1')
                a(f'v_and_b32 v{PO+16*p+12+k}, v16, v{src}')
        def pv_pair(pr):
            T, u = pr >> 2, pr & 3
            perms_pair(V+8*pr, V+8*pr+4, TB, u)
            if u == 3:
                for half in range(2):
                    for q in range(4):
                        c = '0' if (T == 0 and half == 0) else f'v[{O+4*q}:{O+4*q+3}]'
                        j = q + 4*half; b = PO + 8*T + 4*half
                        a(f'v_mfma_f32_16x16x32_bf16 v[{O+4*q}:{O+4*q+3}], v[{TB+4*j}:{TB+4*j+3}], v[{b}:{b+3}], {c}')
        def tail_setup1():
            srd(32, 12, 4096*2048); srd(36, 20, 3584*2048)
            a('s_lshr_b32 s52, s2, 3\ns_and_b32 s59, s63, 1\ns_lshl1_add_u32 s52, s52, s59')
            a('s_and_b32 s53, s2, 7\ns_lshr_b32 s57, s63, 1\ns_lshl1_add_u32 s53, s53, s57')
            a(f's_lshl_b32 s57, s53, 7\ns_mul_i32 s48, s52, {56*2048}\ns_add_u32 s48, s48, s57')
            a('s_lshl_b32 s49, s52, 17\ns_add_u32 s49, s49, s57')
            a(f's_lshl_b32 s50, s53, 15\ns_lshl_b32 s51, s52, 7\ns_add_u32 s50, s50, s51\ns_add_u32 s50, s50, {SF}')
            a(f'v_lshrrev_b32 v20, 3, v1\nv_lshlrev_b32 v21, 4, v8\nv_mul_u32_u24 v6, {7*2048}, v20\nv_add_u32 v6, v6, v21')
            a('v_and_b32 v7, 3, v20\nv_lshl_add_u32 v7, v7, 12, v21\nv_and_b32 v20, 4, v20\nv_lshl_add_u32 v7, v20, 14, v7')
        def tail_setup2():
            a('v_and_b32 v10, 6, v1\nv_lshlrev_b32 v10, 12, v10\nv_and_b32 v20, 8, v1\nv_lshl_add_u32 v10, v20, 2, v10\nv_and_b32 v21, 1, v1\nv_lshl_add_u32 v10, v21, 6, v10\nv_lshl_add_u32 v10, v2, 4, v10')
            a(f'v_mov_b32 v21, {OOB}\nv_cmp_gt_u32 vcc, 32, v1\nv_cndmask_b32 v10, v21, v10, vcc')
            a(f'v_and_b32 v21, 1, v1\nv_lshl_add_u32 v11, v2, 1, v21\nv_lshlrev_b32 v11, 4, v11\ns_lshl_b32 s59, s59, 7\ns_add_u32 s59, s59, {L_H}\nv_add_u32 v11, s59, v11')
            a(f'v_mul_u32_u24 v5, 528, v8\nv_lshl_add_u32 v5, v2, 7, v5\nv_lshl_add_u32 v5, v20, 3, v5')
            a(f's_mul_i32 s57, s63, 4224\ns_add_u32 s57, s57, {L_OR}\nv_add_u32 v5, s57, v5')
            a(f's_lshl_b32 s57, s63, 2\ns_add_u32 s57, s57, {L_F+F3}\nv_mov_b32 v13, s57\nv_mov_b32 v12, 0xfffff000')
            get_tag(20); tags(12, SH12)
        FA, R = 36, TB
        def red_setup():
            a(f'v_lshrrev_b32 v21, 5, v1\nv_add_lshl_u32 v14, v21, v1, 4\ns_mul_i32 s57, s63, 1056\ns_add_u32 s57, s57, {L_OR}\nv_add_u32 v14, s57, v14')
            a(f'v_mul_u32_u24 v15, 4224, v2\nv_add_u32 v15, {L_ORW}, v15')
            a('v_lshlrev_b32 v16, 10, v2\nv_lshl_add_u32 v16, v3, 3, v16')
            a('s_and_b32 s57, s2, 7\ns_bfe_u32 s59, s2, 0x20003\ns_lshl2_add_u32 s57, s57, s59\ns_lshl2_add_u32 s57, s57, s63\ns_lshl_b32 s57, s57, 5')
            a(f's_lshr_b32 s59, s2, 5\ns_add_u32 s57, s57, s59\ns_lshl_b32 s93, s57, 7\ns_add_u32 s93, s93, {OP}')
            a('v_mov_b32 v22, s96\nv_lshlrev_b32 v23, 1, v3\nv_alignbit_b32 v22, v22, v22, v23\nv_and_b32 v18, 0x10001, v22\nv_alignbit_b32 v19, v22, v22, 1\nv_and_b32 v19, 0x10001, v19')
            a(f's_lshl_b32 s57, s63, 4\ns_add_u32 s57, s57, {L_MLW}\nv_lshl_add_u32 v21, v21, 3, s57\nv_mov_b32 v17, 0xfffefffe\nv_mov_b32 v22, {L_F}')
            ldsdata('mlf' + sfx, [f'ds_read_b32 v{FA+2*w}, v21 offset:{64*w}' for w in range(4)] + [f'ds_read_b32 v{FA+1}, v22 offset:{FM}'], [FA, FA+1, FA+2, FA+4, FA+6], 20, 0)
            a(f'v_readfirstlane_b32 s92, v{FA+1}')
            if prew:
                n0_ = len(a.vm)
                a(f's_cmp_eq_u32 s92, 1\ns_cbranch_scc0 L_pw{sfx}')
                if 'o' in prew: a('v_not_b32 v24, v18\nv_not_b32 v25, v19\nbuffer_store_dwordx2 v[24:25], v16, s[28:31], s93 offen')
                if 's' in prew:
                    for d in range(4): a(f'v_not_b32 v{28+d}, s{97+d}')
                    a('buffer_store_dwordx4 v[28:31], v10, s[28:31], s50 offen')
                a(f'L_pw{sfx}:')
                a.vm = a.vm[:n0_]
            a(f'v_max3_f32 v20, v{FA}, v{FA+2}, v{FA+4}\nv_max_f32 v20, v20, v{FA+6}\nv_mul_f32 v20, s58, v20\nv_ceil_f32 v20, v20')
            for w in range(4): a(f'v_fma_f32 v{FA+2*w}, v{FA+2*w}, s58, -v20\nv_exp_f32 v{FA+2*w}, v{FA+2*w}\nv_mov_b32 v{FA+2*w+1}, v{FA+2*w}')
        def red_out():
            a(f'L_or{sfx}:\nds_read_b32 v20, v15')
            for w in range(4): a(f'ds_read_b128 v[{R+4*w}:{R+4*w+3}], v14 offset:{4224*w}')
            a('s_waitcnt lgkmcnt(4)\nv_cmp_eq_u32 vcc, -1, v20')
            retry(f'L_or{sfx}', f'L_or{sfx}_ok', 0)
            for w in range(4):
                a(f's_waitcnt lgkmcnt({3-w})')
                f = f'v[{FA+2*w}:{FA+2*w+1}]'
                for k in (0, 2):
                    if w == 0: a(f'v_pk_mul_f32 v[{24+k}:{25+k}], v[{R+k}:{R+k+1}], {f}')
                    else: a(f'v_pk_fma_f32 v[{24+k}:{25+k}], v[{R+4*w+k}:{R+4*w+k+1}], {f}, v[{24+k}:{25+k}]')
            for k in range(4): a(f'v_add_u32 v{24+k}, 0x10000, v{24+k}')
            a('v_perm_b32 v24, v25, v24, s61\nv_perm_b32 v25, v27, v26, s61\nv_and_or_b32 v24, v24, v17, v18\nv_and_or_b32 v25, v25, v17, v19')
            n0_ = len(a.vm)
            lstore('o', 'sto' + sfx, 'buffer_store_dwordx2 v[24:25], v16, s[28:31], s93 offen')
            a.vm = a.vm[:n0_] + ['ost']
            stamp(9)
        def last_pair():
            La, Lb, u, T = V+120, V+124, 3, 3
            def pm(j): a(f'v_perm_b32 v{TB+4*j+u}, v{Lb+(j >> 1)}, v{La+(j >> 1)}, s{60+(j & 1)}')
            def mf(q):
                for half in range(2):
                    j = q + 4*half; b = PO + 8*T + 4*half
                    a(f'v_mfma_f32_16x16x32_bf16 v[{O+4*q}:{O+4*q+3}], v[{TB+4*j}:{TB+4*j+3}], v[{b}:{b+3}], v[{O+4*q}:{O+4*q+3}]')
            def wr(q): a(f'ds_write_b128 v5, v[{O+4*q}:{O+4*q+3}] offset:{16*q}')
            stamp(5)
            pm(0); pm(4); pm(1); pm(5); mf(0); pm(2); pm(6); mf(1); pm(3); pm(7); mf(2); mf(3)
            for q in range(4): wr(q)
            red_out()
        donep = [0]
        def pvw(pr):
            if pr < 15: pv_pair(pr)
            else: last_pair()
            donep[0] = pr + 1
            if pr == 3:
                for k in range(4): a(f'v_mov_b32 v{V+28+k}, 0')
        work = [(None, tail_setup1), (None, tail_setup2)] + [(('v', 2*pr+1), (lambda pr=pr: pvw(pr))) for pr in range(16)]
        work.insert(len(work) - rsat, (None, red_setup))
        seq = [('v', i) for i in range(vn[0], 32)] + [('d', i) for i in range(7)] + [('o', i) for i in range(8)]
        def force(n):
            while donep[0] < n:
                t, f = work.pop(0)
                if t: a.vm_wait(t)
                f()
        def run_seq(seq, work, f3):
            for kind, i in seq:
                if kind == 'v': vload()
                elif kind == 'd':
                    force(4)
                    if i == 0: stamp(4)
                    pace()
                    a(f'buffer_load_dwordx4 v[{V+4*i}:{V+4*i+3}], v6, s[36:39], s48 offen offset:{2048*(i & 1)}{PL["d"]}', tag=('d', i))
                    if i & 1: a('s_add_u32 s48, s48, 4096')
                    if i == f3: a('ds_write_b32 v13, v13')
                else:
                    force(8)
                    if i & 3: a('s_add_u32 s49, s49, 16384')
                    elif i: a('s_sub_u32 s49, s49, 49152')
                    pace()
                    a(f'buffer_load_dwordx4 v[{V+32+4*i}:{V+32+4*i+3}], v7, s[32:35], s49 offen offset:{2048*(i >> 2)}{PL["o"]}', tag=('o', i))
                    if i + 7 == f3: a('ds_write_b32 v13, v13')
                st = [t for t in a.vm if isinstance(t, tuple)]
                landed = st[:len(st) - sched(W[0], n_ld[0]-1)]
                k = 0
                while work and k < 2 and (work[0][0] is None or work[0][0] in landed):
                    work.pop(0)[1](); k += 1
        if sfx and defer:
            run_seq(seq[:-defer], work, 14 - defer)
            force(16)
            a(f'v_mov_b32 v24, {L_F+F3E}')
            ldsdata('rdone', ['ds_read_b128 v[20:23], v24'], range(20, 24), 25, 1)
            W[0] = ((0, 15),)
            run_seq(seq[-defer:], work, None)
        elif hold and not sfx:
            nb, wa, wait = hold
            run_seq(seq[:nb-15], work, f3at)
            force(16)
            if wait:
                a.vm_wait(('d', nb-1))
                if gap == 'ack': a('s_waitcnt vmcnt(0)')
                elif gap: a(f's_sleep {gap}')
            W[0] = ((0, wa),)
            run_seq(seq[nb-15:], work, f3at)
        else:
            run_seq(seq, work, f3at)
            force(16)
    vm0, n0 = list(a.vm), n_ld[0]
    a('s_cmp_ge_u32 s2, 224\ns_cbranch_scc1 L_light')
    phase1(1)
    rest('', nB1)
    a('L_varend:')
    a.vm = [t for t in a.vm if t != 'ost']
    ldsdata('hw', [f'ds_read_b128 v[{X}:{X+3}], v11'], range(X, X+4), 20, 1)
    a.vm_wait(('d', 6))
    for f in tile_ops(V, X, True): f()
    fold_cols(D, 20)
    for u in range(3 if fastwo else 4):
        a.vm_wait(('o', 2*u+1))
        perms_pair(V+32+8*u, V+32+8*u+4, TB, u)
    oread = f'ds_read_b128 v[{X}:{X+3}], v11 offset:{L_O16-L_H}'
    order = (0, 6, 1, 7, 2, 4, 3, 5)
    def womf(j): a(f'v_mfma_f32_16x16x32_bf16 v[{D+4*j}:{D+4*j+3}], v[{X}:{X+3}], v[{TB+4*j}:{TB+4*j+3}], 0')
    if fastwo:
        a.vm_wait(('o', 6))
        a(oread)
        a.vm_wait(('o', 7))
        stamp(8)
        for j in order: a(f'v_perm_b32 v{TB+4*j+3}, v{V+60+(j >> 1)}, v{V+56+(j >> 1)}, s{60+(j & 1)}')
        a('L_ow:\ns_waitcnt lgkmcnt(0)')
        umax(range(X, X+4), 24)
        a('v_cmp_eq_u32 vcc, -1, v24\ns_cbranch_vccz L_ow_ok\n' + oread)
        again('L_ow')
        a('s_waitcnt lgkmcnt(0)\nL_ow_ok:')
    else:
        stamp(8)
        ldsdata('ow', [oread], range(X, X+4), 24, 0)
    for j in order: womf(j)
    fold_cols(D, 20, '0x1')
    a('s_cmp_eq_u32 s92, 1')
    put_tag(20, 4, 12, 12)
    if 's' in local:
        a('s_cbranch_scc0 L_sfar\nbuffer_store_dwordx4 v[20:23], v10, s[28:31], s50 offen' + sfpol)
        stamp(6)
        finish()
        a('L_sfar:')
    a('buffer_store_dwordx4 v[20:23], v10, s[28:31], s50 offen sc1')
    stamp(6)
    finish()

    a('L_light:')
    a.vm = list(vm0); n_ld[0] = n0; W[0] = winL; nF[0] = nF1L
    phase1(0)
    rest('L', nB1L)
    a('s_branch L_varend')

    def optags():
        a('v_mov_b32 v20, s96\nv_and_b32 v19, 7, v1\nv_lshlrev_b32 v21, 2, v19\nv_alignbit_b32 v20, v20, v20, v21')
        for d in range(4): a(f'v_alignbit_b32 v{28+d}, v20, v20, {d}\nv_and_b32 v{28+d}, 0x10001, v{28+d}')
    a('L_H0:')
    t = 20
    if not h0late: a('s_barrier')
    zstamps(); consts()
    a(f's_waitcnt vmcnt(0)\nv_xor_b32 v14, {0xffffffff ^ CMIX}, v14\nv_mov_b32 v13, {L_F}\nv_readfirstlane_b32 s96, v14')
    a(f's_getreg_b32 s52, hwreg(HW_REG_XCC_ID, 0, 4)\ns_xor_b32 s53, s96, 0x5a5a5a50\ns_and_b32 s53, s53, -16\ns_or_b32 s53, s53, s52')
    a(f's_and_b32 s54, s2, 7\ns_lshl_b32 s54, s54, 8\ns_and_b32 s55, s2, -8\ns_add_u32 s54, s54, s55\ns_add_u32 s54, s54, {XC}')
    a(f'v_mov_b32 v15, s53\nv_mov_b32 v16, {OOB}\nv_cmp_ne_u32 vcc, 0, v1\nv_cndmask_b32 v16, 0, v16, vcc')
    a('buffer_store_dwordx2 v[14:15], v16, s[28:31], s54 offen')
    for d in range(8):
        a(f'v_lshlrev_b32 v{t+2*d}, 16, v{XS+d}\nv_and_b32 v{t+2*d+1}, 0xffff0000, v{XS+d}')
    a(f'v_add_f32 v8, v{t}, v{t+1}')
    for k in range(2, 16): a(f'v_add_f32 v8, v8, v{t+k}')
    allred_row('v_add_f32', 8); allred_xrow('v_add_f32', 8, 9)
    a('v_mul_f32 v8, 0x3a800000, v8')
    a(f'v_sub_f32 v9, v{t}, v8\nv_mul_f32 v10, v9, v9')
    for k in range(1, 16): a(f'v_sub_f32 v9, v{t+k}, v8\nv_fmac_f32 v10, v9, v9')
    allred_row('v_add_f32', 10); allred_xrow('v_add_f32', 10, 9)
    a('v_mul_f32 v10, 0x3a800000, v10')
    rbf(8); rbf(10)
    a('v_add_f32 v10, 0x3727c5ac, v10'); rbf(10)
    a('v_sqrt_f32 v10, v10'); rbf(10)
    a('v_rcp_f32 v11, v10\nv_fma_f32 v12, -v10, v11, 1.0\nv_fma_f32 v11, v12, v11, v11')
    for d in range(8):
        r = t + 2*d
        a(f'v_sub_f32 v{r}, v{r}, v8\nv_sub_f32 v{r+1}, v{r+1}, v8')
        a(f'v_cvt_pk_bf16_f32 v{r}, v{r}, v{r+1}\nv_and_b32 v{r+1}, 0xffff0000, v{r}\nv_lshlrev_b32 v{r}, 16, v{r}')
        a(f'v_mul_f32 v{r}, v{r}, v11\nv_mul_f32 v{r+1}, v{r+1}, v11\nv_cvt_pk_bf16_f32 v{XS+d}, v{r}, v{r+1}')
    if h0late: a('s_barrier')
    a(f'v_add_u32 v7, {L_X}, v7\nds_write_b128 v7, v[{XS}:{XS+3}]\nds_write_b128 v7, v[{XS+4}:{XS+7}] offset:16')
    a(f'ds_write_b32 v13, v14 offset:{FT}\ns_waitcnt lgkmcnt(0)')
    a(f'ds_write_b32 v13, v13 offset:{F0}')
    stamp(2)
    a('v_and_b32 v18, 7, v1')
    a(f's_mul_i32 s52, s55, 56\ns_add_u32 s52, s52, {HF}')
    ldswait('sdone', L_MLW, 4)
    a('v_min_u32 v12, 6, v18\nv_lshrrev_b32 v10, 3, v1\nv_mul_u32_u24 v10, 7, v10\nv_add_lshl_u32 v10, v10, v12, 2')
    a('v_lshlrev_b32 v12, 2, v10\nv_and_b32 v12, 16, v12\nv_bfe_u32 v12, s96, v12, 16')
    gather('hg', [(f'buffer_load_dword v{32+n}, v10, s[28:31], s52 offen offset:{224*n} sc1', 32+n, 1) for n in range(2)], 20, lambda k, d: 'v12', '0xffff', 22, sleep, 'instr')
    a(f'v_cmp_ne_u32 vcc, 7, v18\nv_and_b32 v10, 62, v1\nv_lshlrev_b32 v10, 1, v10\nv_add_u32 v10, {L_H}, v10')
    for n in range(2):
        a(f'v_cndmask_b32 v{20+n}, 0, v{20+n}, vcc')
        a(f'v_mov_b32_dpp v22, v{20+n} quad_perm:[0,0,2,2] row_mask:0xf bank_mask:0xf\nv_mov_b32_dpp v23, v{20+n} quad_perm:[1,1,3,3] row_mask:0xf bank_mask:0xf')
        a(f'v_perm_b32 v{20+n}, v23, v22, s61\nds_write_b32 v10, v{20+n} offset:{128*n}')
    stamp(4)
    a('s_cmp_ge_u32 s2, 224\ns_cbranch_scc1 L_ofin\nL_H0b:')
    if og16:
        a(f's_and_b32 s50, s2, -8\ns_lshl_b32 s50, s50, 8\ns_add_u32 s50, s50, {OG}')
        optags()
        a('v_and_b32 v10, 1, v1\nv_lshlrev_b32 v10, 4, v10\nv_mov_b32 v11, 0x3f80\nv_lshlrev_b32 v10, v10, v11\nv_bfe_u32 v11, v1, 1, 3')
        for d in range(4): a(f'v_cmp_eq_u32 vcc, {d}, v11\nv_cndmask_b32 v{24+d}, 0, v10, vcc')
        a(f'v_and_b32 v10, 15, v1\nv_lshlrev_b32 v10, 4, v10\nv_and_b32 v8, 16, v1\nv_lshrrev_b32 v8, 1, v8\nv_add_u32 v10, v10, v8\nv_add_u32 v10, {L_O16}, v10')
        a(f'v_lshlrev_b32 v8, 4, v1\nv_mov_b32 v16, {L_F+F3}')
        ldsdata('f3', ['ds_read_b128 v[40:43], v16'], range(40, 44), 22, 2)
        stamp(3)
        gather('og', [(f'buffer_load_dwordx4 v[{64+4*n}:{67+4*n}], v8, s[28:31], s50 offen offset:{1024*n} sc1', 64+4*n, 4) for n in range(2)],
               40, lambda k, d: f'v{28+d}', '0x10001', 20, slF, 'all',
               each=lambda n, c0: a(f'v_mfma_f32_16x16x32_bf16 v[48:51], v[24:27], v[{c0}:{c0+3}], {"v[48:51]" if n else "0"}'))
        a('s_mov_b32 exec_hi, 0\ns_nop 1\nv_cvt_pk_bf16_f32 v20, v48, v49\nv_cvt_pk_bf16_f32 v21, v50, v51\nds_write_b64 v10, v[20:21]')
    else:
        a(f's_and_b32 s50, s2, -8\ns_lshl_b32 s50, s50, 9\ns_add_u32 s50, s50, {OG}')
        tags(12, SH12)
        a(f'v_and_b32 v10, 31, v1\nv_lshlrev_b32 v10, 3, v10\nv_lshrrev_b32 v8, 5, v1\nv_lshl_add_u32 v10, v8, 2, v10\nv_add_u32 v10, {L_O16}, v10')
        a(f'v_lshlrev_b32 v8, 4, v1\nv_mov_b32 v16, {L_F+F3}')
        ldsdata('f3', ['ds_read_b128 v[40:43], v16'], range(40, 44), 22, 2)
        stamp(3)
        gather('og', [(f'buffer_load_dwordx4 v[{64+4*n}:{67+4*n}], v8, s[28:31], s50 offen offset:{1024*n} sc1', 64+4*n, 4) for n in range(4)],
               40, lambda k, d: f's{97+d}', '0xfff', 22, slF, mO)
        for k in (0, 2): a(f'v_pk_add_f32 v[{40+k}:{41+k}], v[{40+k}:{41+k}], v[{44+k}:{45+k}]\nv_pk_add_f32 v[{48+k}:{49+k}], v[{48+k}:{49+k}], v[{52+k}:{53+k}]')
        for k in (0, 2): a(f'v_pk_add_f32 v[{40+k}:{41+k}], v[{40+k}:{41+k}], v[{48+k}:{49+k}]')
        a('v_permlane32_swap_b32 v40, v42\nv_permlane32_swap_b32 v41, v43\nv_pk_add_f32 v[40:41], v[40:41], v[42:43]')
        a('v_cvt_pk_bf16_f32 v20, v40, v41\nds_write_b32 v10, v20')
    stamp(8)
    a('s_waitcnt lgkmcnt(0)')
    finish()

    a('L_H123:')
    if tlbpf:
        a('s_cmp_lg_u32 s3, 1\ns_cbranch_scc1 L_notlb')
        a('s_cmp_lt_u32 s2, 224\ns_cbranch_scc1 L_notlb')
        a('s_bfe_u32 s52, s2, 0x20003\ns_and_b32 s55, s2, 7\ns_lshl_b32 s53, s55, 15')
        a('s_lshl_b32 s54, s52, 21\ns_add_u32 s54, s54, s53\nv_mov_b32 v5, s54\nv_mov_b32 v7, 0')
        a('s_mov_b64 exec, 1\ns_waitcnt lgkmcnt(0)')
        for k, c in enumerate(tlbpf):
            v, p = {'g': (5, 16), 'u': (5, 18), 'd': (5, 20), 'o': (5, 12), 'y': (7, 22)}[c]
            a(f'global_load_dword v{240+k}, v{v}, s[{p}:{p+1}]')
        a('s_mov_b64 exec, -1\nL_notlb:')
    if stamps: a('s_mov_b64 s[66:67], 0')
    a('v_mov_b32 v16, -1\nv_mov_b32 v17, -1\nv_mov_b32 v18, -1\nv_mov_b32 v19, -1')
    a(f'v_lshlrev_b32 v13, 4, v1\nv_add_u32 v12, {L_Q}, v13')
    for k in range(7): a(f'ds_write_b128 v12, v[16:19] offset:{1024*k}')
    assert L_Q + 7168 == L_END and ormode == 1 and mlgate == 'f3' and nB0 <= nXC
    a(f'v_lshrrev_b32 v12, 4, v1\nv_mul_u32_u24 v12, 4224, v12\nv_add_u32 v12, {L_ORW}, v12\nds_write_b32 v12, v16')
    a('s_waitcnt lgkmcnt(0)\ns_barrier')
    zstamps(); consts()
    a(f'v_mov_b32 v9, {OOB}\nv_mov_b32 v15, 0xffffff00\nv_lshrrev_b32 v2, 4, v1\nv_and_b32 v3, 15, v1\nv_and_b32 v14, 7, v1')
    a('s_and_b32 s55, s2, 7\ns_lshr_b32 s54, s2, 3')
    ldswait('f0h', L_F+F0, 4)
    get_tag(11); tags(8, (0, 8, 16, 24))
    a('s_cmp_eq_u32 s3, 2\ns_cbranch_scc1 L_H2')
    a('s_cmp_eq_u32 s3, 3\ns_cbranch_scc1 L_H3')
    L, C = 128, 144
    qjob('s53', 's58', 's59')
    a(f's_lshl_b32 s59, s53, 12\ns_add_u32 s59, s59, {QP}\ns_lshl_b32 s58, s58, 9\ns_add_u32 s58, s58, s59')
    ldswait('fm1', L_F+FM, 2)
    a('v_readfirstlane_b32 s92, v11')
    a(f'v_add_u32 v10, {L_QR}, v13\nv_cmp_gt_u32 vcc, 32, v1\nv_cndmask_b32 v8, v9, v13, vcc')
    def sum_halves(r):
        for k in range(4): a(f'v_mov_b32 v{r+4+k}, v{r+k}')
        for k in range(4): a(f'v_permlane32_swap_b32 v{r+4+k}, v{r+k}')
        for k in range(4): a(f'v_add_f32 v{r+k}, v{r+k}, v{r+4+k}')
    ldsdata('qr', [f'ds_read_b128 v[{L+4*n}:{L+4*n+3}], v10 offset:{1024*n}' for n in range(2)], range(L, L+8), 20, 2)
    for k in range(4): a(f'v_add_f32 v{L+k}, v{L+k}, v{L+4+k}')
    sum_halves(L)
    put_tag(L, 4, 8, 15)
    lstore('q', 'stq', f'buffer_store_dwordx4 v[{L}:{L+3}], v8, s[28:31], s58 offen')
    stamp(2)
    a('s_and_b32 s88, s96, 0xffff\ns_lshr_b32 s89, s96, 16')
    a('s_cmp_lt_u32 s2, 224\ns_cbranch_scc1 L_qf0')
    a(f's_lshl_b32 s57, s53, 9\ns_add_u32 s57, s57, {QF}\ns_waitcnt vmcnt(0)')
    gather('qp', [(f'buffer_load_dwordx4 v[{L+4*n}:{L+4*n+3}], v13, s[28:31], s59 offen offset:{1024*n} sc1', L+4*n, 4) for n in range(4)],
           C, lambda k, d: f's{97+d}', '0xff', 20, 4, 'instr')
    for k in range(4): a(f'v_add_f32 v{C+k}, v{C+k}, v{C+4+k}\nv_add_f32 v{C+8+k}, v{C+8+k}, v{C+12+k}')
    for k in range(4): a(f'v_add_f32 v{C+k}, v{C+k}, v{C+8+k}')
    sum_halves(C)
    for k in range(4): a(f'v_cvt_pk_bf16_f32 v{20+k}, v{C+k}, v{C+k}\nv_lshlrev_b32 v{20+k}, 16, v{20+k}\nv_or_b32 v{20+k}, s{88+(k & 1)}, v{20+k}')
    a('buffer_store_dwordx4 v[20:23], v8, s[28:31], s57 offen sc1')
    stamp(10)
    a('s_waitcnt vmcnt(0)')
    a('L_qf0:')
    ldswait('f1', L_F+F1, 2)
    stamp(3)
    gj('s52', None, None)
    a(f's_lshl_b32 s52, s52, 12\ns_add_u32 s52, s52, {QF}')
    gather('qf', [(f'buffer_load_dwordx4 v[{L+4*n}:{L+4*n+3}], v13, s[28:31], s52 offen offset:{1024*n} sc1', L+4*n, 4) for n in range(4)],
           C, lambda k, d: f's{88+(d & 1)}', '0xffff', 20, sleep, 'lane')
    a(f'v_lshrrev_b32 v11, 5, v1\nv_lshlrev_b32 v11, 1, v11\nv_add_lshl_u32 v11, v11, v1, 3\nv_add_u32 v11, {L_Q}, v11')
    for n in range(4):
        a(f'v_perm_b32 v{20+2*n}, v{C+4*n+1}, v{C+4*n}, s61\nv_perm_b32 v{21+2*n}, v{C+4*n+3}, v{C+4*n+2}, s61')
        a(f'ds_write_b64 v11, v[{20+2*n}:{21+2*n}] offset:{544*n}')
    stamp(4)
    a('s_cmp_ge_u32 s2, 224\ns_cbranch_scc1 L_ofin\nL_H1b:')
    srd(40, 22, 2048); srd(44, 4, 2048)
    a('s_lshl_b32 s50, s55, 5\ns_add_u32 s50, s50, s54\ns_lshl_b32 s55, s50, 3')
    a(f's_lshr_b32 s51, s50, 2\ns_lshl_b32 s51, s51, 13\ns_and_b32 s50, s50, 3\ns_lshl_b32 s50, s50, 5\ns_add_u32 s50, s50, s51\ns_add_u32 s50, s50, {SF}\ns_add_u32 s51, s50, 4096')
    a('v_lshrrev_b32 v10, 1, v1\nv_lshlrev_b32 v10, 7, v10\nv_and_b32 v12, 1, v1\nv_lshl_add_u32 v10, v12, 4, v10\nv_lshlrev_b32 v12, 1, v2')
    a('buffer_load_ushort v15, v12, s[44:47], s55 offen')
    if outpf: a('buffer_load_ushort v14, v12, s[40:43], s55 offen')
    a('v_cmp_eq_u32 vcc, 0, v3\nv_cndmask_b32 v13, v9, v12, vcc')
    a(f's_xor_b32 s57, s96, {CMIX}\nv_mov_b32 v17, s57\nv_or_b32 v18, s2, v1\nv_mov_b32 v19, {EP}\nv_cmp_eq_u32 vcc, 0, v18\nv_cndmask_b32 v16, v9, v19, vcc')
    tags(12, SH12)
    a('s_waitcnt vmcnt(0)\nv_lshlrev_b32 v15, 16, v15')
    ldswait('o16', L_O16, 1)
    if dlS: a(f's_sleep {dlS}')
    stamp(8)
    sl = [f'buffer_load_dwordx4 v[{36+4*n}:{39+4*n}], v10, s[28:31], s{50+n} offen sc1' for n in range(2)]
    if not pipe:
        gather('sg', [(sl[n], 36+4*n, 4) for n in range(2)], 28, lambda k, d: f's{97+d}', '0xfff', 20, slS, mS)
    else:
        a(sl[0] + '\n' + sl[1] + '\ns_mov_b64 s[88:89], -1\ns_mov_b64 s[90:91], -1')
        a('L_sg:')
        a(f's_or_b64 exec, s[88:89], 1\n{sl[0]}\ns_or_b64 exec, s[90:91], 1\n{sl[1]}\ns_mov_b64 exec, -1')
        a(f's_waitcnt vmcnt({2*pipe})')
        for n in range(2):
            for d in range(4): a(f'v_xor_b32 v{28+4*n+d}, s{97+d}, v{36+4*n+d}')
            orall(range(28+4*n, 32+4*n), 20+n)
            a(f'v_and_b32 v{20+n}, 0xfff, v{20+n}\nv_cmp_ne_u32 s[{88+2*n}:{89+2*n}], 0, v{20+n}')
        a('s_or_b64 vcc, s[88:89], s[90:91]\ns_cbranch_scc0 L_sg_ok')
        again('L_sg')
        a('L_sg_ok:')
    stamp(9)
    a('v_pk_add_f32 v[28:29], v[28:29], v[32:33]\nv_pk_add_f32 v[30:31], v[30:31], v[34:35]')
    red4(28); allred_row('v_add_f32', 28, (8, 4, 2))
    rbf(28)
    a('v_mul_f32 v25, 0xbfb8aa3b, v28\nv_exp_f32 v25, v25\nv_add_f32 v25, 1.0, v25\nv_rcp_f32 v25, v25\nv_mul_f32 v24, v28, v25')
    rbf(24)
    a('v_mul_f32_dpp v28, v24, v28 quad_perm:[1,1,3,3] row_mask:0xf bank_mask:0xf'); rbf(28)
    a('v_add_f32 v28, v28, v15\nv_cvt_pk_bf16_f32 v28, v28, v28')
    if probe:
        a('s_lshl_b32 s52, s2, 7')
        for base, off, own in probe:
            a(f's_add_u32 s53, s52, {off}\nv_mov_b32 v30, {"s53" if own else off}\nglobal_load_dword v31, v30, s[{base}:{base+1}]\ns_waitcnt vmcnt(0)')
    a('buffer_store_short v28, v13, s[40:43], s55 offen' + outpol)
    a('buffer_store_dword v17, v16, s[28:31], 0 offen sc1')
    finish()
    a('L_H2:')
    a('s_cmp_ge_u32 s2, 224\ns_cbranch_scc1 L_nogu')
    for jb in range(2):
        gujob(jb, 's58', 's52', 's53', 's59', f'gj{jb}')
        a(f's_lshl1_add_u32 s58, s58, s52\ns_lshl3_add_u32 s58, s58, s53\ns_lshl_b32 s{56+jb}, s58, 9')
    a('s_sub_u32 s57, s57, 512')
    ldswait('fm2', L_F+FM, 4)
    a('v_readfirstlane_b32 s92, v11\ns_and_b32 s58, s2, 0xc1\ns_cmp_eq_u32 s58, 0xc1\ns_cselect_b32 s92, 0, s92')
    a('v_mov_b32 v8, s57\nv_mov_b32 v10, s56\nv_cmp_gt_u32 vcc, 32, v1\nv_cndmask_b32 v8, v8, v10, vcc\nv_add_u32 v8, v8, v13')
    a(f'v_and_b32 v10, 32, v1\nv_lshl_add_u32 v10, v10, 4, v13\nv_add_u32 v10, {L_GR}, v10')
    ldsdata('gr', [f'ds_read_b128 v[{L+4*n}:{L+4*n+3}], v10 offset:{512*n}' for n in range(2)], range(L, L+8), 20, 4)
    for k in range(4): a(f'v_add_f32 v{L+k}, v{L+k}, v{L+4+k}')
    put_tag(L, 4, 8, 15)
    assert GU == 0
    lstore('g', 'stg', f'buffer_store_dwordx4 v[{L}:{L+3}], v8, s[28:31], 0 offen')
    stamp(2)
    a('s_branch L_hget')
    a('L_nogu:')
    a('s_and_b32 s53, s2, 0xf9\ns_cmp_eq_u32 s53, 0xf9\ns_cbranch_scc1 L_hget')
    qjob('s53', 's56', 's57')
    a('s_bfe_u32 s56, s2, 0x20001\ns_add_u32 s56, s56, 24\ns_cmp_ge_u32 s2, 248\ns_cselect_b32 s53, s56, s53')
    a(f's_lshl_b32 s56, s53, 13\ns_add_u32 s57, s56, 4096\ns_lshl_b32 s58, s53, 9\ns_add_u32 s58, s58, {HF}')
    a('s_and_b32 s88, s96, 0xffff\ns_lshr_b32 s89, s96, 16\nv_cmp_gt_u32 vcc, 32, v1\nv_cndmask_b32 v8, v9, v13, vcc')
    ldswait('qseen', L_Q, 4)
    C2 = 160
    gather('gug', [(f'buffer_load_dwordx4 v[{L+4*n}:{L+4*n+3}], v13, s[28:31], s{56+(n >> 2)} offen offset:{1024*(n & 3)} sc1', L+4*n, 4) for n in range(8)],
           C2, lambda k, d: f's{97+d}', '0xff', 20, 4, 'instr')
    for b in (C2, C2+16):
        for k in range(4): a(f'v_add_f32 v{b+k}, v{b+k}, v{b+4+k}\nv_add_f32 v{b+8+k}, v{b+8+k}, v{b+12+k}')
        for k in range(4): a(f'v_add_f32 v{b+k}, v{b+k}, v{b+8+k}')
        sum_halves(b)
    for k in range(4):
        rbf(C2+k); rbf(C2+16+k); silu(C2+k, 24); rbf(C2+k)
        a(f'v_mul_f32 v{20+k}, v{C2+k}, v{C2+16+k}'); rbf(20+k)
        a(f'v_or_b32 v{20+k}, s{88+(k & 1)}, v{20+k}')
    a('buffer_store_dwordx4 v[20:23], v8, s[28:31], s58 offen sc1')
    stamp(10)
    a('L_hget:')
    a('s_branch L_H23')
    a('L_H3:')
    a(f's_getreg_b32 s52, hwreg(HW_REG_XCC_ID, 0, 4)\ns_xor_b32 s53, s96, 0x5a5a5a50\ns_and_b32 s53, s53, -16')
    a(f's_lshl_b32 s56, s55, 8\ns_add_u32 s56, s56, {XC}\nv_and_b32 v10, 31, v1\nv_lshlrev_b32 v10, 3, v10')
    a(f's_or_b32 s53, s53, s52\ns_mov_b32 s57, {xctries}')
    ldswait('f4', L_F+F4, 2)
    a('L_xc:\nbuffer_load_dwordx2 v[32:33], v10, s[28:31], s56 offen sc1\ns_mov_b32 s52, 1\ns_waitcnt vmcnt(0)')
    a('v_xor_b32 v20, s96, v32\nv_xor_b32 v21, s53, v33\nv_or_b32 v20, v20, v21\nv_cmp_ne_u32 vcc, 0, v20\ns_cbranch_vccz L_xc_ok')
    a('s_mov_b32 s52, 0\ns_sub_u32 s57, s57, 1\ns_cmp_lg_u32 s57, 0\ns_cbranch_scc1 L_xc\nL_xc_ok:')
    a(f'v_mov_b32 v10, {L_F}\nv_mov_b32 v11, s52\nds_write_b32 v10, v11 offset:{FM}')
    stamp(2)
    a(f'v_lshlrev_b32 v10, 3, v14\nv_add_u32 v11, {L_MLW}, v10\ns_mov_b32 s88, {LOG2E}\ns_lshr_b32 s90, s96, 16\ns_and_b32 s97, s96, 0xfff')
    gj('s52', 's53', 's89')
    a(f's_lshl_b32 s89, s52, 6\ns_add_u32 s89, s89, s53\ns_lshl_b32 s89, s89, 6\ns_add_u32 s89, s89, {ML}\nv_cmp_gt_u32 vcc, 8, v1\nv_cndmask_b32 v10, v9, v10, vcc\nv_mov_b32 v15, 0xfffff000')
    ldsdata('mlp_w', [f'ds_read_b64 v[{20+2*w}:{21+2*w}], v11 offset:{64*w}' for w in range(4)], range(20, 28), 28, 4)
    a('v_max3_f32 v28, v20, v22, v24\nv_max_f32 v28, v28, v26\nv_mul_f32 v30, s88, v28\nv_ceil_f32 v30, v30')
    for w in range(4): a(f'v_fma_f32 v{20+2*w}, v{20+2*w}, s88, -v30\nv_exp_f32 v{20+2*w}, v{20+2*w}')
    a('v_mul_f32 v33, v20, v21\nv_fmac_f32 v33, v22, v23\nv_fmac_f32 v33, v24, v25\nv_fmac_f32 v33, v26, v27')
    put_tag(33, 1, 12, 15)
    a('v_or_b32 v32, s90, v28')
    a('buffer_store_dwordx2 v[32:33], v10, s[28:31], s89 offen sc1')
    stamp(4)
    a('L_H23:')
    a('s_cmp_ge_u32 s2, 224\ns_cbranch_scc1 L_ofin')
    finish()
    a('L_ofin:')
    MR, MC, SEL, G, GC, DD = 32, 36, 40, 64, 80, 96
    optags()
    a('s_and_b32 s88, s2, 7\ns_bfe_u32 s89, s2, 0x20003')
    a(f's_lshl_b32 s57, s89, 12\ns_lshl_b32 s53, s3, 4\ns_add_u32 s57, s57, s53\ns_add_u32 s57, s57, {ML}')
    a('v_add_u32 v7, s88, v19\nv_and_b32 v7, 7, v7\nv_and_b32 v8, 56, v1\nv_add_lshl_u32 v7, v7, v8, 6')
    a(f's_lshr_b32 s90, s96, 16\ns_and_b32 s91, s96, 0xfff\ns_mov_b32 s58, {LOG2E}')
    a('v_and_b32 v10, 1, v1\nv_lshlrev_b32 v10, 4, v10\nv_mov_b32 v11, 0xffff\nv_lshlrev_b32 v10, v10, v11\nv_bfe_u32 v11, v1, 1, 2')
    for d in range(4): a(f'v_cmp_eq_u32 vcc, {d}, v11\nv_cndmask_b32 v{24+d}, 0, v10, vcc')
    a(f's_lshl2_add_u32 s48, s88, s89\ns_lshl2_add_u32 s48, s48, s3\ns_lshl_b32 s48, s48, 12\ns_add_u32 s48, s48, {OP}')
    a(f's_lshl2_add_u32 s56, s89, s3\ns_lshl_b32 s56, s56, 13\ns_lshl_b32 s53, s88, 9\ns_add_u32 s56, s56, s53\ns_add_u32 s56, s56, {OG}')
    a('v_and_b32 v10, 8, v1\nv_lshlrev_b32 v10, 9, v10\nv_and_b32 v11, 32, v1\nv_lshl_add_u32 v10, v11, 3, v10\nv_lshl_add_u32 v10, v19, 5, v10\nv_and_b32 v11, 16, v1\nv_add_u32 v10, v10, v11')
    a(f'v_lshlrev_b32 v8, 4, v1\nv_mov_b32 v14, {L_F+F3}\nv_mov_b32 v18, {0xfffefffe if og16 else 0xfffff000}')
    if og16:
        a(f's_sub_u32 s56, s56, {OG}\ns_lshr_b32 s56, s56, 1\ns_add_u32 s56, s56, {OG}\nv_lshrrev_b32 v10, 1, v10\nv_mov_b32 v4, v28\nv_mov_b32 v5, v29')
        for e in range(2): a(f'v_mov_b32_dpp v{4+e}, v{30+e} quad_perm:[0,1,2,3] row_mask:0xa bank_mask:0xf')
    tags(12, SH12)
    if mlgate == 'or': ldswait('orl', L_OR, 4)
    else: ldsdata('f3m', ['ds_read_b128 v[56:59], v14'], range(56, 60), 22, 4)
    def mlpre(c0, t):
        a(f'v_or_b32 v{t}, v{c0+1}, v{c0+3}\nv_and_b32 v{t}, 0xfff, v{t}\nv_or3_b32 v{t}, v{t}, v{c0}, v{c0+2}')
    gather('mlg', [(f'buffer_load_dwordx4 v[{MR}:{MR+3}], v7, s[28:31], s57 offen sc1', MR, 4)], MC, lambda k, d: f's{90+(d & 1)}', '0xffff', 22, 4, 'lane', pre=mlpre)
    for e in range(2):
        m, l = MC + 2*e, MC + 2*e + 1
        a(f'v_mul_f32 v{m}, s58, v{m}\nv_ceil_f32 v{m}, v{m}\nv_mov_b32 v22, v{m}')
        allred_row('v_max_f32', 22); allred_xrow('v_max_f32', 22, 23)
        a(f'v_sub_f32 v{m}, v{m}, v22\nv_cvt_i32_f32 v{m}, v{m}\nv_ldexp_f32 v{m}, 1.0, v{m}\nv_mul_f32 v{l}, v{m}, v{l}')
        allred_row('v_add_f32', l); allred_xrow('v_add_f32', l, 23)
        a(f'v_perm_b32 v{m}, v{m}, v{m}, s61')
        a(f'v_mov_b32_dpp v22, v{m} row_newbcast:0 row_mask:0xf bank_mask:0x3\nv_mov_b32_dpp v22, v{m} row_newbcast:8 row_mask:0xf bank_mask:0xc')
        for d in range(4): a(f'v_and_b32 v{SEL+4*e+d}, v22, v{24+d}')
    a(f'v_mov_b32_dpp v{MC+1}, v{MC+3} quad_perm:[0,1,2,3] row_mask:0xf bank_mask:0xc\nv_rcp_f32 v17, v{MC+1}')
    stamp(9)
    ldsdata('f3o', ['ds_read_b128 v[56:59], v14'], range(56, 60), 22, 2)
    if stamps: a('s_cmp_lt_u32 s3, 2\ns_cbranch_scc1 L_ns1'); stamp(3); a('L_ns1:')
    def omfma(n, c0):
        a(f'v_mfma_f32_16x16x32_bf16 v[{DD+4*n}:{DD+4*n+3}], v[{SEL+4*(n >> 1)}:{SEL+4*(n >> 1)+3}], v[{c0}:{c0+3}], 0')
    gather('ol', [(f'buffer_load_dwordx4 v[{G+4*n}:{G+4*n+3}], v8, s[28:31], s48 offen offset:{1024*n} sc1', G+4*n, 4) for n in range(4)],
           GC, lambda k, d: f'v{28+d}', '0x10001', 48, slO, 'all', each=omfma)
    stamp(8)
    for k in range(4): a(f'v_permlane32_swap_b32 v{DD+k}, v{DD+4+k}')
    for k in range(4): a(f'v_permlane32_swap_b32 v{DD+8+k}, v{DD+12+k}')
    for k in range(4): a(f'v_add_f32_dpp v{20+k}, v{DD+4+k}, v{DD+k} row_ror:8 row_mask:0xf bank_mask:0x3')
    for k in range(4): a(f'v_add_f32_dpp v{20+k}, v{DD+8+k}, v{DD+12+k} row_ror:8 row_mask:0xf bank_mask:0xc')
    for k in range(4): a(f'v_mul_f32 v{20+k}, v17, v{20+k}')
    if og16:
        for k in range(4): a(f'v_add_u32 v{20+k}, 0x10000, v{20+k}')
        a('v_perm_b32 v20, v21, v20, s61\nv_perm_b32 v21, v23, v22, s61\nv_and_or_b32 v20, v20, v18, v4\nv_and_or_b32 v21, v21, v18, v5')
        a('buffer_store_dwordx2 v[20:21], v10, s[28:31], s56 offen sc1')
    else:
        put_tag(20, 4, 12, 18)
        a('buffer_store_dwordx4 v[20:23], v10, s[28:31], s56 offen sc1')
    if clean:
        for n in range(4): a(f'buffer_store_dwordx4 v[{G+4*n}:{G+4*n+3}], v8, s[28:31], s48 offen offset:{1024*n} sc1')
    a(f's_lshl_b32 s53, s3, 2\nv_add_u32 v14, s53, v14\nds_write_b32 v14, v14 offset:{F3E-F3}')
    stamp(11)
    a('s_cmp_eq_u32 s3, 0\ns_cbranch_scc1 L_H0b')
    a('s_cmp_eq_u32 s3, 1\ns_cbranch_scc1 L_H1b')
    a('s_waitcnt lgkmcnt(0)')
    finish()
    a('L_exit:\ns_endpgm')
    a.raw(f'''.section .rodata,"a"
.p2align 6
.amdhsa_kernel {KNAME}
  .amdhsa_next_free_vgpr 256
  .amdhsa_next_free_sgpr 102
  .amdhsa_accum_offset 256
  .amdhsa_group_segment_fixed_size 0
  .amdhsa_kernarg_size 96
  .amdhsa_user_sgpr_count 2
  .amdhsa_user_sgpr_kernarg_segment_ptr 1
  .amdhsa_system_sgpr_workgroup_id_x 1
  .amdhsa_float_denorm_mode_32 3
.end_amdhsa_kernel''')
    return a.text()

if __name__ == '__main__':
    out = sys.argv[1]
    kw = eval('dict(' + (sys.argv[2] if len(sys.argv) > 2 else '') + ')')
    open(out, 'w').write(gen(**kw))
```

```python
import sys
sys.path.insert(0, 'work')
from asmlib import Asm

KNAME = 'recurrent_scan__gqa_block_cached__swiglu_ffn__decode_kernel'
MB = 1 << 20
GU = 0
HF = 229376
EP = 245760
XC = 249856
SF, OP = 262144, 786432
ML, QF, QP, OG, WSEND = 1310720, 1327104, 1343488, 1474560, 1605632
STAMPS = 8 * MB
L_K, L_OR, L_X, L_Q = 0, 131072, 147968, 150016
L_MLW, L_H, L_O16, L_F, L_QR, L_GR, L_END = 152192, 152448, 152704, 152960, 153088, 155136, 157184
F0, F1, FM, FT, F3, F3E, FO, F4 = 0, 4, 8, 12, 16, 32, 48, 56
L_ORW = L_OR + 7*528 + 3*128 + 64 + 48 + 12
OOB = 0x40000000
LOG2E = 0x3fb8aa3b
SCALE = 0x3db504f3
SPIN = 400000
CMIX = 0x9e3779b9
SH12 = (0, 12, 20, 6)

HEADER = open('recurrent_scan__gqa_block_cached__swiglu_ffn__decode.s.ref').read().split('; Override')[0]

def gen(plain='', win=((0,6),), winL=((0,6),(50,7)), nB1L=14, nF1L=31, defer=3, hold=(4,7,1), bias=None, ormode=1, noretry=(), nXC=12, xctries=5, mlgate='f3', pipe=False, slS=0, slO=0, dlS=0, slF=0, local='soqg', oppol='', sfpol='', clean=False, outpol='', mO='union', mS='union', nX=18, nB1=10, nF1=28, og16=True, nB0=10, h0late=True, fastwo=True, gap='ack', rsat=6, alias=True, mlpol=' sc1', xdirty=0, outpf=False, prew='', probe=None, slH=1, shu=2, shg=1, f3at=14, rot=0, kv='slab', grot=1, lightred=True, f3e=None,
        pref=True, tlbpf=False, stamps=False, sleep=8, abl=()):
    a0 = Asm()
    cur = ['']
    class A:
        def __call__(self, text, tag=None):
            for t in text.split('\n'):
                if 'sc1' in t and t.startswith('buffer_store') and 'st' in abl and tag is None: continue
                if 'sc1' in t and t.startswith('buffer_load') and ('ld' in abl or cur[0] in abl): continue
                if 'nowork' in abl and t.startswith(('v_perm', 'v_mfma', 'v_cvt_pk', 'v_exp', 'v_mul_f32', 'v_sub_f32', 'v_add_f32', 'v_mov_b32_dpp', 'v_max3_f32')): continue
                if 'nolds' in abl and t.startswith('s_cbranch_vccz'): t = t.replace('s_cbranch_vccz', 's_branch')
                if 'nobar' in abl and t.startswith('s_barrier'): continue
                if 'nohelp' in abl and t.startswith('s_setprio 2'): t = 's_endpgm'
                a0(t, tag)
        def __getattr__(self, n): return getattr(a0, n)
        def __setattr__(self, n, v): setattr(a0, n, v)
    a = A()
    PL = {k: ('' if k in plain else ' nt') for k in 'qgkvdo'}
    def sched(sc, i): return [w for (st, w) in sc if st <= i][-1]
    def stamp(k):
        if stamps: a(f's_memrealtime s[{64+2*k}:{65+2*k}]')
    def srd(d, p, size):
        a(f's_mov_b32 s{d}, s{p}\ns_mov_b32 s{d+1}, s{p+1}\ns_mov_b32 s{d+2}, {size}\ns_mov_b32 s{d+3}, 0x20000')
    def allred_row(op, v, steps=(8, 4, 2, 1)):
        for r in steps: a(f'{op}_dpp v{v}, v{v}, v{v} row_ror:{r} row_mask:0xf bank_mask:0xf')
    def allred_xrow(op, v, t):
        a(f'v_mov_b32 v{t}, v{v}\nv_permlane16_swap_b32 v{t}, v{v}\n{op} v{v}, v{v}, v{t}')
        a(f'v_mov_b32 v{t}, v{v}\nv_permlane32_swap_b32 v{t}, v{v}\n{op} v{v}, v{v}, v{t}')
    def rbf(v):
        a(f'v_cvt_pk_bf16_f32 v{v}, v{v}, v{v}\nv_lshlrev_b32 v{v}, 16, v{v}')
    def perms_pair(La, Lb, TB, u):
        for d in range(4):
            a(f'v_perm_b32 v{TB+4*(2*d)+u}, v{Lb+d}, v{La+d}, s60')
            a(f'v_perm_b32 v{TB+4*(2*d+1)+u}, v{Lb+d}, v{La+d}, s61')
    def tree(op2, op3, regs, t):
        regs = list(regs)
        if len(regs) == 2:
            a(f'{op2} v{t}, v{regs[0]}, v{regs[1]}'); return
        a(f'{op3} v{t}, v{regs[0]}, v{regs[1]}, v{regs[2]}')
        regs = regs[3:]
        while len(regs) >= 2:
            a(f'{op3} v{t}, v{t}, v{regs[0]}, v{regs[1]}'); regs = regs[2:]
        if regs: a(f'{op2} v{t}, v{t}, v{regs[0]}')
    def umax(regs, t): tree('v_max_u32', 'v_max3_u32', regs, t)
    def orall(regs, t): tree('v_or_b32', 'v_or3_b32', regs, t)
    def again(lbl): a(f's_sub_u32 s62, s62, 1\ns_cmp_gt_i32 s62, 0\ns_cbranch_scc1 {lbl}')
    def retry(lbl_loop, lbl_done, slp):
        a(f's_cbranch_vccz {lbl_done}')
        if slp: a(f's_sleep {slp}')
        again(lbl_loop)
        a(f'{lbl_done}:')
    def gather(name, loads, clean, tag, mask, tmp, slp, mode, first=True, each=None, pre=None, onfail=None):
        n = len(loads)
        cur[0] = name
        if first:
            for t, _, _ in loads: a(t)
        a(f'L_{name}:')
        tk = []; c0 = clean
        for k, (_, r, c) in enumerate(loads):
            if k == 0 or (first and each): a(f's_waitcnt vmcnt({n-1-k if (first and each) else 0})')
            for d in range(c): a(f'v_xor_b32 v{c0+d}, {tag(k, d)}, v{r+d}')
            if pre: pre(c0, tmp+k); tk.append(tmp+k)
            elif c > 1: orall(range(c0, c0+c), tmp+k); tk.append(tmp+k)
            else: tk.append(c0)
            if each: each(k, c0)
            c0 += c
        if n > 1: orall(tk, tmp+n)
        a(f'v_and_b32 v{tmp+n}, {mask}, v{tmp+n if n > 1 else tk[0]}\nv_cmp_ne_u32 vcc, 0, v{tmp+n}')
        a(f's_branch L_{name}_ok' if (abl or name in noretry) else f's_cbranch_vccz L_{name}_ok')
        if slp: a(f's_sleep {slp}')
        if onfail: onfail()
        if mode == 'all':
            for t, _, _ in loads: a(t)
            again(f'L_{name}')
            a(f's_waitcnt vmcnt(0)\nL_{name}_ok:')
            return
        if mode == 'union':
            a('s_mov_b64 exec, vcc')
            for t, _, _ in loads: a(t)
            a('s_mov_b64 exec, -1')
        for k, (t, _, _) in enumerate(loads if mode != 'union' else ()):
            if n > 1 or mode == 'line8':
                a(f'v_and_b32 v{tmp+n}, {mask}, v{tk[k]}')
                if mode == 'line8':
                    for m in ('quad_perm:[1,0,3,2]', 'quad_perm:[2,3,0,1]', 'row_half_mirror'):
                        a(f'v_or_b32_dpp v{tmp+n}, v{tmp+n}, v{tmp+n} {m} row_mask:0xf bank_mask:0xf')
                a(f'v_cmp_ne_u32 vcc, 0, v{tmp+n}\ns_cbranch_vccz L_{name}_s{k}')
            if mode == 'instr': a(t)
            else: a(f's_mov_b64 exec, vcc\n{t}\ns_mov_b64 exec, -1')
            if n > 1 or mode == 'line8': a(f'L_{name}_s{k}:')
        a('s_waitcnt vmcnt(0)')
        again(f'L_{name}')
        a(f'L_{name}_ok:')
    def ldswait(name, addr, slp):
        a(f'v_mov_b32 v12, {addr}\nL_{name}:')
        a(f'ds_read_b32 v11, v12\ns_waitcnt lgkmcnt(0)\nv_cmp_eq_u32 vcc, -1, v11')
        retry(f'L_{name}', f'L_{name}_ok', slp)
    def ldsdata(name, reads, regs, t, slp):
        a(f'L_{name}:')
        for r in reads: a(r)
        a('s_waitcnt lgkmcnt(0)')
        umax(regs, t)
        a(f'v_cmp_eq_u32 vcc, -1, v{t}')
        retry(f'L_{name}', f'L_{name}_ok', slp)
    def get_tag(t):
        a(f'v_mov_b32 v{t}, {L_F}\nds_read_b32 v{t}, v{t} offset:{FT}\ns_waitcnt lgkmcnt(0)\nv_readfirstlane_b32 s96, v{t}')
    def tags(bits, shifts, s0=97):
        for d, sh in enumerate(shifts): a(f's_bfe_u32 s{s0+d}, s96, {(bits << 16) | sh}')
    def put_tag(r, n, bits, vm, s0=97):
        for d in range(n): a(f'v_add_u32 v{r+d}, {1 << (bits-1)}, v{r+d}')
        for d in range(n): a(f'v_and_or_b32 v{r+d}, v{r+d}, v{vm}, s{s0+d}')
    def silu(v, t):
        a(f'v_mul_f32 v{t}, 0xbfb8aa3b, v{v}\nv_exp_f32 v{t}, v{t}\nv_add_f32 v{t}, 1.0, v{t}\nv_rcp_f32 v{t}, v{t}\nv_mul_f32 v{v}, v{v}, v{t}')
    def fold_cols(D, o, rm='0xf'):
        for k in range(4):
            a(f'v_add_f32_dpp v{o+k}, v{D+4*k+1}, v{D+4*k} row_ror:8 row_mask:{rm} bank_mask:0x3')
            a(f'v_add_f32_dpp v{o+((k+2)&3)}, v{D+4*(((k+2)&3)+4)}, v{D+4*(((k+2)&3)+4)+1} row_ror:8 row_mask:{rm} bank_mask:0xc')
    def red4(r):
        a(f'v_permlane32_swap_b32 v{r}, v{r+2}\nv_permlane32_swap_b32 v{r+1}, v{r+3}')
        a(f'v_add_f32 v{r}, v{r}, v{r+2}\nv_add_f32 v{r+1}, v{r+1}, v{r+3}')
        a(f'v_permlane16_swap_b32 v{r}, v{r+1}\nv_add_f32 v{r}, v{r}, v{r+1}')
    def rb_of(d, t):
        a(f's_lshr_b32 {d}, s2, 5\ns_lshl_b32 {d}, {d}, 3\ns_and_b32 {t}, s2, 7\ns_add_u32 {d}, {d}, {t}')
    def gj(g, j, t):
        a(f's_bfe_u32 {g}, s2, 0x20003')
        if j: rb_of(j, t)
    def qjob(head, kq, t):
        a(f's_bfe_u32 {t}, s2, 0x20003\ns_add_u32 {head}, s2, {t}\ns_and_b32 {head}, {head}, 7\ns_lshl3_add_u32 {head}, {t}, {head}\ns_lshr_b32 {kq}, s2, 5')
    def gujob(jb, blk, mat, kq, t, lbl):
        a(f's_cmp_ge_u32 s2, 192\ns_cbranch_scc1 L_{lbl}a')
        a(f's_lshr_b32 {t}, s2, 6\ns_add_u32 {t}, {t}, {jb}\ns_cmp_eq_u32 {t}, 3\ns_cselect_b32 {t}, 0, {t}')
        a(f's_add_u32 {blk}, s2, {t}\ns_and_b32 {blk}, {blk}, 7\ns_lshl3_add_u32 {blk}, {t}, {blk}\ns_mov_b32 {mat}, {jb}\ns_bfe_u32 {kq}, s2, 0x30003')
        a(f's_branch L_{lbl}b\nL_{lbl}a:')
        a(f's_bfe_u32 {blk}, s2, 0x20001\ns_add_u32 {blk}, {blk}, 24\ns_and_b32 {mat}, s2, 1\ns_bfe_u32 {kq}, s2, 0x20003\ns_lshl1_add_u32 {kq}, {kq}, {jb}')
        a(f'L_{lbl}b:')
    def lstore(key, name, text):
        if key in local: a(f's_cmp_eq_u32 s92, 1\ns_cbranch_scc0 L_{name}f\n{text}\ns_branch L_{name}d\nL_{name}f:')
        a(f'{text} sc1\nL_{name}d:')
    def consts():
        a(f's_mov_b32 s60, 0x05040100\ns_mov_b32 s61, 0x07060302\ns_mov_b32 s62, {SPIN}')
        srd(28, 26, WSEND)
    def finish():
        if stamps:
            stamp(7)
            a('s_waitcnt lgkmcnt(0)')
            a('s_lshl_b32 s52, s2, 3\ns_add_u32 s52, s52, s3\ns_lshl_b32 s52, s52, 7')
            a(f's_add_u32 s54, s26, {STAMPS}\ns_addc_u32 s55, s27, 0')
            a('v_mov_b32 v2, s52\ns_mov_b64 exec, 1')
            for k in range(6):
                a(f'v_mov_b32 v4, s{64+4*k}\nv_mov_b32 v5, s{65+4*k}\nv_mov_b32 v6, s{66+4*k}\nv_mov_b32 v7, s{67+4*k}')
                a(f'global_store_dwordx4 v2, v[4:7], s[54:55] offset:{16*k}\ns_nop 1')
        a('s_endpgm')
    def zstamps():
        if stamps:
            for k in range(68, 88, 2): a(f's_mov_b64 s[{k}:{k+1}], 0')

    a.raw(HEADER.rstrip())
    a.raw(f'; @launch grid=(256,1,1) block=(512,1,1) lds={L_END}')
    a.raw('.amdgcn_target "amdgcn-amd-amdhsa--gfx950"\n.text')
    a.raw(f'.globl {KNAME}\n.p2align 8\n.type {KNAME},@function\n{KNAME}:')
    stamp(0)
    a('s_load_dwordx16 s[4:19], s[0:1], 0\ns_load_dwordx8 s[20:27], s[0:1], 64')
    a('v_lshrrev_b32 v2, 6, v0\nv_and_b32 v1, 63, v0\nv_readfirstlane_b32 s3, v2')
    a('s_cmp_ge_u32 s2, 256\ns_cbranch_scc1 L_exit')
    a('s_cmp_ge_u32 s3, 4\ns_cbranch_scc1 L_S')
    XS = 40
    a('s_setprio 2')
    a('s_cmp_lg_u32 s3, 0\ns_cbranch_scc1 L_H123')
    if pref:
        a(f's_getpc_b64 s[56:57]\nL_pc:\ns_lshr_b32 s58, s2, 3\ns_mulk_i32 s58, 1024\nv_and_b32 v2, 7, v1\nv_lshl_add_u32 v2, v2, 7, s58')
        a(f'v_min_u32 v2, L_exit-L_pc, v2\nglobal_load_dword v255, v2, s[56:57]')
    a(f'v_lshlrev_b32 v7, 5, v1\nv_mov_b32 v8, {EP}\ns_waitcnt lgkmcnt(0)')
    a(f'global_load_dwordx4 v[{XS}:{XS+3}], v7, s[4:5]\nglobal_load_dwordx4 v[{XS+4}:{XS+7}], v7, s[4:5] offset:16')
    a('global_load_dword v14, v8, s[26:27] sc1')
    stamp(1)
    a('s_branch L_H0')

    a('L_S:')
    V, TB, PO, O, S, PP, QL, QH, D, X = 128, 96, 64, 48, 32, 24, 64, 80, 64, 32
    n_ld = [0]
    W = [win]; nF = [nF1]
    def pace():
        a.vm_window(sched(W[0], n_ld[0])); n_ld[0] += 1
    a('s_sub_u32 s63, s3, 4')
    qjob('s54', 's55', 's53')
    a('s_lshl2_add_u32 s53, s55, s63\ns_lshl_b32 s52, s53, 10\ns_add_u32 s52, s52, s54\ns_lshl_b32 s52, s52, 8')
    a('v_lshrrev_b32 v2, 4, v1\nv_and_b32 v3, 15, v1\nv_lshlrev_b32 v4, 4, v3\nv_lshl_add_u32 v6, v2, 16, v4')
    a('s_movk_i32 s57, 0x2000\ns_lshl_b32 s34, s57, 10\ns_mov_b32 s35, 0x20000\ns_waitcnt lgkmcnt(0)\ns_mov_b64 s[32:33], s[10:11]')
    a.vm_reset()
    def s_setup():
        stamp(1)
        a('v_lshlrev_b32 v9, 4, v1')
        zstamps(); consts()
        a('s_lshr_b32 s51, s63, 1')
        gujob('s51', 's58', 's56', 's55', 's59', 'gjs')
        a(f's_cmp_eq_u32 s56, 1\ns_cselect_b64 s[36:37], s[18:19], s[16:17]\ns_mov_b32 s38, {1024*7168}\ns_mov_b32 s39, 0x20000\ns_lshl_b32 s58, s58, 8')
        a(f's_and_b32 s59, s63, 1\ns_lshl1_add_u32 s59, s55, s59\ns_mul_i32 s50, s59, {64*7168}\ns_add_u32 s50, s50, s58')
        a(f'v_mul_u32_u24 v7, {8*7168}, v2\nv_add_u32 v7, v7, v4')
        a(f's_lshl_b32 s53, s53, 6\ns_add_u32 s53, s53, {L_X}\nv_lshl_add_u32 v12, v2, 4, s53')
        a(f's_lshl_b32 s59, s59, 7\ns_add_u32 s59, s59, {L_X}\nv_lshl_add_u32 v13, v2, 4, s59')
        a(f's_lshl_b32 s59, s63, 9\ns_add_u32 s59, s59, {L_QR}\nv_lshlrev_b32 v14, 5, v3\nv_lshl_add_u32 v14, v2, 4, v14\nv_add_u32 v14, s59, v14')
        if not nB0: a('s_barrier')
    for i in range(8):
        pace()
        a(f'buffer_load_dwordx4 v[{V+4*i}:{V+4*i+3}], v6, s[32:35], s52 offen{PL["q"]}', tag=('q', i))
        if i < 7: a('s_add_u32 s52, s52, s57')
        if i == min(sched(win, 0), 8) - 1: s_setup()
    def kv_setup():
        gj('s52', 's53', 's54')
        if kv != 'slab':
            for T in range(4):
                a(f's_mul_i32 s56, s53, {4*kv}\ns_add_u32 s56, s56, s63\ns_add_u32 s56, s56, {4*(T % kv) + (T // kv)*256*kv}\ns_lshl_b32 s54, s52, 10\ns_add_u32 s56, s56, s54\ns_lshl_b32 s{88+T}, s56, 13')
        a('s_lshl2_add_u32 s53, s53, s63\ns_lshl_b32 s54, s52, 10')
        for T in range(4 if kv == 'slab' else 0):
            a(f's_add_u32 s56, s53, {rot*T}\ns_and_b32 s56, s56, 255\ns_add_u32 s56, s56, s54')
            a(f's_mul_i32 s59, s52, {grot}\ns_add_u32 s59, s59, {T}\ns_and_b32 s59, s59, 3\ns_lshl_b32 s59, s59, 8\ns_add_u32 s56, s56, s59\ns_lshl_b32 s{88+T}, s56, 13')
        a('s_lshl_b32 s55, s63, 15')
        a('v_lshlrev_b32 v5, 6, v2\nv_xor_b32 v5, v5, v4\nv_lshl_add_u32 v16, v2, 8, v5')
        for k in range(1, 4): a(f'v_xor_b32 v{16+k}, {16*k}, v16')
        srd(40, 6, 32*MB); srd(44, 8, 32*MB)
    kv_setup()
    def tile_ops(Lb, Xr, first):
        ops = [(lambda u=u: perms_pair(Lb+8*u, Lb+8*u+4, TB, u)) for u in range(4)]
        def mf():
            for j in range(8):
                c = '0' if first else f'v[{D+4*j}:{D+4*j+3}]'
                a(f'v_mfma_f32_16x16x32_bf16 v[{D+4*j}:{D+4*j+3}], v[{Xr}:{Xr+3}], v[{TB+4*j}:{TB+4*j+3}], {c}')
        return ops + [mf]
    def pack128(off):
        for k in range(4): a(f'v_mov_b32 v{20+k}, v{D+4*k}')
        for k in range(4): a(f'v_mov_b32_dpp v{20+k}, v{D+16+4*k} quad_perm:[0,1,2,3] row_mask:0x2 bank_mask:0xf')
        a(f's_mov_b32 exec_hi, 0\nds_write_b128 v14, v[20:23] offset:{off}\ns_mov_b32 exec_hi, -1')
    def xwait(name, gu):
        a(f'v_mov_b32 v20, {L_F}\nL_{name}:\nds_read_b32 v21, v20 offset:{F0}\ns_waitcnt lgkmcnt(0)\nv_cmp_eq_u32 vcc, -1, v21')
        retry(f'L_{name}', f'L_{name}_ok', 1)
        a(f'ds_read_b128 v[{X}:{X+3}], v12')
        if gu: a(f'ds_read_b128 v[{X+4}:{X+7}], v13\nds_read_b128 v[{X+8}:{X+11}], v13 offset:64')
        a('s_waitcnt lgkmcnt(0)')
    def kload(i):
        if i % 4 == 0:
            a(f's_add_u32 m0, s55, {i*1024}\ns_add_u32 s56, s{88+(i >> 3)}, {(i & 4)*1024}')
        pace()
        a(f'buffer_load_dwordx4 v{16+(i & 3)}, s[40:43], s56 offen offset:{1024*(i & 3)}{PL["k"]} lds', tag=('k', i))
        if i == nF[0]: a(f'v_mov_b32 v20, {L_F}\nds_write_b32 v20, v20 offset:{F1}')
    KJ = 16
    def phase1(gu):
        seq = ([('g', i) for i in range(16)] if gu else []) + [('k', i) for i in range(KJ)]
        work = [(None, lambda: xwait('xw%d' % gu, gu))]
        work += [(('q', 7), f) for f in tile_ops(V, X, True)] + [(None, lambda: (pack128(0), stamp(10)))]
        if gu:
            work += [(('g', 7), f) for f in tile_ops(V+32, X+4, True)] + [(('g', 15), f) for f in tile_ops(V+64, X+8, False)]
            work += [(None, lambda: pack128(L_GR-L_QR))]
        for n, (kind, i) in enumerate(seq):
            if kind == 'g':
                pace()
                a(f'buffer_load_dwordx4 v[{V+32+4*i}:{V+32+4*i+3}], v7, s[36:39], s50 offen{PL["g"]}', tag=('g', i))
                if i < 15: a(f's_add_u32 s50, s50, {7168*25 if i == 7 else 7168}')
            else: kload(i)
            if n + 9 == nB0: a('s_barrier')
            if n + 9 == nXC: a(f'v_mov_b32 v20, {L_F}\nds_write_b32 v20, v20 offset:{F4}')
            if n + 9 < nX: continue
            st = [t for t in a.vm if isinstance(t, tuple)]
            landed = st[:len(st) - sched(W[0], n_ld[0]-1)]
            k = 0
            while work and k < 3 and (work[0][0] is None or work[0][0] in landed):
                work.pop(0)[1](); k += 1
        assert not work
    def rest(sfx, nB1):
        a('v_and_b32 v14, 3, v3\nv_lshlrev_b32 v14, 2, v14\nv_lshrrev_b32 v15, 2, v3\nv_add_u32 v14, v14, v15\nv_lshlrev_b32 v14, 8, v14\nv_add_u32 v14, s55, v14')
        a('v_xor_b32 v15, v2, v3')
        for s in range(4):
            a(f'v_xor_b32 v{10+s}, {4*s}, v15\nv_lshl_add_u32 v{10+s}, v{10+s}, 4, v14')
        if bias and not sfx:
            w0 = W[0]
            st0 = (list(a.vm), n_ld[0])
            a('s_getreg_b32 s56, hwreg(HW_REG_XCC_ID, 0, 1)\ns_cmp_eq_u32 s56, 0\ns_cbranch_scc1 L_b0')
            W[0] = bias[0]
            for i in range(KJ, 32): kload(i)
            a('s_branch L_b1\nL_b0:')
            a.vm, n_ld[0] = list(st0[0]), st0[1]
            W[0] = bias[1]
            for i in range(KJ, 32): kload(i)
            W[0] = w0
            a('L_b1:')
        else:
            for i in range(KJ, 32): kload(i)
        a(f'v_and_b32 v8, 7, v1\nv_mul_u32_u24 v14, 272, v8\nv_lshl_add_u32 v14, v2, 4, v14\nv_add_u32 v14, {L_Q}, v14')
        a('v_cmp_gt_u32 vcc, 8, v3\nv_cndmask_b32 v15, 0, -1, vcc\nv_not_b32 v16, v15')
        a(f'v_lshlrev_b32 v17, 3, v8\nv_add_u32 v17, {L_MLW}, v17')
        vn = [0]
        def vload():
            if vn[0] == 32: return
            i = vn[0]; vn[0] += 1
            if i % 4 == 0: a(f's_add_u32 s56, s{88+(i >> 3)}, {(i & 4)*1024}')
            pace()
            a(f'buffer_load_dwordx4 v[{V+4*i}:{V+4*i+3}], v9, s[44:47], s56 offen offset:{1024*(i & 3)}{PL["v"]}', tag=('v', i))
        for i in range(nB1): vload()
        a.vm_wait(('k', 31))
        stamp(2)
        ldsdata('qw' + sfx, [f'ds_read_b128 v[{QL+4*s}:{QL+4*s+3}], v14 offset:{64*s}' for s in range(4)], range(QL, QL+16), 18, 1)
        stamp(3)
        units = [(p, hh, ts) for p in range(2) for hh in range(2) for ts in range(2)]
        def kreads(k):
            p, hh, ts = units[k]
            for s in range(4):
                r = TB + 16*(k & 1) + 4*s
                a(f'ds_read_b128 v[{r}:{r+3}], v{10+s} offset:{(2*p+ts)*8192 + hh*4096}')
        kreads(0); kreads(1)
        vload()
        for k in range(16): a(f'v_and_b32 v{QH+k}, v16, v{QL+k}\nv_and_b32 v{QL+k}, v15, v{QL+k}')
        for k in range(8):
            p, hh, ts = units[k]
            a(f's_waitcnt lgkmcnt({4 if k < 7 else 0})')
            d = S + 8*p + 4*hh
            for s in range(4):
                r = TB + 16*(k & 1) + 4*s; q = (QH if ts else QL) + 4*s
                c = '0' if (ts == 0 and s == 0) else f'v[{d}:{d+3}]'
                a(f'v_mfma_f32_16x16x32_bf16 v[{d}:{d+3}], v[{r}:{r+3}], v[{q}:{q+3}], {c}')
            if k + 2 < 8: kreads(k+2)
            if k in (1, 4, 7): vload()
        a(f's_mov_b32 s57, {SCALE}\ns_mov_b32 s58, {LOG2E}')
        for k in range(0, 16, 2):
            r = S + k
            a(f'v_cvt_pk_bf16_f32 v{r}, v{r}, v{r+1}\nv_and_b32 v{r+1}, 0xffff0000, v{r}\nv_lshlrev_b32 v{r}, 16, v{r}')
            a(f'v_mul_f32 v{r}, s57, v{r}\nv_mul_f32 v{r+1}, s57, v{r+1}')
            a(f'v_cvt_pk_bf16_f32 v{r}, v{r}, v{r+1}\nv_and_b32 v{r+1}, 0xffff0000, v{r}\nv_lshlrev_b32 v{r}, 16, v{r}')
        vload()
        tree('v_max_f32', 'v_max3_f32', range(S, S+16), 18)
        allred_row('v_max_f32', 18, (8,)); allred_xrow('v_max_f32', 18, 20)
        for k in range(16): a(f'v_sub_f32 v{S+k}, v{S+k}, v18\nv_mul_f32 v{S+k}, s58, v{S+k}')
        vload()
        for k in range(16): a(f'v_exp_f32 v{S+k}, v{S+k}')
        a(f'v_add_f32 v19, v{S}, v{S+1}')
        for k in range(2, 16): a(f'v_add_f32 v19, v19, v{S+k}')
        allred_row('v_add_f32', 19, (8,)); allred_xrow('v_add_f32', 19, 20)
        a('s_lshl_b32 s59, s63, 6\nv_add_u32 v20, s59, v17\nds_write_b64 v20, v[18:19]')
        vload()
        for k in range(8): a(f'v_cvt_pk_bf16_f32 v{PP+k}, v{S+2*k}, v{S+2*k+1}')
        stamp(11)
        for p in range(2):
            for k in range(4):
                src = PP + 4*p + k
                a(f'v_and_b32 v{PO+16*p+k}, v15, v{src}')
                a(f'v_mov_b32_dpp v{PO+16*p+4+k}, v{src} row_shr:8 row_mask:0xf bank_mask:0xf bound_ctrl:1')
                a(f'v_mov_b32_dpp v{PO+16*p+8+k}, v{src} row_shl:8 row_mask:0xf bank_mask:0xf bound_ctrl:1')
                a(f'v_and_b32 v{PO+16*p+12+k}, v16, v{src}')
        def pv_pair(pr):
            T, u = pr >> 2, pr & 3
            perms_pair(V+8*pr, V+8*pr+4, TB, u)
            if u == 3:
                for half in range(2):
                    for q in range(4):
                        c = '0' if (T == 0 and half == 0) else f'v[{O+4*q}:{O+4*q+3}]'
                        j = q + 4*half; b = PO + 8*T + 4*half
                        a(f'v_mfma_f32_16x16x32_bf16 v[{O+4*q}:{O+4*q+3}], v[{TB+4*j}:{TB+4*j+3}], v[{b}:{b+3}], {c}')
        def tail_setup1():
            srd(32, 12, 4096*2048); srd(36, 20, 3584*2048)
            a('s_lshr_b32 s52, s2, 3\ns_and_b32 s59, s63, 1\ns_lshl1_add_u32 s52, s52, s59')
            a('s_and_b32 s53, s2, 7\ns_lshr_b32 s57, s63, 1\ns_lshl1_add_u32 s53, s53, s57')
            a(f's_lshl_b32 s57, s53, 7\ns_mul_i32 s48, s52, {56*2048}\ns_add_u32 s48, s48, s57')
            a('s_lshl_b32 s49, s52, 17\ns_add_u32 s49, s49, s57')
            if alias:
                a(f's_and_b32 s50, s2, 7\ns_lshl_b32 s50, s50, 6\ns_add_u32 s50, s50, s52\ns_and_b32 s51, s53, 1\ns_lshl1_add_u32 s50, s50, s51\ns_lshl_b32 s50, s50, 9\ns_add_u32 s50, s50, {OP}')
            else: a(f's_lshl_b32 s50, s53, 15\ns_lshl_b32 s51, s52, 7\ns_add_u32 s50, s50, s51\ns_add_u32 s50, s50, {SF}')
            a(f'v_lshrrev_b32 v20, 3, v1\nv_lshlrev_b32 v21, 4, v8\nv_mul_u32_u24 v6, {7*2048}, v20\nv_add_u32 v6, v6, v21')
            a('v_and_b32 v7, 3, v20\nv_lshl_add_u32 v7, v7, 12, v21\nv_and_b32 v20, 4, v20\nv_lshl_add_u32 v7, v20, 14, v7')
        def tail_setup2():
            a(f'v_and_b32 v10, 6, v1\nv_lshlrev_b32 v10, {6 if alias else 12}, v10\nv_and_b32 v20, 8, v1\nv_lshl_add_u32 v10, v20, 2, v10\nv_and_b32 v21, 1, v1\nv_lshl_add_u32 v10, v21, 6, v10\nv_lshl_add_u32 v10, v2, 4, v10')
            a(f'v_mov_b32 v21, {OOB}\nv_cmp_gt_u32 vcc, 32, v1\nv_cndmask_b32 v10, v21, v10, vcc')
            a(f'v_and_b32 v21, 1, v1\nv_lshl_add_u32 v11, v2, 1, v21\nv_lshlrev_b32 v11, 4, v11\ns_lshl_b32 s59, s59, 7\ns_add_u32 s59, s59, {L_H}\nv_add_u32 v11, s59, v11')
            a(f'v_mul_u32_u24 v5, 528, v8\nv_lshl_add_u32 v5, v2, 7, v5\nv_lshl_add_u32 v5, v20, 3, v5')
            a(f's_mul_i32 s57, s63, 4224\ns_add_u32 s57, s57, {L_OR}\nv_add_u32 v5, s57, v5')
            a(f's_lshl_b32 s57, s63, 2\ns_add_u32 s57, s57, {L_F+F3}\nv_mov_b32 v13, s57\nv_mov_b32 v12, 0xfffff000')
            get_tag(20); tags(12, SH12)
        FA, R = 36, TB
        def red_setup():
            a(f'v_lshrrev_b32 v21, 5, v1\nv_add_lshl_u32 v14, v21, v1, 4\ns_mul_i32 s57, s63, 1056\ns_add_u32 s57, s57, {L_OR}\nv_add_u32 v14, s57, v14')
            a(f'v_mul_u32_u24 v15, 4224, v2\nv_add_u32 v15, {L_ORW}, v15')
            a('v_lshlrev_b32 v16, 10, v2\nv_lshl_add_u32 v16, v3, 3, v16')
            a('s_and_b32 s57, s2, 7\ns_bfe_u32 s59, s2, 0x20003\ns_lshl2_add_u32 s57, s57, s59\ns_lshl2_add_u32 s57, s57, s63\ns_lshl_b32 s57, s57, 5')
            a(f's_lshr_b32 s59, s2, 5\ns_add_u32 s57, s57, s59\ns_lshl_b32 s93, s57, 7\ns_add_u32 s93, s93, {OP}')
            a('v_mov_b32 v22, s96\nv_lshlrev_b32 v23, 1, v3\nv_alignbit_b32 v22, v22, v22, v23\nv_and_b32 v18, 0x10001, v22\nv_alignbit_b32 v19, v22, v22, 1\nv_and_b32 v19, 0x10001, v19')
            a(f's_lshl_b32 s57, s63, 4\ns_add_u32 s57, s57, {L_MLW}\nv_lshl_add_u32 v21, v21, 3, s57\nv_mov_b32 v17, 0xfffefffe\nv_mov_b32 v22, {L_F}')
            ldsdata('mlf' + sfx, [f'ds_read_b32 v{FA+2*w}, v21 offset:{64*w}' for w in range(4)] + [f'ds_read_b32 v{FA+1}, v22 offset:{FM}'], [FA, FA+1, FA+2, FA+4, FA+6], 20, 0)
            a(f'v_readfirstlane_b32 s92, v{FA+1}')
            if prew:
                n0_ = len(a.vm)
                a(f's_cmp_eq_u32 s92, 1\ns_cbranch_scc0 L_pw{sfx}')
                if 'o' in prew: a('v_not_b32 v24, v18\nv_not_b32 v25, v19\nbuffer_store_dwordx2 v[24:25], v16, s[28:31], s93 offen')
                if 's' in prew:
                    for d in range(4): a(f'v_not_b32 v{28+d}, s{97+d}')
                    a('buffer_store_dwordx4 v[28:31], v10, s[28:31], s50 offen')
                a(f'L_pw{sfx}:')
                a.vm = a.vm[:n0_]
            a(f'v_max3_f32 v20, v{FA}, v{FA+2}, v{FA+4}\nv_max_f32 v20, v20, v{FA+6}\nv_mul_f32 v20, s58, v20\nv_ceil_f32 v20, v20')
            for w in range(4): a(f'v_fma_f32 v{FA+2*w}, v{FA+2*w}, s58, -v20\nv_exp_f32 v{FA+2*w}, v{FA+2*w}\nv_mov_b32 v{FA+2*w+1}, v{FA+2*w}')
        def red_out():
            a(f'L_or{sfx}:\nds_read_b32 v20, v15')
            for w in range(4): a(f'ds_read_b128 v[{R+4*w}:{R+4*w+3}], v14 offset:{4224*w}')
            a('s_waitcnt lgkmcnt(4)\nv_cmp_eq_u32 vcc, -1, v20')
            retry(f'L_or{sfx}', f'L_or{sfx}_ok', 0)
            for w in range(4):
                a(f's_waitcnt lgkmcnt({3-w})')
                f = f'v[{FA+2*w}:{FA+2*w+1}]'
                for k in (0, 2):
                    if w == 0: a(f'v_pk_mul_f32 v[{24+k}:{25+k}], v[{R+k}:{R+k+1}], {f}')
                    else: a(f'v_pk_fma_f32 v[{24+k}:{25+k}], v[{R+4*w+k}:{R+4*w+k+1}], {f}, v[{24+k}:{25+k}]')
            for k in range(4): a(f'v_add_u32 v{24+k}, 0x10000, v{24+k}')
            a('v_perm_b32 v24, v25, v24, s61\nv_perm_b32 v25, v27, v26, s61\nv_and_or_b32 v24, v24, v17, v18\nv_and_or_b32 v25, v25, v17, v19')
            n0_ = len(a.vm)
            lstore('o', 'sto' + sfx, 'buffer_store_dwordx2 v[24:25], v16, s[28:31], s93 offen')
            a.vm = a.vm[:n0_] + ['ost']
            stamp(9)
        def last_pair():
            La, Lb, u, T = V+120, V+124, 3, 3
            def pm(j): a(f'v_perm_b32 v{TB+4*j+u}, v{Lb+(j >> 1)}, v{La+(j >> 1)}, s{60+(j & 1)}')
            def mf(q):
                for half in range(2):
                    j = q + 4*half; b = PO + 8*T + 4*half
                    a(f'v_mfma_f32_16x16x32_bf16 v[{O+4*q}:{O+4*q+3}], v[{TB+4*j}:{TB+4*j+3}], v[{b}:{b+3}], v[{O+4*q}:{O+4*q+3}]')
            def wr(q): a(f'ds_write_b128 v5, v[{O+4*q}:{O+4*q+3}] offset:{16*q}')
            stamp(5)
            pm(0); pm(4); pm(1); pm(5); mf(0); pm(2); pm(6); mf(1); pm(3); pm(7); mf(2); mf(3)
            for q in range(4): wr(q)
            red_out()
        donep = [0]
        def pvw(pr):
            if pr < 15: pv_pair(pr)
            else: last_pair()
            donep[0] = pr + 1
            if pr == 3:
                for k in range(4): a(f'v_mov_b32 v{V+28+k}, 0')
        work = [(None, tail_setup1), (None, tail_setup2)] + [(('v', 2*pr+1), (lambda pr=pr: pvw(pr))) for pr in range(16)]
        work.insert(len(work) - rsat, (None, red_setup))
        seq = [('v', i) for i in range(vn[0], 32)] + [('d', i) for i in range(7)] + [('o', i) for i in range(8)]
        def force(n):
            while donep[0] < n:
                t, f = work.pop(0)
                if t: a.vm_wait(t)
                f()
        def run_seq(seq, work, f3):
            for kind, i in seq:
                if kind == 'v': vload()
                elif kind == 'd':
                    force(4)
                    if i == 0: stamp(4)
                    pace()
                    a(f'buffer_load_dwordx4 v[{V+4*i}:{V+4*i+3}], v6, s[36:39], s48 offen offset:{2048*(i & 1)}{PL["d"]}', tag=('d', i))
                    if i & 1: a('s_add_u32 s48, s48, 4096')
                    if i == f3: a('ds_write_b32 v13, v13')
                else:
                    force(8)
                    if i & 3: a('s_add_u32 s49, s49, 16384')
                    elif i: a('s_sub_u32 s49, s49, 49152')
                    pace()
                    a(f'buffer_load_dwordx4 v[{V+32+4*i}:{V+32+4*i+3}], v7, s[32:35], s49 offen offset:{2048*(i >> 2)}{PL["o"]}', tag=('o', i))
                    if i + 7 == f3: a('ds_write_b32 v13, v13')
                st = [t for t in a.vm if isinstance(t, tuple)]
                landed = st[:len(st) - sched(W[0], n_ld[0]-1)]
                k = 0
                while work and k < 2 and (work[0][0] is None or work[0][0] in landed):
                    work.pop(0)[1](); k += 1
        if sfx and defer:
            run_seq(seq[:-defer], work, 14 - defer)
            force(16)
            a(f'v_mov_b32 v24, {L_F+F3E}')
            ldsdata('rdone', ['ds_read_b128 v[20:23], v24'], range(20, 24), 25, 1)
            W[0] = ((0, 15),)
            run_seq(seq[-defer:], work, None)
        elif hold and not sfx:
            nb, wa, wait = hold
            run_seq(seq[:nb-15], work, f3at)
            force(16)
            if wait:
                a.vm_wait(('d', nb-1))
                if gap == 'ack': a('s_waitcnt vmcnt(0)')
                elif gap: a(f's_sleep {gap}')
            W[0] = ((0, wa),)
            run_seq(seq[nb-15:], work, f3at)
        else:
            run_seq(seq, work, f3at)
            force(16)
    vm0, n0 = list(a.vm), n_ld[0]
    a('s_cmp_ge_u32 s2, 224\ns_cbranch_scc1 L_light')
    phase1(1)
    rest('', nB1)
    a('L_varend:')
    a.vm = [t for t in a.vm if t != 'ost']
    ldsdata('hw', [f'ds_read_b128 v[{X}:{X+3}], v11'], range(X, X+4), 20, 1)
    a.vm_wait(('d', 6))
    for f in tile_ops(V, X, True): f()
    fold_cols(D, 20)
    for u in range(3 if fastwo else 4):
        a.vm_wait(('o', 2*u+1))
        perms_pair(V+32+8*u, V+32+8*u+4, TB, u)
    oread = f'ds_read_b128 v[{X}:{X+3}], v11 offset:{L_O16-L_H}'
    order = (0, 6, 1, 7, 2, 4, 3, 5)
    def womf(j): a(f'v_mfma_f32_16x16x32_bf16 v[{D+4*j}:{D+4*j+3}], v[{X}:{X+3}], v[{TB+4*j}:{TB+4*j+3}], 0')
    if fastwo:
        a.vm_wait(('o', 6))
        a(oread)
        a.vm_wait(('o', 7))
        stamp(8)
        for j in order: a(f'v_perm_b32 v{TB+4*j+3}, v{V+60+(j >> 1)}, v{V+56+(j >> 1)}, s{60+(j & 1)}')
        a('L_ow:\ns_waitcnt lgkmcnt(0)')
        umax(range(X, X+4), 24)
        a('v_cmp_eq_u32 vcc, -1, v24\ns_cbranch_vccz L_ow_ok\n' + oread)
        again('L_ow')
        a('s_waitcnt lgkmcnt(0)\nL_ow_ok:')
    else:
        stamp(8)
        ldsdata('ow', [oread], range(X, X+4), 24, 0)
    for j in order: womf(j)
    fold_cols(D, 20, '0x1')
    a('s_cmp_eq_u32 s92, 1')
    put_tag(20, 4, 12, 12)
    if 's' in local:
        a('s_cbranch_scc0 L_sfar\nbuffer_store_dwordx4 v[20:23], v10, s[28:31], s50 offen' + sfpol)
        stamp(6)
        finish()
        a('L_sfar:')
    a('buffer_store_dwordx4 v[20:23], v10, s[28:31], s50 offen sc1')
    stamp(6)
    finish()

    a('L_light:')
    a.vm = list(vm0); n_ld[0] = n0; W[0] = winL; nF[0] = nF1L
    phase1(0)
    rest('L', nB1L)
    a('s_branch L_varend')

    def optags():
        a('v_mov_b32 v20, s96\nv_and_b32 v19, 7, v1\nv_lshlrev_b32 v21, 2, v19\nv_alignbit_b32 v20, v20, v20, v21')
        for d in range(4): a(f'v_alignbit_b32 v{28+d}, v20, v20, {d}\nv_and_b32 v{28+d}, 0x10001, v{28+d}')
    a('L_H0:')
    t = 20
    if not h0late: a('s_barrier')
    zstamps(); consts()
    a(f's_waitcnt vmcnt(0)\nv_xor_b32 v14, {0xffffffff ^ CMIX}, v14\nv_mov_b32 v13, {L_F}\nv_readfirstlane_b32 s96, v14')
    a(f's_getreg_b32 s52, hwreg(HW_REG_XCC_ID, 0, 4)\ns_xor_b32 s53, s96, 0x5a5a5a50\ns_and_b32 s53, s53, -16\ns_or_b32 s53, s53, s52')
    a(f's_and_b32 s54, s2, 7\ns_lshl_b32 s54, s54, 8\ns_and_b32 s55, s2, -8\ns_add_u32 s54, s54, s55\ns_add_u32 s54, s54, {XC}')
    a(f'v_mov_b32 v15, s53\nv_mov_b32 v16, {OOB}\nv_cmp_ne_u32 vcc, 0, v1\nv_cndmask_b32 v16, 0, v16, vcc')
    a('buffer_store_dwordx2 v[14:15], v16, s[28:31], s54 offen')
    for d in range(8):
        a(f'v_lshlrev_b32 v{t+2*d}, 16, v{XS+d}\nv_and_b32 v{t+2*d+1}, 0xffff0000, v{XS+d}')
    a(f'v_add_f32 v8, v{t}, v{t+1}')
    for k in range(2, 16): a(f'v_add_f32 v8, v8, v{t+k}')
    allred_row('v_add_f32', 8); allred_xrow('v_add_f32', 8, 9)
    a('v_mul_f32 v8, 0x3a800000, v8')
    a(f'v_sub_f32 v9, v{t}, v8\nv_mul_f32 v10, v9, v9')
    for k in range(1, 16): a(f'v_sub_f32 v9, v{t+k}, v8\nv_fmac_f32 v10, v9, v9')
    allred_row('v_add_f32', 10); allred_xrow('v_add_f32', 10, 9)
    a('v_mul_f32 v10, 0x3a800000, v10')
    rbf(8); rbf(10)
    a('v_add_f32 v10, 0x3727c5ac, v10'); rbf(10)
    a('v_sqrt_f32 v10, v10'); rbf(10)
    a('v_rcp_f32 v11, v10\nv_fma_f32 v12, -v10, v11, 1.0\nv_fma_f32 v11, v12, v11, v11')
    for d in range(8):
        r = t + 2*d
        a(f'v_sub_f32 v{r}, v{r}, v8\nv_sub_f32 v{r+1}, v{r+1}, v8')
        a(f'v_cvt_pk_bf16_f32 v{r}, v{r}, v{r+1}\nv_and_b32 v{r+1}, 0xffff0000, v{r}\nv_lshlrev_b32 v{r}, 16, v{r}')
        a(f'v_mul_f32 v{r}, v{r}, v11\nv_mul_f32 v{r+1}, v{r+1}, v11\nv_cvt_pk_bf16_f32 v{XS+d}, v{r}, v{r+1}')
    if h0late: a('s_barrier')
    a(f'v_add_u32 v7, {L_X}, v7\nds_write_b128 v7, v[{XS}:{XS+3}]\nds_write_b128 v7, v[{XS+4}:{XS+7}] offset:16')
    a(f'ds_write_b32 v13, v14 offset:{FT}\ns_waitcnt lgkmcnt(0)')
    a(f'ds_write_b32 v13, v13 offset:{F0}')
    stamp(2)
    a('v_and_b32 v18, 7, v1')
    a(f's_mul_i32 s52, s55, 56\ns_add_u32 s52, s52, {HF}')
    ldswait('sdone', L_MLW, 4)
    a('v_min_u32 v12, 6, v18\nv_lshrrev_b32 v10, 3, v1\nv_mul_u32_u24 v10, 7, v10\nv_add_lshl_u32 v10, v10, v12, 2')
    a('v_lshlrev_b32 v12, 2, v10\nv_and_b32 v12, 16, v12\nv_bfe_u32 v12, s96, v12, 16')
    gather('hg', [(f'buffer_load_dword v{32+n}, v10, s[28:31], s52 offen offset:{224*n} sc1', 32+n, 1) for n in range(2)], 20, lambda k, d: 'v12', '0xffff', 22, sleep, 'instr')
    a(f'v_cmp_ne_u32 vcc, 7, v18\nv_and_b32 v10, 62, v1\nv_lshlrev_b32 v10, 1, v10\nv_add_u32 v10, {L_H}, v10')
    for n in range(2):
        a(f'v_cndmask_b32 v{20+n}, 0, v{20+n}, vcc')
        a(f'v_mov_b32_dpp v22, v{20+n} quad_perm:[0,0,2,2] row_mask:0xf bank_mask:0xf\nv_mov_b32_dpp v23, v{20+n} quad_perm:[1,1,3,3] row_mask:0xf bank_mask:0xf')
        a(f'v_perm_b32 v{20+n}, v23, v22, s61\nds_write_b32 v10, v{20+n} offset:{128*n}')
    stamp(4)
    a('s_cmp_ge_u32 s2, 224\ns_cbranch_scc1 L_ofin\nL_H0b:')
    if og16:
        a(f's_and_b32 s50, s2, -8\ns_lshl_b32 s50, s50, 8\ns_add_u32 s50, s50, {OG}')
        optags()
        a('v_and_b32 v10, 1, v1\nv_lshlrev_b32 v10, 4, v10\nv_mov_b32 v11, 0x3f80\nv_lshlrev_b32 v10, v10, v11\nv_bfe_u32 v11, v1, 1, 3')
        for d in range(4): a(f'v_cmp_eq_u32 vcc, {d}, v11\nv_cndmask_b32 v{24+d}, 0, v10, vcc')
        a(f'v_and_b32 v10, 15, v1\nv_lshlrev_b32 v10, 4, v10\nv_and_b32 v8, 16, v1\nv_lshrrev_b32 v8, 1, v8\nv_add_u32 v10, v10, v8\nv_add_u32 v10, {L_O16}, v10')
        a(f'v_lshlrev_b32 v8, 4, v1\nv_mov_b32 v16, {L_F+F3}')
        ldsdata('f3', ['ds_read_b128 v[40:43], v16'], range(40, 44), 22, 2)
        stamp(3)
        gather('og', [(f'buffer_load_dwordx4 v[{64+4*n}:{67+4*n}], v8, s[28:31], s50 offen offset:{1024*n} sc1', 64+4*n, 4) for n in range(2)],
               40, lambda k, d: f'v{28+d}', '0x10001', 20, slF, 'all',
               each=lambda n, c0: a(f'v_mfma_f32_16x16x32_bf16 v[48:51], v[24:27], v[{c0}:{c0+3}], {"v[48:51]" if n else "0"}'))
        a('s_mov_b32 exec_hi, 0\ns_nop 1\nv_cvt_pk_bf16_f32 v20, v48, v49\nv_cvt_pk_bf16_f32 v21, v50, v51\nds_write_b64 v10, v[20:21]')
    else:
        a(f's_and_b32 s50, s2, -8\ns_lshl_b32 s50, s50, 9\ns_add_u32 s50, s50, {OG}')
        tags(12, SH12)
        a(f'v_and_b32 v10, 31, v1\nv_lshlrev_b32 v10, 3, v10\nv_lshrrev_b32 v8, 5, v1\nv_lshl_add_u32 v10, v8, 2, v10\nv_add_u32 v10, {L_O16}, v10')
        a(f'v_lshlrev_b32 v8, 4, v1\nv_mov_b32 v16, {L_F+F3}')
        ldsdata('f3', ['ds_read_b128 v[40:43], v16'], range(40, 44), 22, 2)
        stamp(3)
        gather('og', [(f'buffer_load_dwordx4 v[{64+4*n}:{67+4*n}], v8, s[28:31], s50 offen offset:{1024*n} sc1', 64+4*n, 4) for n in range(4)],
               40, lambda k, d: f's{97+d}', '0xfff', 22, slF, mO)
        for k in (0, 2): a(f'v_pk_add_f32 v[{40+k}:{41+k}], v[{40+k}:{41+k}], v[{44+k}:{45+k}]\nv_pk_add_f32 v[{48+k}:{49+k}], v[{48+k}:{49+k}], v[{52+k}:{53+k}]')
        for k in (0, 2): a(f'v_pk_add_f32 v[{40+k}:{41+k}], v[{40+k}:{41+k}], v[{48+k}:{49+k}]')
        a('v_permlane32_swap_b32 v40, v42\nv_permlane32_swap_b32 v41, v43\nv_pk_add_f32 v[40:41], v[40:41], v[42:43]')
        a('v_cvt_pk_bf16_f32 v20, v40, v41\nds_write_b32 v10, v20')
    stamp(8)
    a('s_waitcnt lgkmcnt(0)')
    finish()

    a('L_H123:')
    if tlbpf:
        a('s_cmp_lg_u32 s3, 1\ns_cbranch_scc1 L_notlb')
        a('s_cmp_lt_u32 s2, 224\ns_cbranch_scc1 L_notlb')
        a('s_bfe_u32 s52, s2, 0x20003\ns_and_b32 s55, s2, 7\ns_lshl_b32 s53, s55, 15')
        a('s_lshl_b32 s54, s52, 21\ns_add_u32 s54, s54, s53\nv_mov_b32 v5, s54\nv_mov_b32 v7, 0')
        a('s_mov_b64 exec, 1\ns_waitcnt lgkmcnt(0)')
        for k, c in enumerate(tlbpf):
            v, p = {'g': (5, 16), 'u': (5, 18), 'd': (5, 20), 'o': (5, 12), 'y': (7, 22)}[c]
            a(f'global_load_dword v{240+k}, v{v}, s[{p}:{p+1}]')
        a('s_mov_b64 exec, -1\nL_notlb:')
    if stamps: a('s_mov_b64 s[66:67], 0')
    a('v_mov_b32 v16, -1\nv_mov_b32 v17, -1\nv_mov_b32 v18, -1\nv_mov_b32 v19, -1')
    a(f'v_lshlrev_b32 v13, 4, v1\nv_add_u32 v12, {L_Q}, v13')
    for k in range(7): a(f'ds_write_b128 v12, v[16:19] offset:{1024*k}')
    assert L_Q + 7168 == L_END and ormode == 1 and mlgate == 'f3' and nB0 <= nXC
    a(f'v_lshrrev_b32 v12, 4, v1\nv_mul_u32_u24 v12, 4224, v12\nv_add_u32 v12, {L_ORW}, v12\nds_write_b32 v12, v16')
    a('s_waitcnt lgkmcnt(0)\ns_barrier')
    zstamps(); consts()
    a(f'v_mov_b32 v9, {OOB}\nv_mov_b32 v15, 0xffffff00\nv_lshrrev_b32 v2, 4, v1\nv_and_b32 v3, 15, v1\nv_and_b32 v14, 7, v1')
    a('s_and_b32 s55, s2, 7\ns_lshr_b32 s54, s2, 3')
    ldswait('f0h', L_F+F0, 4)
    get_tag(11); tags(8, (0, 8, 16, 24))
    a('s_cmp_eq_u32 s3, 2\ns_cbranch_scc1 L_H2')
    a('s_cmp_eq_u32 s3, 3\ns_cbranch_scc1 L_H3')
    L, C = 128, 144
    qjob('s53', 's58', 's59')
    a(f's_lshl_b32 s59, s53, 12\ns_add_u32 s59, s59, {QP}\ns_lshl_b32 s58, s58, 9\ns_add_u32 s58, s58, s59')
    ldswait('fm1', L_F+FM, 2)
    a('v_readfirstlane_b32 s92, v11')
    a(f'v_add_u32 v10, {L_QR}, v13\nv_cmp_gt_u32 vcc, 32, v1\nv_cndmask_b32 v8, v9, v13, vcc')
    def sum_halves(r):
        for k in range(4): a(f'v_mov_b32 v{r+4+k}, v{r+k}')
        for k in range(4): a(f'v_permlane32_swap_b32 v{r+4+k}, v{r+k}')
        for k in range(4): a(f'v_add_f32 v{r+k}, v{r+k}, v{r+4+k}')
    ldsdata('qr', [f'ds_read_b128 v[{L+4*n}:{L+4*n+3}], v10 offset:{1024*n}' for n in range(2)], range(L, L+8), 20, 2)
    for k in range(4): a(f'v_add_f32 v{L+k}, v{L+k}, v{L+4+k}')
    sum_halves(L)
    put_tag(L, 4, 8, 15)
    lstore('q', 'stq', f'buffer_store_dwordx4 v[{L}:{L+3}], v8, s[28:31], s58 offen')
    stamp(2)
    a('s_and_b32 s88, s96, 0xffff\ns_lshr_b32 s89, s96, 16')
    a('s_cmp_lt_u32 s2, 224\ns_cbranch_scc1 L_qf0')
    a(f's_lshl_b32 s57, s53, 9\ns_add_u32 s57, s57, {QF}\ns_waitcnt vmcnt(0)')
    gather('qp', [(f'buffer_load_dwordx4 v[{L+4*n}:{L+4*n+3}], v13, s[28:31], s59 offen offset:{1024*n} sc1', L+4*n, 4) for n in range(4)],
           C, lambda k, d: f's{97+d}', '0xff', 20, 4, 'instr')
    for k in range(4): a(f'v_add_f32 v{C+k}, v{C+k}, v{C+4+k}\nv_add_f32 v{C+8+k}, v{C+8+k}, v{C+12+k}')
    for k in range(4): a(f'v_add_f32 v{C+k}, v{C+k}, v{C+8+k}')
    sum_halves(C)
    for k in range(4): a(f'v_cvt_pk_bf16_f32 v{20+k}, v{C+k}, v{C+k}\nv_lshlrev_b32 v{20+k}, 16, v{20+k}\nv_or_b32 v{20+k}, s{88+(k & 1)}, v{20+k}')
    a('buffer_store_dwordx4 v[20:23], v8, s[28:31], s57 offen sc1')
    stamp(10)
    a('s_waitcnt vmcnt(0)')
    a('L_qf0:')
    ldswait('f1', L_F+F1, 2)
    stamp(3)
    gj('s52', None, None)
    a(f's_lshl_b32 s52, s52, 12\ns_add_u32 s52, s52, {QF}')
    gather('qf', [(f'buffer_load_dwordx4 v[{L+4*n}:{L+4*n+3}], v13, s[28:31], s52 offen offset:{1024*n} sc1', L+4*n, 4) for n in range(4)],
           C, lambda k, d: f's{88+(d & 1)}', '0xffff', 20, sleep, 'lane')
    a(f'v_lshrrev_b32 v11, 5, v1\nv_lshlrev_b32 v11, 1, v11\nv_add_lshl_u32 v11, v11, v1, 3\nv_add_u32 v11, {L_Q}, v11')
    for n in range(4):
        a(f'v_perm_b32 v{20+2*n}, v{C+4*n+1}, v{C+4*n}, s61\nv_perm_b32 v{21+2*n}, v{C+4*n+3}, v{C+4*n+2}, s61')
        a(f'ds_write_b64 v11, v[{20+2*n}:{21+2*n}] offset:{544*n}')
    stamp(4)
    a('s_cmp_ge_u32 s2, 224\ns_cbranch_scc1 L_ofin\nL_H1b:')
    srd(40, 22, 2048); srd(44, 4, 2048)
    a('s_lshl_b32 s50, s55, 5\ns_add_u32 s50, s50, s54\ns_lshl_b32 s55, s50, 3')
    if alias: a(f's_lshr_b32 s51, s50, 5\ns_lshl_b32 s51, s51, 16\ns_lshl_b32 s50, s54, 5\ns_add_u32 s50, s50, s51\ns_add_u32 s50, s50, {OP}\ns_add_u32 s51, s50, 32768')
    else: a(f's_lshr_b32 s51, s50, 2\ns_lshl_b32 s51, s51, 13\ns_and_b32 s50, s50, 3\ns_lshl_b32 s50, s50, 5\ns_add_u32 s50, s50, s51\ns_add_u32 s50, s50, {SF}\ns_add_u32 s51, s50, 4096')
    a(f'v_lshrrev_b32 v10, 1, v1\nv_lshlrev_b32 v10, {10 if alias else 7}, v10\nv_and_b32 v12, 1, v1\nv_lshl_add_u32 v10, v12, 4, v10\nv_lshlrev_b32 v12, 1, v2')
    a('buffer_load_ushort v15, v12, s[44:47], s55 offen')
    if outpf: a('buffer_load_ushort v14, v12, s[40:43], s55 offen')
    a('v_cmp_eq_u32 vcc, 0, v3\nv_cndmask_b32 v13, v9, v12, vcc')
    a(f's_xor_b32 s57, s96, {CMIX}\nv_mov_b32 v17, s57\nv_or_b32 v18, s2, v1\nv_mov_b32 v19, {EP}\nv_cmp_eq_u32 vcc, 0, v18\nv_cndmask_b32 v16, v9, v19, vcc')
    tags(12, SH12)
    a('s_waitcnt vmcnt(0)\nv_lshlrev_b32 v15, 16, v15')
    ldswait('o16', L_O16, 1)
    if dlS: a(f's_sleep {dlS}')
    stamp(8)
    sl = [f'buffer_load_dwordx4 v[{36+4*n}:{39+4*n}], v10, s[28:31], s{50+n} offen sc1' for n in range(2)]
    if not pipe:
        gather('sg', [(sl[n], 36+4*n, 4) for n in range(2)], 28, lambda k, d: f's{97+d}', '0xfff', 20, slS, mS)
    else:
        a(sl[0] + '\n' + sl[1] + '\ns_mov_b64 s[88:89], -1\ns_mov_b64 s[90:91], -1')
        a('L_sg:')
        a(f's_or_b64 exec, s[88:89], 1\n{sl[0]}\ns_or_b64 exec, s[90:91], 1\n{sl[1]}\ns_mov_b64 exec, -1')
        a(f's_waitcnt vmcnt({2*pipe})')
        for n in range(2):
            for d in range(4): a(f'v_xor_b32 v{28+4*n+d}, s{97+d}, v{36+4*n+d}')
            orall(range(28+4*n, 32+4*n), 20+n)
            a(f'v_and_b32 v{20+n}, 0xfff, v{20+n}\nv_cmp_ne_u32 s[{88+2*n}:{89+2*n}], 0, v{20+n}')
        a('s_or_b64 vcc, s[88:89], s[90:91]\ns_cbranch_scc0 L_sg_ok')
        again('L_sg')
        a('L_sg_ok:')
    stamp(9)
    a('v_pk_add_f32 v[28:29], v[28:29], v[32:33]\nv_pk_add_f32 v[30:31], v[30:31], v[34:35]')
    red4(28); allred_row('v_add_f32', 28, (8, 4, 2))
    rbf(28)
    a('v_mul_f32 v25, 0xbfb8aa3b, v28\nv_exp_f32 v25, v25\nv_add_f32 v25, 1.0, v25\nv_rcp_f32 v25, v25\nv_mul_f32 v24, v28, v25')
    rbf(24)
    a('v_mul_f32_dpp v28, v24, v28 quad_perm:[1,1,3,3] row_mask:0xf bank_mask:0xf'); rbf(28)
    a('v_add_f32 v28, v28, v15\nv_cvt_pk_bf16_f32 v28, v28, v28')
    if probe:
        a('s_lshl_b32 s52, s2, 7')
        for base, off, own in probe:
            a(f's_add_u32 s53, s52, {off}\nv_mov_b32 v30, {"s53" if own else off}\nglobal_load_dword v31, v30, s[{base}:{base+1}]\ns_waitcnt vmcnt(0)')
    a('buffer_store_short v28, v13, s[40:43], s55 offen' + outpol)
    a('buffer_store_dword v17, v16, s[28:31], 0 offen sc1')
    finish()
    a('L_H2:')
    a('s_cmp_ge_u32 s2, 224\ns_cbranch_scc1 L_nogu')
    for jb in range(2):
        gujob(jb, 's58', 's52', 's53', 's59', f'gj{jb}')
        a(f's_lshl1_add_u32 s58, s58, s52\ns_lshl3_add_u32 s58, s58, s53\ns_lshl_b32 s{56+jb}, s58, 9')
    a('s_sub_u32 s57, s57, 512')
    ldswait('fm2', L_F+FM, 4)
    a('v_readfirstlane_b32 s92, v11\ns_and_b32 s58, s2, 0xc1\ns_cmp_eq_u32 s58, 0xc1\ns_cselect_b32 s92, 0, s92')
    a('v_mov_b32 v8, s57\nv_mov_b32 v10, s56\nv_cmp_gt_u32 vcc, 32, v1\nv_cndmask_b32 v8, v8, v10, vcc\nv_add_u32 v8, v8, v13')
    a(f'v_and_b32 v10, 32, v1\nv_lshl_add_u32 v10, v10, 4, v13\nv_add_u32 v10, {L_GR}, v10')
    ldsdata('gr', [f'ds_read_b128 v[{L+4*n}:{L+4*n+3}], v10 offset:{512*n}' for n in range(2)], range(L, L+8), 20, 4)
    for k in range(4): a(f'v_add_f32 v{L+k}, v{L+k}, v{L+4+k}')
    put_tag(L, 4, 8, 15)
    assert GU == 0
    lstore('g', 'stg', f'buffer_store_dwordx4 v[{L}:{L+3}], v8, s[28:31], 0 offen')
    stamp(2)
    a('s_branch L_hget')
    a('L_nogu:')
    a('s_and_b32 s53, s2, 0xf9\ns_cmp_eq_u32 s53, 0xf9\ns_cbranch_scc1 L_hget')
    qjob('s53', 's56', 's57')
    a('s_bfe_u32 s56, s2, 0x20001\ns_add_u32 s56, s56, 24\ns_cmp_ge_u32 s2, 248\ns_cselect_b32 s53, s56, s53')
    a(f's_lshl_b32 s56, s53, 13\ns_add_u32 s57, s56, 4096\ns_lshl_b32 s58, s53, 9\ns_add_u32 s58, s58, {HF}')
    a('s_and_b32 s88, s96, 0xffff\ns_lshr_b32 s89, s96, 16\nv_cmp_gt_u32 vcc, 32, v1\nv_cndmask_b32 v8, v9, v13, vcc')
    ldswait('qseen', L_Q, 4)
    C2 = 160
    gather('gug', [(f'buffer_load_dwordx4 v[{L+4*n}:{L+4*n+3}], v13, s[28:31], s{56+(n >> 2)} offen offset:{1024*(n & 3)} sc1', L+4*n, 4) for n in range(8)],
           C2, lambda k, d: f's{97+d}', '0xff', 20, 4, 'instr')
    for b in (C2, C2+16):
        for k in range(4): a(f'v_add_f32 v{b+k}, v{b+k}, v{b+4+k}\nv_add_f32 v{b+8+k}, v{b+8+k}, v{b+12+k}')
        for k in range(4): a(f'v_add_f32 v{b+k}, v{b+k}, v{b+8+k}')
        sum_halves(b)
    for k in range(4):
        rbf(C2+k); rbf(C2+16+k); silu(C2+k, 24); rbf(C2+k)
        a(f'v_mul_f32 v{20+k}, v{C2+k}, v{C2+16+k}'); rbf(20+k)
        a(f'v_or_b32 v{20+k}, s{88+(k & 1)}, v{20+k}')
    a('buffer_store_dwordx4 v[20:23], v8, s[28:31], s58 offen sc1')
    stamp(10)
    a('L_hget:')
    a('s_branch L_H23')
    a('L_H3:')
    a(f's_getreg_b32 s52, hwreg(HW_REG_XCC_ID, 0, 4)\ns_xor_b32 s53, s96, 0x5a5a5a50\ns_and_b32 s53, s53, -16')
    a(f's_lshl_b32 s56, s55, 8\ns_add_u32 s56, s56, {XC}\nv_and_b32 v10, 31, v1\nv_lshlrev_b32 v10, 3, v10')
    a(f's_or_b32 s53, s53, s52\ns_mov_b32 s57, {xctries}')
    ldswait('f4', L_F+F4, 2)
    a('L_xc:\nbuffer_load_dwordx2 v[32:33], v10, s[28:31], s56 offen sc1\ns_mov_b32 s52, 1\ns_waitcnt vmcnt(0)')
    a('v_xor_b32 v20, s96, v32\nv_xor_b32 v21, s53, v33\nv_or_b32 v20, v20, v21\nv_cmp_ne_u32 vcc, 0, v20\ns_cbranch_vccz L_xc_ok')
    a('s_mov_b32 s52, 0\ns_sub_u32 s57, s57, 1\ns_cmp_lg_u32 s57, 0\ns_cbranch_scc1 L_xc\nL_xc_ok:')
    a(f'v_mov_b32 v10, {L_F}\nv_mov_b32 v11, s52\nds_write_b32 v10, v11 offset:{FM}')
    stamp(2)
    a(f'v_lshlrev_b32 v10, 3, v14\nv_add_u32 v11, {L_MLW}, v10\ns_mov_b32 s88, {LOG2E}\ns_lshr_b32 s90, s96, 16\ns_and_b32 s97, s96, 0xfff')
    gj('s52', 's53', 's89')
    a(f's_lshl_b32 s89, s52, 6\ns_add_u32 s89, s89, s53\ns_lshl_b32 s89, s89, 6\ns_add_u32 s89, s89, {ML}\nv_cmp_gt_u32 vcc, 8, v1\nv_cndmask_b32 v10, v9, v10, vcc\nv_mov_b32 v15, 0xfffff000')
    ldsdata('mlp_w', [f'ds_read_b64 v[{20+2*w}:{21+2*w}], v11 offset:{64*w}' for w in range(4)], range(20, 28), 28, 4)
    a('v_max3_f32 v28, v20, v22, v24\nv_max_f32 v28, v28, v26\nv_mul_f32 v30, s88, v28\nv_ceil_f32 v30, v30')
    for w in range(4): a(f'v_fma_f32 v{20+2*w}, v{20+2*w}, s88, -v30\nv_exp_f32 v{20+2*w}, v{20+2*w}')
    a('v_mul_f32 v33, v20, v21\nv_fmac_f32 v33, v22, v23\nv_fmac_f32 v33, v24, v25\nv_fmac_f32 v33, v26, v27')
    put_tag(33, 1, 12, 15)
    a('v_or_b32 v32, s90, v28')
    a('buffer_store_dwordx2 v[32:33], v10, s[28:31], s89 offen' + mlpol)
    if xdirty:
        a(f's_lshl_b32 s52, s2, 12\ns_add_u32 s52, s52, {4<<20}\nv_add_u32 v10, s52, v13')
        for k in range(xdirty): a(f'global_store_dwordx4 v10, v[20:23], s[26:27] offset:{1024*k}')
    stamp(4)
    a('L_H23:')
    a('s_cmp_ge_u32 s2, 224\ns_cbranch_scc1 L_ofin')
    finish()
    a('L_ofin:')
    MR, MC, SEL, G, GC, DD = 32, 36, 40, 64, 80, 96
    optags()
    a('s_and_b32 s88, s2, 7\ns_bfe_u32 s89, s2, 0x20003')
    a(f's_lshl_b32 s57, s89, 12\ns_lshl_b32 s53, s3, 4\ns_add_u32 s57, s57, s53\ns_add_u32 s57, s57, {ML}')
    a('v_add_u32 v7, s88, v19\nv_and_b32 v7, 7, v7\nv_and_b32 v8, 56, v1\nv_add_lshl_u32 v7, v7, v8, 6')
    a(f's_lshr_b32 s90, s96, 16\ns_and_b32 s91, s96, 0xfff\ns_mov_b32 s58, {LOG2E}')
    a('v_and_b32 v10, 1, v1\nv_lshlrev_b32 v10, 4, v10\nv_mov_b32 v11, 0xffff\nv_lshlrev_b32 v10, v10, v11\nv_bfe_u32 v11, v1, 1, 2')
    for d in range(4): a(f'v_cmp_eq_u32 vcc, {d}, v11\nv_cndmask_b32 v{24+d}, 0, v10, vcc')
    a(f's_lshl2_add_u32 s48, s88, s89\ns_lshl2_add_u32 s48, s48, s3\ns_lshl_b32 s48, s48, 12\ns_add_u32 s48, s48, {OP}')
    a(f's_lshl2_add_u32 s56, s89, s3\ns_lshl_b32 s56, s56, 13\ns_lshl_b32 s53, s88, 9\ns_add_u32 s56, s56, s53\ns_add_u32 s56, s56, {OG}')
    a('v_and_b32 v10, 8, v1\nv_lshlrev_b32 v10, 9, v10\nv_and_b32 v11, 32, v1\nv_lshl_add_u32 v10, v11, 3, v10\nv_lshl_add_u32 v10, v19, 5, v10\nv_and_b32 v11, 16, v1\nv_add_u32 v10, v10, v11')
    a(f'v_lshlrev_b32 v8, 4, v1\nv_mov_b32 v14, {L_F+F3}\nv_mov_b32 v18, {0xfffefffe if og16 else 0xfffff000}')
    if og16:
        a(f's_sub_u32 s56, s56, {OG}\ns_lshr_b32 s56, s56, 1\ns_add_u32 s56, s56, {OG}\nv_lshrrev_b32 v10, 1, v10\nv_mov_b32 v4, v28\nv_mov_b32 v5, v29')
        for e in range(2): a(f'v_mov_b32_dpp v{4+e}, v{30+e} quad_perm:[0,1,2,3] row_mask:0xa bank_mask:0xf')
    tags(12, SH12)
    if mlgate == 'or': ldswait('orl', L_OR, 4)
    else: ldsdata('f3m', ['ds_read_b128 v[56:59], v14'], range(56, 60), 22, 4)
    def mlpre(c0, t):
        a(f'v_or_b32 v{t}, v{c0+1}, v{c0+3}\nv_and_b32 v{t}, 0xfff, v{t}\nv_or3_b32 v{t}, v{t}, v{c0}, v{c0+2}')
    gather('mlg', [(f'buffer_load_dwordx4 v[{MR}:{MR+3}], v7, s[28:31], s57 offen sc1', MR, 4)], MC, lambda k, d: f's{90+(d & 1)}', '0xffff', 22, 4, 'lane', pre=mlpre)
    for e in range(2):
        m, l = MC + 2*e, MC + 2*e + 1
        a(f'v_mul_f32 v{m}, s58, v{m}\nv_ceil_f32 v{m}, v{m}\nv_mov_b32 v22, v{m}')
        allred_row('v_max_f32', 22); allred_xrow('v_max_f32', 22, 23)
        a(f'v_sub_f32 v{m}, v{m}, v22\nv_cvt_i32_f32 v{m}, v{m}\nv_ldexp_f32 v{m}, 1.0, v{m}\nv_mul_f32 v{l}, v{m}, v{l}')
        allred_row('v_add_f32', l); allred_xrow('v_add_f32', l, 23)
        a(f'v_perm_b32 v{m}, v{m}, v{m}, s61')
        a(f'v_mov_b32_dpp v22, v{m} row_newbcast:0 row_mask:0xf bank_mask:0x3\nv_mov_b32_dpp v22, v{m} row_newbcast:8 row_mask:0xf bank_mask:0xc')
        for d in range(4): a(f'v_and_b32 v{SEL+4*e+d}, v22, v{24+d}')
    a(f'v_mov_b32_dpp v{MC+1}, v{MC+3} quad_perm:[0,1,2,3] row_mask:0xf bank_mask:0xc\nv_rcp_f32 v17, v{MC+1}')
    stamp(9)
    ldsdata('f3o', ['ds_read_b128 v[56:59], v14'], range(56, 60), 22, 2)
    if stamps: a('s_cmp_lt_u32 s3, 2\ns_cbranch_scc1 L_ns1'); stamp(3); a('L_ns1:')
    def omfma(n, c0):
        a(f'v_mfma_f32_16x16x32_bf16 v[{DD+4*n}:{DD+4*n+3}], v[{SEL+4*(n >> 1)}:{SEL+4*(n >> 1)+3}], v[{c0}:{c0+3}], 0')
    gather('ol', [(f'buffer_load_dwordx4 v[{G+4*n}:{G+4*n+3}], v8, s[28:31], s48 offen offset:{1024*n} sc1', G+4*n, 4) for n in range(4)],
           GC, lambda k, d: f'v{28+d}', '0x10001', 48, slO, 'all', each=omfma)
    stamp(8)
    for k in range(4): a(f'v_permlane32_swap_b32 v{DD+k}, v{DD+4+k}')
    for k in range(4): a(f'v_permlane32_swap_b32 v{DD+8+k}, v{DD+12+k}')
    for k in range(4): a(f'v_add_f32_dpp v{20+k}, v{DD+4+k}, v{DD+k} row_ror:8 row_mask:0xf bank_mask:0x3')
    for k in range(4): a(f'v_add_f32_dpp v{20+k}, v{DD+8+k}, v{DD+12+k} row_ror:8 row_mask:0xf bank_mask:0xc')
    for k in range(4): a(f'v_mul_f32 v{20+k}, v17, v{20+k}')
    if og16:
        for k in range(4): a(f'v_add_u32 v{20+k}, 0x10000, v{20+k}')
        a('v_perm_b32 v20, v21, v20, s61\nv_perm_b32 v21, v23, v22, s61\nv_and_or_b32 v20, v20, v18, v4\nv_and_or_b32 v21, v21, v18, v5')
        a('buffer_store_dwordx2 v[20:21], v10, s[28:31], s56 offen sc1')
    else:
        put_tag(20, 4, 12, 18)
        a('buffer_store_dwordx4 v[20:23], v10, s[28:31], s56 offen sc1')
    if clean:
        for n in range(4): a(f'buffer_store_dwordx4 v[{G+4*n}:{G+4*n+3}], v8, s[28:31], s48 offen offset:{1024*n} sc1')
    a(f's_lshl_b32 s53, s3, 2\nv_add_u32 v14, s53, v14\nds_write_b32 v14, v14 offset:{F3E-F3}')
    stamp(11)
    a('s_cmp_eq_u32 s3, 0\ns_cbranch_scc1 L_H0b')
    a('s_cmp_eq_u32 s3, 1\ns_cbranch_scc1 L_H1b')
    a('s_waitcnt lgkmcnt(0)')
    finish()
    a('L_exit:\ns_endpgm')
    a.raw(f'''.section .rodata,"a"
.p2align 6
.amdhsa_kernel {KNAME}
  .amdhsa_next_free_vgpr 256
  .amdhsa_next_free_sgpr 102
  .amdhsa_accum_offset 256
  .amdhsa_group_segment_fixed_size 0
  .amdhsa_kernarg_size 96
  .amdhsa_user_sgpr_count 2
  .amdhsa_user_sgpr_kernarg_segment_ptr 1
  .amdhsa_system_sgpr_workgroup_id_x 1
  .amdhsa_float_denorm_mode_32 3
.end_amdhsa_kernel''')
    return a.text()

if __name__ == '__main__':
    out = sys.argv[1]
    kw = eval('dict(' + (sys.argv[2] if len(sys.argv) > 2 else '') + ')')
    open(out, 'w').write(gen(**kw))
```
